```python
import torch

def _softmax(x, axis=-1):
    return torch.softmax(x, dim=axis)
def _gelu(x):
    return torch.nn.functional.gelu(x, approximate="tanh")
def _silu(x):
    return torch.nn.functional.silu(x)
def _sigmoid(x):
    return torch.sigmoid(x)
def _layernorm(x, axis=-1, eps=1e-5):
    m = x.mean(dim=axis, keepdim=True)
    v = x.var(dim=axis, keepdim=True, unbiased=False)
    return (x - m) / torch.sqrt(v + eps)
def _scatter_add(tgt, idx, src, axis=0):
    return tgt.clone().index_add_(axis, idx, src)
def _segment_sum(src, seg, n):
    out = torch.zeros((n,) + src.shape[1:], dtype=src.dtype)
    return out.index_add_(0, seg, src)
def _pad(x, pw):
    flat = tuple(v for pair in reversed(pw) for v in pair)
    return torch.nn.functional.pad(x, flat)

kernel_name = 'concat_heads__gqa_block_cached__gqa_block_cached__near_ridge'

def setup_inputs():

    _w = (lambda a: (lambda t: t.to(torch.bfloat16) if t.is_floating_point() else t)(torch.as_tensor(a)))
    def _A_setup():
        B, Sq, D = 32, 32, 448
        Hq, Hkv, Sk, Dh = 16, 8, 32, 256
        assert Hq % Hkv == 0, (Hq, Hkv)
        return {
            "x": _w((lambda *s: torch.randn(*s, dtype=torch.bfloat16) * 0.8)(B, Sq, D)),
            "k_cache": _w((lambda *s: torch.randn(*s, dtype=torch.bfloat16) * 0.8)(B, Hkv, Sk, Dh)),
            "v_cache": _w((lambda *s: torch.randn(*s, dtype=torch.bfloat16) * 0.05)(B, Hkv, Sk, Dh)),
            "wq": _w((lambda *s: torch.randn(*s, dtype=torch.bfloat16) * 0.8)(D, Hq * Dh) * (D ** -0.5)),
            "wo": _w((lambda *s: torch.randn(*s, dtype=torch.bfloat16) * 0.05)(Hq * Dh, D) * ((Hq * Dh) ** -0.5)),
        }
    _A_in = _A_setup()

    def _B_setup():
        B, Sq, D = 32, 32, 448
        Hq, Hkv, Sk, Dh = 16, 8, 32, 256
        assert Hq % Hkv == 0, (Hq, Hkv)
        return {
            "x": _w((lambda *s: torch.randn(*s, dtype=torch.bfloat16) * 0.8)(B, Sq, D)),
            "k_cache": _w((lambda *s: torch.randn(*s, dtype=torch.bfloat16) * 0.8)(B, Hkv, Sk, Dh)),
            "v_cache": _w((lambda *s: torch.randn(*s, dtype=torch.bfloat16) * 0.05)(B, Hkv, Sk, Dh)),
            "wq": _w((lambda *s: torch.randn(*s, dtype=torch.bfloat16) * 0.8)(D, Hq * Dh) * (D ** -0.5)),
            "wo": _w((lambda *s: torch.randn(*s, dtype=torch.bfloat16) * 0.05)(Hq * Dh, D) * ((Hq * Dh) ** -0.5)),
        }
    _B_in = _B_setup()

    return {
        "A_x": _A_in["x"],
        "A_k_cache": _A_in["k_cache"],
        "A_v_cache": _A_in["v_cache"],
        "A_wq": _A_in["wq"],
        "A_wo": _A_in["wo"],
        "B_x": _B_in["x"],
        "B_k_cache": _B_in["k_cache"],
        "B_v_cache": _B_in["v_cache"],
        "B_wq": _B_in["wq"],
        "B_wo": _B_in["wo"],
    }

def reference(A_x, A_k_cache, A_v_cache, A_wq, A_wo, B_x, B_k_cache, B_v_cache, B_wq, B_wo):
    def _A_ref(x, k_cache, v_cache, wq, wo):
        B, Sq, D = x.shape
        Hq, Dh = 16, 256
        Hkv = k_cache.shape[1]
        rep = Hq // Hkv
        q = (lambda x, *d: x.permute(*d))((x @ wq).reshape(B, Sq, Hq, Dh), 0, 2, 1, 3)
        k = (lambda x, n, axis: torch.repeat_interleave(x, n, dim=axis))(k_cache, rep, axis=1)
        v = (lambda x, n, axis: torch.repeat_interleave(x, n, dim=axis))(v_cache, rep, axis=1)
        scores = torch.einsum("bhqd,bhkd->bhqk", q, k) * (Dh ** -0.5)
        p = _softmax(scores, axis=-1)
        o = torch.einsum("bhqk,bhkd->bhqd", p, v)
        return (lambda x, *d: x.permute(*d))(o, 0, 2, 1, 3).reshape(B, Sq, Hq * Dh) @ wo

    def _B_ref(x, k_cache, v_cache, wq, wo):
        B, Sq, D = x.shape
        Hq, Dh = 16, 256
        Hkv = k_cache.shape[1]
        rep = Hq // Hkv
        q = (lambda x, *d: x.permute(*d))((x @ wq).reshape(B, Sq, Hq, Dh), 0, 2, 1, 3)
        k = (lambda x, n, axis: torch.repeat_interleave(x, n, dim=axis))(k_cache, rep, axis=1)
        v = (lambda x, n, axis: torch.repeat_interleave(x, n, dim=axis))(v_cache, rep, axis=1)
        scores = torch.einsum("bhqd,bhkd->bhqk", q, k) * (Dh ** -0.5)
        p = _softmax(scores, axis=-1)
        o = torch.einsum("bhqk,bhkd->bhqd", p, v)
        return (lambda x, *d: x.permute(*d))(o, 0, 2, 1, 3).reshape(B, Sq, Hq * Dh) @ wo

    a = _A_ref(A_x, A_k_cache, A_v_cache, A_wq, A_wo)
    b = _B_ref(B_x, B_k_cache, B_v_cache, B_wq, B_wo)
    return torch.concatenate([a, b], axis=-1)
```

```python
import re

REG_RE = re.compile(r'\b([vas])\[(\d+):(\d+)\]|\b([vas])(\d+)\b|\b(vcc|exec|m0|scc)\b')

def regs_of(tok):
    out = []
    for m in REG_RE.finditer(tok):
        if m.group(1):
            out += [(m.group(1), i) for i in range(int(m.group(2)), int(m.group(3)) + 1)]
        elif m.group(4):
            out.append((m.group(4), int(m.group(5))))
        else:
            out.append((m.group(6), 0))
    return out

def split_ops(s):
    ops, depth, cur = [], 0, ''
    for ch in s:
        if ch == '[': depth += 1
        if ch == ']': depth -= 1
        if ch == ',' and depth == 0:
            ops.append(cur.strip()); cur = ''
        else:
            cur += ch
    if cur.strip(): ops.append(cur.strip())
    return ops

TRANS = ('v_exp_f32', 'v_rcp_f32', 'v_log_f32', 'v_rsq_f32', 'v_sqrt_f32')

class I:
    __slots__ = ('t', 'op', 'kind', 'rd', 'wr', 'tok', 'note')
    def __init__(self, text, tok=None):
        self.t = text; self.tok = tok; self.note = None
        text = text.split(';')[0].strip()
        parts = text.split(None, 1)
        op = parts[0]; self.op = op
        ops = split_ops(parts[1]) if len(parts) > 1 else []
        R = lambda k: regs_of(ops[k]) if k < len(ops) else []
        allr = lambda a: [r for o in ops[a:] for r in regs_of(o)]
        rd, wr = [], []
        if op.endswith(':') or op.startswith('.'):
            kind = 'label'
        elif op.startswith('v_mfma'):
            kind = 'mfma'; wr = R(0); rd = allr(1)
        elif op.startswith('ds_read'):
            kind = 'dsr'; wr = R(0); rd = allr(1)
        elif op.startswith('ds_write') or op.startswith('ds_add'):
            kind = 'dsw'; rd = allr(0)
        elif op.startswith('buffer_load') and ' lds' in text:
            kind = 'dma'; rd = allr(0) + [('m0', 0)]
        elif op.startswith('buffer_load') or op.startswith('global_load'):
            kind = 'vld'; wr = R(0); rd = allr(1)
        elif op.startswith('buffer_store') or op.startswith('buffer_atomic') or op.startswith('global_store'):
            kind = 'vst'; rd = allr(0)
        elif op.startswith('v_permlane'):
            kind = 'perm'; wr = R(0) + R(1); rd = R(0) + R(1)
        elif op.startswith('v_readfirstlane') or op.startswith('v_readlane'):
            kind = 'rfl'; wr = R(0); rd = allr(1)
        elif op.startswith('v_cmp'):
            kind = 'valu'; wr = R(0); rd = allr(1)
        elif op.startswith('v_'):
            kind = 'trans' if op.replace('_e32', '').replace('_e64', '') in TRANS else 'valu'
            wr = R(0); rd = allr(1)
            if op.startswith('v_fmac') : rd += R(0)
            if op.startswith('v_cndmask') and len(ops) == 3: rd.append(('vcc', 0))
        elif op.startswith('s_load') or op.startswith('s_memtime') or op.startswith('s_memrealtime'):
            kind = 'smem'; wr = R(0); rd = allr(1)
        elif op in ('s_waitcnt',):
            kind = 'wait'
        elif op == 's_barrier':
            kind = 'bar'
        elif op == 's_nop':
            kind = 'nop'
        elif op.startswith('s_cbranch') or op == 's_branch' or op == 's_endpgm':
            kind = 'br'
        elif op.startswith('s_cmp') or op.startswith('s_bitcmp'):
            kind = 'salu'; rd = allr(0); wr = [('scc', 0)]
        elif op.startswith('s_'):
            kind = 'salu'; wr = R(0); rd = allr(1)
        else:
            raise ValueError('unknown op ' + text)
        self.kind, self.rd, self.wr = kind, rd, wr

class Prog:
    def __init__(self):
        self.ins = []
    def e(self, text, tok=None):
        for line in text.strip().split('\n'):
            line = line.strip()
            if line: self.ins.append(I(line, tok))
        return self.ins[-1]
    def add(self, lst):
        for x in lst:
            if isinstance(x, str): self.e(x)
            elif isinstance(x, I): self.ins.append(x)
            else: self.add(x)
    def wait_vm(self, tok):
        i = I('s_waitcnt vmcnt(0)'); i.note = ('vm', tok); self.ins.append(i)
    def wait_lgkm0(self):
        self.e('s_waitcnt lgkmcnt(0)')

    def finalize(self):
        out = self._waits(self.ins)
        out = self._hazards(out)
        return out

    def _waits(self, ins):
        VM = ('dma', 'vld', 'vst'); LG = ('dsr', 'dsw')
        out = []
        vm_issued = 0; vm_done = 0
        lg_issued = 0; lg_done = 0
        smem_pending = set(); smem_out = False
        pend_vm = {}; pend_lg = {}
        tokpos = {}
        def emit_wait(vm=None, lg=None):
            nonlocal vm_done, lg_done, smem_out
            parts = []
            if vm is not None:
                n = vm_issued - vm
                assert n >= 0
                if n > 63:
                    n = 63
                parts.append(f'vmcnt({n})'); vm_done = max(vm_done, vm_issued - n)
            if lg is not None:
                n = lg_issued - lg
                if smem_out: n = 0
                if n > 15: n = 15
                parts.append(f'lgkmcnt({n})'); lg_done = max(lg_done, lg_issued - n)
                if n == 0:
                    smem_out = False; smem_pending.clear()
            out.append(I('s_waitcnt ' + ' '.join(parts)))
        for x in ins:
            if x.kind == 'label' or x.kind == 'br':
                out.append(x); continue
            if x.kind == 'wait':
                if x.note and x.note[0] == 'vm':
                    tok = x.note[1]
                    assert tok in tokpos, tok
                    need = tokpos[tok] + 1
                    if need > vm_done: emit_wait(vm=need)
                    continue
                m = re.search(r'vmcnt\((\d+)\)', x.t)
                if m: vm_done = max(vm_done, vm_issued - int(m.group(1)))
                m = re.search(r'lgkmcnt\((\d+)\)', x.t)
                if m:
                    n = int(m.group(1))
                    if n == 0:
                        lg_done = lg_issued; smem_out = False; smem_pending.clear()
                    elif not smem_out:
                        lg_done = max(lg_done, lg_issued - n)
                out.append(x); continue
            touched = x.rd + x.wr
            nv = max([pend_vm[r] + 1 for r in touched if r in pend_vm and pend_vm[r] + 1 > vm_done], default=None)
            nl = max([pend_lg[r] + 1 for r in touched if r in pend_lg and pend_lg[r] + 1 > lg_done], default=None)
            if any(r in smem_pending for r in touched):
                nl = lg_issued; smem_out = True
            if nv is not None or nl is not None:
                emit_wait(vm=nv, lg=nl)
            out.append(x)
            if x.kind in VM:
                if x.kind == 'vld':
                    for r in x.wr: pend_vm[r] = vm_issued
                if x.tok is not None: tokpos[x.tok] = vm_issued
                vm_issued += 1
            elif x.kind in LG:
                if x.kind == 'dsr':
                    for r in x.wr: pend_lg[r] = lg_issued
                lg_issued += 1
            elif x.kind == 'smem':
                smem_out = True
                for r in x.wr: smem_pending.add(r)
        return out

    def _hazards(self, ins):
        out = []
        hist = []
        def need_for(x):
            need = 0
            rd = set(x.rd); wr = set(x.wr)
            vrd = {r for r in rd if r[0] in 'va'}; vwr = {r for r in wr if r[0] in 'va'}
            for (p, d) in hist:
                pw = set(p.wr); pr = set(p.rd)
                req = 0
                valu_p = p.kind in ('valu', 'trans', 'perm', 'rfl')
                valu_x = x.kind in ('valu', 'trans', 'perm', 'rfl')
                if valu_p and x.kind == 'mfma' and (pw & vrd): req = max(req, 2)
                if p.kind == 'mfma':
                    D = pw
                    if x.kind == 'mfma':
                        ops = split_ops(x.t.split(';')[0].split(None, 1)[1])
                        ab = set(regs_of(ops[1]) + regs_of(ops[2])); c = set(regs_of(ops[3]))
                        if D & ab: req = max(req, 12)
                        if (D & c) and D != c: req = max(req, 10)
                        if (D & set(x.wr)) and D != set(x.wr): req = max(req, 12)
                    elif valu_x or x.kind in ('dsr', 'dsw', 'vld', 'vst', 'dma'):
                        if D & (vrd | vwr): req = max(req, 12)
                    if valu_x:
                        ops = split_ops(p.t.split(';')[0].split(None, 1)[1])
                        c = set(regs_of(ops[3]))
                        if c & vwr: req = max(req, 7)
                if p.kind == 'trans' and valu_x and x.kind != 'trans' and (pw & vrd): req = max(req, 1)
                if p.kind == 'trans' and x.kind == 'trans' and (pw & vrd): req = max(req, 1)
                if valu_p and x.kind == 'perm' and (pw & vrd): req = max(req, 2)
                if valu_p and x.kind == 'rfl' and (pw & vrd): req = max(req, 1)
                sw = {r for r in pw if r[0] in ('s', 'vcc')}
                if valu_p and sw:
                    if valu_x and (sw & rd): req = max(req, 2)
                    if x.kind in ('dma', 'vld', 'vst') and (sw & rd): req = max(req, 5)
                    if x.kind in ('salu', 'smem') and (sw & rd): req = max(req, 4)
                if p.kind == 'salu' and ('m0', 0) in pw and x.kind == 'dma': req = max(req, 1)
                if p.kind == 'vst' and valu_x and (pr & vwr): req = max(req, 2)
                if p.kind == 'dsw' and valu_x and (pr & vwr): req = max(req, 1)
                need = max(need, req - d)
            return need
        for x in ins:
            if x.kind == 'label':
                out.append(x); continue
            n = need_for(x)
            while n > 0:
                k = min(n, 16)
                out.append(I(f's_nop {k-1}'))
                for h in hist: h[1] += k
                n -= k
            out.append(x)
            inc = 1
            if x.kind == 'nop': inc = int(x.t.split()[1]) + 1
            for h in hist: h[1] += inc
            hist.append([x, 0])
            hist = [h for h in hist if h[1] < 20]
        return out

def render(ins):
    return '\n'.join((x.t if x.kind == 'label' else '    ' + x.t) for x in ins) + '\n'
```

```python
import sys, argparse
from ir import *

NAME = 'concat_heads__gqa_block_cached__gqa_block_cached__near_ridge_kernel'
SLOT = 24576
EXB = 147456
LDS_BYTES = 163840

sW = 's4'
SRD_X, SRD_WQ, SRD_K, SRD_V, SRD_WO, SRD_P, SRD_OUT, SRD_DBG, SRD_CODE = 36, 40, 44, 48, 52, 56, 60, 64, 68
def srd(b): return f's[{b}:{b+3}]'
sM0a, sM0b, sM0k = 's72', 's73', 's74'
sT = ['s75', 's76', 's77', 's78']
sKb = ['s79', 's80']
sIdle, sPst, sPld, sFlag = 's81', 's82', 's83', 's84'
sBr, sSlot, sH, sRg, sR64, sCt, sX4 = 's34', 's35', 's85', 's86', 's87', 's88', 's89'
sCnt = 's90'
STAMP0 = 92

def QA(beta, t): return 64*beta + 16*t
def SS(beta): return 128 + 16*beta
def OT(g): return 160 + 16*g
TMP = 192
vBx = [[208, 209], [210, 211]]
vAw = [212, 213, 214, 215]
vX = [216, 217]; vWq = [218, 219, 220, 221]; vKd = [222, 223, 224, 225]
vKr = [[226, 227], [228, 229]]
vAv = [230, 231]; vBo = [232, 233]
vV = [234, 235]; vO = [236, 237, 238, 239]
vP, vOut, vExW, vExR1, vExR2, vDummy, vFlag, vOne = 240, 241, 242, 243, 244, 245, 246, 247
vt = list(range(248, 256))
def VW(hp, g): return 32*hp + 16*g
def VWB(jj, hp, g): return 64 + 32*(jj & 1) + 16*hp + 8*g
def FA(f, t): return 24*f + 4*t
def FB(f, b): return 24*f + 16 + 4*b
def KF(beta, t, u): return 48 + 32*beta + 8*t + 4*u
def PF(jj, hp, u): return 112 + 16*jj + 8*hp + 4*u

def vr(b, n=1): return f'v{b}' if n == 1 else f'v[{b}:{b+n-1}]'
def ar(b, n=1): return f'a{b}' if n == 1 else f'a[{b}:{b+n-1}]'

def interleave(mf, fill, first=0, maxper=None):
    out = []
    n = len(mf)
    if n == 0: return list(fill)
    k = len(fill)
    idx = 0
    for g in range(n):
        out.append(mf[g])
        if g < first: continue
        rem_g = n - g
        take = -(-(k - idx) // rem_g) if maxper is None else min(maxper, k - idx)
        for _ in range(take):
            out.append(fill[idx]); idx += 1
    out += fill[idx:]
    return out

class Gen:
    def __init__(self, a):
        self.a = a
        self.p = Prog()
        self.nstamp = 0

    def stamp(self):
        if not self.a.stamps: return []
        k = self.nstamp; self.nstamp += 1
        return [('stamp', k)]

    def dma_item(self, i):
        slot = (i % 6) * SLOT
        ta, tb = sT[(i & 1)*2], sT[(i & 1)*2 + 1]
        f = []
        if self.a.nodma and i >= 6: return [[] for _ in range(6)]
        if i < 14:
            c = i
            f.append([f's_add_u32 m0, {sM0a}, {slot}', f's_mov_b32 {ta}, {64*c}',
                      I(f'buffer_load_dwordx4 v{vX[0]}, {srd(SRD_X)}, {ta} offen lds', ('it', i))])
            f.append([I(f'buffer_load_dwordx4 v{vX[1]}, {srd(SRD_X)}, {ta} offen offset:1024 lds', ('it', i))])
            f.append([f's_add_u32 m0, {sM0b}, {slot}', f's_mov_b32 {tb}, {262144*c}',
                      I(f'buffer_load_dwordx4 v{vWq[0]}, {srd(SRD_WQ)}, {tb} offen lds', ('it', i))])
            for k in range(1, 4):
                f.append([I(f'buffer_load_dwordx4 v{vWq[k]}, {srd(SRD_WQ)}, {tb} offen offset:{1024*k} lds', ('it', i))])
        else:
            n = i - 14; jj, cc = n >> 3, n & 7
            f.append([f's_add_u32 m0, {sM0a}, {slot}', f's_mov_b32 {ta}, {jj*16384 + cc*64}',
                      I(f'buffer_load_dwordx4 v{vV[0]}, {srd(SRD_V)}, {ta} offen lds', ('it', i))])
            f.append([I(f'buffer_load_dwordx4 v{vV[1]}, {srd(SRD_V)}, {ta} offen offset:1024 lds', ('it', i))])
            f.append([f's_add_u32 m0, {sM0b}, {slot}', f's_mov_b32 {tb}, {jj*458752 + cc*28672}',
                      I(f'buffer_load_dwordx4 v{vO[0]}, {srd(SRD_WO)}, {tb} offen lds', ('it', i))])
            for k in range(1, 4):
                f.append([I(f'buffer_load_dwordx4 v{vO[k]}, {srd(SRD_WO)}, {tb} offen offset:{1024*k} lds', ('it', i))])
        return f

    def dma_k(self, a):
        beta, dq = a >> 1, a & 1
        f = [[f's_mov_b32 m0, {sM0k}', f's_add_u32 s91, {sKb[beta]}, {dq*128}',
              I(f'buffer_load_dwordx4 v{vKd[0]}, {srd(SRD_K)}, s91 offen lds', ('k', a))]]
        for k in range(1, 4):
            f.append([I(f'buffer_load_dwordx4 v{vKd[k]}, {srd(SRD_K)}, s91 offen offset:{1024*k} lds', ('k', a))])
        return f

    def read_k(self, a):
        beta, dq = a >> 1, a & 1
        return [f'ds_read_b128 {ar(KF(beta, 2*dq+tp, u), 4)}, v{vKr[tp][u]}' for tp in range(2) for u in range(2)]

    def reads_g(self, c, s, f):
        so = (c % 6 & 1) * SLOT
        r = []
        def rdA(t):
            return [f'ds_read_b64_tr_b16 {ar(FA(f,t)+2*m, 2)}, v{vAw[t]} offset:{so + s*8192 + m*2048}' for m in range(2)]
        def rdB(b):
            return [f'ds_read_b128 {ar(FB(f,b), 4)}, v{vBx[b][s]} offset:{so}']
        r += rdB(1) + rdA(0) + rdA(1) + rdA(2) + rdA(3) + rdB(0)
        if self.a.noreads and c > 0: return []
        return r

    def mf_g(self, c, s, f):
        m = []
        for beta in (1, 0):
            for t in range(4):
                d = vr(QA(beta, t), 16)
                cin = '0' if (c == 0 and s == 0) else d
                m.append(f'v_mfma_f32_32x32x16_bf16 {d}, {ar(FA(f,t),4)}, {ar(FB(f,beta),4)}, {cin}')
        return m

    def reads_w(self, n, s, f):
        i = 14 + n
        so = (i % 6 & 1) * SLOT
        r = [f'ds_read_b128 {ar(FB(f,0),4)}, v{vAv[s]} offset:{so}']
        for hp in range(2):
            for g in range(2):
                r += [f'ds_read_b64_tr_b16 {ar(FA(f,2*hp+g)+2*m, 2)}, v{vBo[g]} offset:{so + hp*4096 + s*2048 + m*512}' for m in range(2)]
        if self.a.noreads: return []
        return r

    def mf_w(self, n, s, f):
        m = []
        for hp in range(2):
            for g in range(2):
                d = vr(VW(hp, g), 16)
                cin = '0' if ((n & 7) == 0 and s == 0) else d
                m.append(f'v_mfma_f32_32x32x16_bf16 {d}, {ar(FB(f,0),4)}, {ar(FA(f,2*hp+g),4)}, {cin}')
        return m

    def roll(self, regs, i):
        pair_prev, pair = ((i-1) % 6) >> 1, (i % 6) >> 1
        d = (pair - pair_prev) * 2 * SLOT
        if d == 0: return []
        if d > 0: return [f'v_add_u32 v{r}, {d}, v{r}' for r in regs]
        return [f'v_subrev_u32 v{r}, {-d}, v{r}' for r in regs]

    def top(self, i):
        p = self.p
        if self.a.stamps:
            p.e(f's_memtime s[92:93]')
        if not (self.a.nodma and i >= 6): p.wait_vm(('it', i))
        p.wait_lgkm0()
        if self.a.stamps:
            k = self.nstamp; self.nstamp += 1
            p.e(f'v_writelane_b32 v255, s92, {k}') if k < 64 else None
        if not self.a.nobar: p.e('s_barrier')

    def cvt_tile(self, src, dst):
        return [f'v_cvt_pk_bf16_f32 v{dst+k}, v{src+2*k}, v{src+2*k+1}' for k in range(8)]

    def prologue(self):
        p = self.p; a = self.a
        p.e('s_cmp_ge_u32 s2, 256')
        p.e('s_cbranch_scc1 L_end')
        p.e('s_load_dwordx16 s[8:23], s[0:1], 0')
        p.e('s_load_dwordx4 s[24:27], s[0:1], 64')
        p.e('s_load_dwordx4 s[28:31], s[0:1], 80')
        p.e('s_load_dwordx2 s[32:33], s[0:1], 96')
        if a.stamps:
            p.e('v_mov_b32 v255, 0')
            p.e('s_memtime s[94:95]')
        p.e(f'''
        v_lshrrev_b32 v1, 6, v0
        v_and_b32 v2, 63, v0
        s_and_b32 {sX4}, s2, 3
        s_bfe_u32 {sBr}, s2, 0x10002
        s_lshr_b32 {sSlot}, s2, 3
        v_readfirstlane_b32 {sW}, v1
        s_and_b32 s3, {sSlot}, 3
        s_lshl_b32 {sH}, {sX4}, 2
        s_add_u32 {sH}, {sH}, s3
        s_lshr_b32 {sRg}, {sSlot}, 2
        ''')
        p.e('''
        v_lshrrev_b32 v3, 2, v2
        v_and_b32 v4, 3, v2
        v_lshrrev_b32 v5, 4, v2
        v_lshrrev_b32 v7, 5, v2
        v_and_b32 v8, 31, v2
        v_lshrrev_b32 v9, 3, v2
        v_and_b32 v10, 7, v2
        ''')
        p.e(f'''
        v_xor_b32 v11, v4, v5
        v_lshlrev_b32 v11, 4, v11
        s_lshl_b32 s3, {sW}, 5
        v_add_u32 v12, s3, v3
        v_mul_u32_u24 v12, 896, v12
        v_add_u32 v{vX[0]}, v11, v12
        v_add_u32 v{vX[1]}, {16*896-1024}, v{vX[0]}
        ''')
        p.e(f's_lshl_b32 s3, {sW}, 3')
        for i in range(4):
            p.e(f'''
            v_add_u32 v12, {2*i}, v7
            v_and_b32 v13, 3, v12
            v_lshlrev_b32 v13, 2, v13
            v_xor_b32 v13, v8, v13
            v_lshlrev_b32 v13, 4, v13
            v_add_u32 v12, s3, v12
            v_lshl_add_u32 v12, v12, 13, v13
            v_subrev_u32 v{vWq[i]}, {1024*i}, v12
            ''') if i else p.e(f'''
            v_and_b32 v13, 3, v7
            v_lshlrev_b32 v13, 2, v13
            v_xor_b32 v13, v8, v13
            v_lshlrev_b32 v13, 4, v13
            v_add_u32 v12, s3, v7
            v_lshl_add_u32 v{vWq[0]}, v12, 13, v13
            ''')
        p.e(f'''
        s_lshl_b32 {sM0a}, {sW}, 11
        s_lshl_b32 {sM0b}, {sW}, 12
        s_add_u32 {sM0k}, {sM0b}, {EXB}
        s_add_u32 {sM0b}, {sM0b}, 8192
        ''')
        p.wait_lgkm0()
        p.e(f's_cmp_eq_u32 {sBr}, 0')
        for (dst, pa, pb) in ((SRD_X, 8, 18), (SRD_WQ, 14, 24), (SRD_K, 10, 20), (SRD_V, 12, 22), (SRD_WO, 16, 26)):
            p.e(f's_cselect_b32 s{dst}, s{pa}, s{pb}')
            p.e(f's_cselect_b32 s{dst+1}, s{pa+1}, s{pb+1}')
        p.e(f'''
        s_mul_i32 s3, {sRg}, 114688
        s_add_u32 s{SRD_X}, s{SRD_X}, s3
        s_addc_u32 s{SRD_X+1}, s{SRD_X+1}, 0
        s_sub_u32 s{SRD_X+2}, 917504, s3
        s_mov_b32 s{SRD_X+3}, 0x20000
        s_lshl_b32 s3, {sH}, 9
        s_add_u32 s{SRD_WQ}, s{SRD_WQ}, s3
        s_addc_u32 s{SRD_WQ+1}, s{SRD_WQ+1}, 0
        s_sub_u32 s{SRD_WQ+2}, 3670016, s3
        s_mov_b32 s{SRD_WQ+3}, 0x20000
        ''')
        for i in range(6):
            for g in self.dma_item(i): p.add(g)
        if a.codepf:
            p.e(f'''
            s_getpc_b64 s[{SRD_CODE}:{SRD_CODE+1}]
            s_mov_b32 s{SRD_CODE+2}, {a.codepf}
            s_mov_b32 s{SRD_CODE+3}, 0x20000
            s_lshl_b32 s3, {sSlot}, 2
            s_add_u32 s3, s3, {sW}
            s_lshl_b32 s3, s3, 1
            v_add_u32 v12, s3, v7
            v_lshlrev_b32 v12, 7, v12
            buffer_load_dword v{vDummy}, v12, {srd(SRD_CODE)}, 0 offen
            ''')
        p.e(f'''
        s_lshl_b32 s3, {sRg}, 5
        s_lshr_b32 s5, {sH}, 1
        s_add_u32 s3, s3, s5
        s_lshl_b32 s3, s3, 14
        s_add_u32 s{SRD_K}, s{SRD_K}, s3
        s_addc_u32 s{SRD_K+1}, s{SRD_K+1}, 0
        s_sub_u32 s{SRD_K+2}, 4194304, s3
        s_mov_b32 s{SRD_K+3}, 0x20000
        s_and_b32 s5, {sW}, 1
        s_lshr_b32 s6, {sW}, 1
        ''')
        p.e(f'''
        s_lshl_b32 s3, s6, 1
        s_add_u32 s7, s3, s5
        s_lshl_b32 {sKb[0]}, s7, 17
        s_xor_b32 s7, s7, 1
        s_lshl_b32 {sKb[1]}, s7, 17
        s_lshl_b32 s3, s5, 8
        v_lshl_add_u32 v12, v9, 9, s3
        v_xor_b32 v13, v10, v5
        v_lshl_add_u32 v{vKd[0]}, v13, 4, v12
        v_xor_b32 v13, 4, v13
        v_lshl_add_u32 v14, v13, 4, v12
        v_add_u32 v{vKd[1]}, {8*512-1024}, v14
        v_add_u32 v{vKd[2]}, {16*512-2048}, v{vKd[0]}
        v_add_u32 v{vKd[3]}, {24*512-3072}, v14
        ''')
        for g in self.dma_k(0): p.add(g)
        p.e(f'''
        v_lshrrev_b32 v12, 2, v8
        v_and_b32 v12, 3, v12
        v_xor_b32 v12, v12, v7
        v_lshlrev_b32 v12, 4, v12
        v_lshl_add_u32 v12, v8, 6, v12
        s_lshl_b32 s3, s6, 12
        s_lshl_b32 s7, s5, 11
        s_add_u32 s7, s7, s3
        v_add_u32 v{vBx[0][0]}, s7, v12
        s_xor_b32 s7, s7, 2048
        v_add_u32 v{vBx[1][0]}, s7, v12
        v_xor_b32 v{vBx[0][1]}, 32, v{vBx[0][0]}
        v_xor_b32 v{vBx[1][1]}, 32, v{vBx[1][0]}
        ''')
        p.e(f'''
        s_add_u32 s3, {sM0a}, {2*SLOT}
        v_add_u32 v{vAv[0]}, s3, v12
        v_xor_b32 v{vAv[1]}, 32, v{vAv[0]}
        ''')
        p.e('''
        v_lshrrev_b32 v13, 2, v2
        v_and_b32 v13, 3, v13
        v_and_b32 v14, 1, v5
        v_and_b32 v15, 1, v2
        v_lshl_add_u32 v15, v14, 1, v15
        v_lshrrev_b32 v16, 1, v2
        v_and_b32 v16, 1, v16
        v_lshlrev_b32 v16, 3, v16
        v_lshl_add_u32 v16, v15, 4, v16
        v_lshl_add_u32 v17, v7, 3, v13
        ''')
        p.e(f'''
        s_lshl_b32 s3, s5, 8
        s_add_u32 s3, s3, 8192
        v_lshl_add_u32 v18, v17, 9, v16
        v_add_u32 v18, s3, v18
        ''')
        for t in range(4):
            p.e(f'''
            v_xor_b32 v19, {t}, v13
            v_lshl_add_u32 v{vAw[t]}, v19, 6, v18
            ''')
        p.e(f'''
        s_lshl_b32 s3, s6, 13
        s_add_u32 s3, s3, {2*SLOT + 8192}
        v_lshl_add_u32 v18, v17, 7, v16
        v_add_u32 v18, s3, v18
        v_lshrrev_b32 v19, 1, v13
        v_xor_b32 v19, s6, v19
        v_lshl_add_u32 v{vBo[0]}, v19, 6, v18
        v_xor_b32 v{vBo[1]}, 64, v{vBo[0]}
        ''')
        p.e(f'''
        v_lshrrev_b32 v12, 1, v8
        v_and_b32 v12, 7, v12
        v_xor_b32 v12, v12, v7
        v_lshlrev_b32 v12, 4, v12
        v_lshl_add_u32 v12, v8, 7, v12
        v_add_u32 v{vKr[0][0]}, {sM0k}, v12
        v_xor_b32 v{vKr[0][1]}, 32, v{vKr[0][0]}
        v_xor_b32 v{vKr[1][0]}, 64, v{vKr[0][0]}
        v_xor_b32 v{vKr[1][1]}, 96, v{vKr[0][0]}
        ''')
        p.e(f'''
        s_and_b32 s3, {sX4}, 1
        s_lshr_b32 s7, {sX4}, 1
        s_cmp_lt_u32 {sSlot}, 24
        s_cbranch_scc1 L_t1
        s_sub_u32 {sR64}, {sSlot}, 24
        s_lshl_b32 s3, s3, 2
        s_add_u32 {sR64}, {sR64}, s3
        s_mov_b32 {sCt}, 3
        s_branch L_t2
        L_t1:
        s_and_b32 {sR64}, {sSlot}, 7
        s_lshr_b32 {sCt}, {sSlot}, 3
        s_lshl_b32 s3, s3, 2
        s_add_u32 {sCt}, {sCt}, s3
        L_t2:
        s_and_b32 {sR64}, {sR64}, 7
        s_lshl_b32 s7, s7, 3
        s_add_u32 {sR64}, {sR64}, s7
        s_cmp_ge_u32 {sSlot}, 28
        s_cselect_b32 {sIdle}, 1, 0
        ''')
        p.e(f'''
        s_lshl_b32 s3, {sR64}, 18
        s_add_u32 s{SRD_V}, s{SRD_V}, s3
        s_addc_u32 s{SRD_V+1}, s{SRD_V+1}, 0
        s_sub_u32 s{SRD_V+2}, 4194304, s3
        s_mov_b32 s{SRD_V+3}, 0x20000
        s_lshl_b32 s3, {sCt}, 7
        s_add_u32 s{SRD_WO}, s{SRD_WO}, s3
        s_addc_u32 s{SRD_WO+1}, s{SRD_WO+1}, 0
        s_sub_u32 s{SRD_WO+2}, 3670016, s3
        s_mov_b32 s{SRD_WO+3}, 0x20000
        s_cmp_eq_u32 {sIdle}, 1
        s_cselect_b32 s{SRD_V+2}, 0, s{SRD_V+2}
        s_cselect_b32 s{SRD_WO+2}, 0, s{SRD_WO+2}
        ''')
        p.e(f'''
        s_lshl_b32 s3, s5, 17
        s_lshl_b32 s7, s6, 16
        s_add_u32 s3, s3, s7
        v_lshl_add_u32 v12, v3, 9, v11
        v_add_u32 v{vV[0]}, s3, v12
        v_add_u32 v{vV[1]}, {16*512-1024}, v{vV[0]}
        ''')
        p.e(f'''
        s_lshl_b32 s3, s6, 3
        s_add_u32 s3, s3, s5
        s_lshl_b32 s3, s3, 8
        v_add_u32 v12, s3, v9
        v_mul_u32_u24 v12, 896, v12
        v_lshlrev_b32 v13, 2, v14
        v_xor_b32 v13, v10, v13
        v_lshl_add_u32 v{vO[0]}, v13, 4, v12
        v_add_u32 v{vO[1]}, {7168-1024}, v{vO[0]}
        v_add_u32 v{vO[2]}, {2*(7168-1024)}, v{vO[0]}
        v_add_u32 v{vO[3]}, {3*(7168-1024)}, v{vO[0]}
        ''')
        p.e(f'''
        s_lshl_b32 s3, {sBr}, 20
        s_add_u32 s{SRD_P}, s32, s3
        s_addc_u32 s{SRD_P+1}, s33, 0
        s_mov_b32 s{SRD_P+2}, 0x100000
        s_mov_b32 s{SRD_P+3}, 0x20000
        s_lshl_b32 s3, {sRg}, 2
        s_add_u32 s3, s3, {sW}
        s_lshl_b32 s3, s3, 4
        s_add_u32 s3, s3, {sH}
        s_lshl_b32 {sPst}, s3, 11
        s_lshl_b32 s3, {sR64}, 1
        s_add_u32 s3, s3, s5
        s_lshl_b32 s3, s3, 1
        s_add_u32 s3, s3, s6
        s_lshl_b32 {sPld}, s3, 14
        v_lshlrev_b32 v{vP}, 4, v2
        ''')
        p.e(f'''
        s_mul_i32 s3, {sR64}, {64*1792}
        s_mul_i32 s7, {sBr}, 896
        s_add_u32 s3, s3, s7
        s_lshl_b32 s7, {sCt}, 7
        s_add_u32 s3, s3, s7
        s_add_u32 s{SRD_OUT}, s28, s3
        s_addc_u32 s{SRD_OUT+1}, s29, 0
        s_sub_u32 s{SRD_OUT+2}, {1024*1792}, s3
        s_mov_b32 s{SRD_OUT+3}, 0x20000
        s_lshl_b32 s3, s5, 5
        v_add_u32 v12, s3, v8
        v_mul_u32_u24 v12, 1792, v12
        s_lshl_b32 s3, s6, 6
        v_lshl_add_u32 v13, v7, 4, s3
        v_add_u32 v{vOut}, v12, v13
        ''')
        p.e(f'''
        v_add_u32 v{vExW}, {sM0k}, v{vP}
        v_xor_b32 v{vExR1}, 4096, v{vExW}
        v_xor_b32 v{vExR2}, 8192, v{vExW}
        ''')
        p.e(f'''
        s_mov_b32 s{SRD_DBG}, s30
        s_mov_b32 s{SRD_DBG+1}, s31
        s_mov_b32 s{SRD_DBG+2}, 256
        s_mov_b32 s{SRD_DBG+3}, 0x20000
        s_lshl_b32 s3, {sBr}, 3
        s_lshr_b32 s7, {sR64}, 1
        s_add_u32 s7, s7, s3
        s_lshl_b32 {sFlag}, s7, 4
        s_add_u32 s3, s3, {sRg}
        s_lshl_b32 s3, s3, 4
        v_mov_b32 v{vFlag+0}, s3
        v_mov_b32 v{vOne}, 1
        v_mov_b32 v{vt[0]}, 0
        ''')

    def body(self):
        p = self.p; a = self.a
        greg = [vBx[0][0], vBx[0][1], vBx[1][0], vBx[1][1]] + vAw
        wreg = vAv + vBo
        KISSUE = {2: 1, 6: 2, 10: 3}
        KREAD = {1: 0, 5: 1, 9: 2, 13: 3}
        for c in range(14):
            self.top(c)
            fillA = list(self.reads_g(c, 0, 0))
            dm = self.dma_item(c + 5) if c >= 1 else []
            kiss = self.dma_k(KISSUE[c]) if c in KISSUE else []
            segA_m = self.mf_g(c - 1, 1, 1) if c > 0 else []
            p.add(interleave(segA_m, fillA + kiss + dm[:2], maxper=3 if c > 0 else None))
            fillB = list(self.reads_g(c, 1, 1))
            tail = dm[2:]
            if c in KREAD:
                w = I('s_waitcnt vmcnt(0)'); w.note = ('vm', ('k', KREAD[c]))
                tail = tail + [w] + self.read_k(KREAD[c])
            rl = self.roll(greg, c + 1) if (c + 1) % 2 == 0 and c + 1 < 14 else []
            p.add(interleave(self.mf_g(c, 0, 0), fillB + tail + rl, maxper=None))
        self.top(14)
        last = self.mf_g(13, 1, 1)
        rd0 = self.reads_w(0, 0, 0)
        dm = self.dma_item(19)
        seq = []
        seq += [last[0]] + rd0[:3] + [last[1]] + rd0[3:6] + [last[2]] + rd0[6:] + [last[3]] + dm[:2]
        for t in range(4):
            seq += [last[4 + t]] + self.cvt_tile(QA(1, t), QA(1, t))
        qk = {}
        for beta in (1, 0):
            qk[beta] = []
            for t in range(4):
                for u in range(2):
                    d = vr(SS(beta), 16)
                    cin = '0' if (t == 0 and u == 0) else d
                    qk[beta].append(f'v_mfma_f32_32x32x16_bf16 {d}, {ar(KF(beta,t,u),4)}, {vr(QA(beta,t)+4*u,4)}, {cin}')
        cv0 = [x for t in range(4) for x in self.cvt_tile(QA(0, t), QA(0, t))]
        seq += interleave(qk[1], dm[2:] + cv0, maxper=5)
        swr = [f'ds_write_b128 v{vExW}, {vr(SS(1)+4*k,4)} offset:{1024*k}' for k in range(4)]
        seq += qk[0][:4] + swr + qk[0][4:]
        p.add(seq)
        p.add(interleave(self.mf_w(0, 0, 0), self.reads_w(0, 1, 1)))
        for n in range(1, 32):
            i = 14 + n; jj, cc = n >> 3, n & 7
            self.top(i)
            pre = []
            if n == a.sig:
                pre += [f's_cmp_lg_u32 {sW}, 0', 's_cbranch_scc1 L_nosig', 's_mov_b64 exec, 1',
                        I(f'buffer_atomic_add v{vOne}, v{vFlag}, {srd(SRD_DBG)}, 0 offen'),
                        's_mov_b64 exec, -1', 'L_nosig:']
                p.add(pre[:2]);
                p.ins.append(I(pre[2])); x = pre[3]; x.kind = 'salu_fake'; p.ins.append(x); p.add(pre[4:])
                p.e(f's_cmp_eq_u32 {sIdle}, 1')
                p.e('s_cbranch_scc1 L_end')
            if (i % 2) == 0: p.add(self.roll(wreg, i))
            rd0 = self.reads_w(n, 0, 0)
            dm = self.dma_item(i + 5) if i + 5 <= 45 else []
            segA = self.mf_w(n - 1, 1, 1)
            extraA, extraB, premf = [], [], []
            if n == 1:
                part = [f'ds_read_b128 {vr(TMP+4*k,4)}, v{vExR1} offset:{1024*k}' for k in range(4)]
                p.add(interleave(segA, part + rd0))
                p.add(self.softmax())
                st = [I(f'buffer_store_dwordx4 {vr(SS(0)+4*u,4)}, v{vP}, {srd(SRD_P)}, {sPst} offen offset:{1024*u} sc1', ('pst', 0)) for u in range(2)]
                p.add(st)
                p.add(interleave(self.mf_w(n, 0, 0), self.reads_w(n, 1, 1) + dm))
                continue
            if n == a.flagld:
                extraA.append(I(f'buffer_load_dword v{vFlag}, v{vt[0]}, {srd(SRD_DBG)}, {sFlag} offen sc1', ('flag', 0)))
            if n == a.flagck:
                premf += [f'v_readfirstlane_b32 s3, v{vFlag}', 's_cmp_eq_u32 s3, 16', 's_cbranch_scc0 L_slow', 'L_back:']
            pl = []
            if n == a.flagck:
                pl = self.pload(0) + self.pload(1)
            if n == a.flagck + 1:
                pl = self.pload(2) + self.pload(3)
            p.add(premf)
            if cc == 0:
                pj = jj - 1
                seq = [segA[0]] + rd0[:3] + [segA[1]] + rd0[3:6] + [segA[2]] + rd0[6:] + [segA[3]] + extraA + pl + dm[:3]
                nb = self.mf_w(n, 0, 0)
                k = 0
                for hp in range(2):
                    for g in range(2):
                        seq += self.cvt_tile(VW(hp, g), VWB(pj, hp, g)) + [nb[k]]; k += 1
                p.add(seq)
                p.add(self.reads_w(n, 1, 1) + dm[3:])
            else:
                ex = []
                for (st, pj) in a.pv:
                    if n == st: ex += self.pvw(pj)
                p.add(interleave(segA, rd0 + extraA + pl + dm[:3]))
                p.add(interleave(self.mf_w(n, 0, 0) + ex, self.reads_w(n, 1, 1) + dm[3:]))
        segA = self.mf_w(31, 1, 1)
        p.add(segA)
        order = [(0, 1), (1, 1), (0, 0), (1, 0)]
        cv = {k: self.cvt_tile(VW(*k), VWB(3, *k)) for k in order}
        pv = self.pvw(3, order='g1first')
        p.add(cv[(0, 1)] + cv[(1, 1)])
        p.add(interleave(pv[:4], cv[(0, 0)] + cv[(1, 0)]))
        p.add(pv[4:6])
        p.add([f'ds_write_b128 v{vExW}, {vr(OT(1)+4*k,4)} offset:{1024*k}' for k in range(4)])
        p.add(pv[6:])
        p.wait_lgkm0()
        p.e('s_barrier')
        p.add([f'ds_read_b128 {vr(TMP+4*k,4)}, v{vExR2} offset:{1024*k}' for k in range(4)])
        p.add([f'v_add_f32 v{OT(0)+k}, v{OT(0)+k}, v{TMP+k}' for k in range(16)])
        p.add(self.cvt_tile(OT(0), OT(0)))
        for u in range(2):
            p.e(f'buffer_store_dwordx4 {vr(OT(0)+4*u,4)}, v{vOut}, {srd(SRD_OUT)}, 0 offen offset:{32*u}')

    def pload(self, jj):
        out = [f's_add_u32 s91, {sPld}, {jj*4096}']
        for hp in range(2):
            for u in range(2):
                out.append(I(f'buffer_load_dwordx4 {ar(PF(jj,hp,u),4)}, v{vP}, {srd(SRD_P)}, s91 offen offset:{hp*2048 + u*1024} sc1'))
        return out

    def pvw(self, jj, order=None):
        m = []
        gs = (1, 0) if order == 'g1first' else None
        first = (jj == 0)
        if gs:
            for g in gs:
                for hp in range(2):
                    for u in range(2):
                        d = vr(OT(g), 16)
                        m.append(f'v_mfma_f32_32x32x16_bf16 {d}, {vr(VWB(jj,hp,g)+4*u,4)}, {ar(PF(jj,hp,u),4)}, {d}')
            return m
        for hp in range(2):
            for u in range(2):
                for g in range(2):
                    d = vr(OT(g), 16)
                    cin = '0' if (first and hp == 0 and u == 0) else d
                    m.append(f'v_mfma_f32_32x32x16_bf16 {d}, {vr(VWB(jj,hp,g)+4*u,4)}, {ar(PF(jj,hp,u),4)}, {cin}')
        return m

    def softmax(self):
        S = SS(0); t0, t1, t2 = vt[1], vt[2], vt[3]
        o = []
        o += [f'v_add_f32 v{S+k}, v{S+k}, v{TMP+k}' for k in range(16)]
        o.append(f'v_max3_f32 v{t0}, v{S}, v{S+1}, v{S+2}')
        for k in range(3, 15, 2):
            o.append(f'v_max3_f32 v{t0}, v{t0}, v{S+k}, v{S+k+1}')
        o.append(f'v_max_f32 v{t0}, v{t0}, v{S+15}')
        o += [f'v_mov_b32 v{t1}, v{t0}', f'v_permlane32_swap_b32 v{t0}, v{t1}', f'v_max_f32 v{t0}, v{t0}, v{t1}',
              's_mov_b32 s3, 0x3db8aa3b',
              f'v_mul_f32 v{t0}, s3, v{t0}']
        for k in range(16):
            o.append(f'v_fma_f32 v{S+k}, v{S+k}, s3, -v{t0}')
        for k in range(16):
            o.append(f'v_exp_f32 v{S+k}, v{S+k}')
        o.append(f'v_add_f32 v{t1}, v{S}, v{S+1}')
        o.append(f'v_add_f32 v{t2}, v{S+2}, v{S+3}')
        for k in range(4, 16, 2):
            o.append(f'v_add_f32 v{t1}, v{t1}, v{S+k}')
            o.append(f'v_add_f32 v{t2}, v{t2}, v{S+k+1}')
        o += [f'v_add_f32 v{t1}, v{t1}, v{t2}', f'v_mov_b32 v{t2}, v{t1}', f'v_permlane32_swap_b32 v{t1}, v{t2}',
              f'v_add_f32 v{t1}, v{t1}, v{t2}', f'v_rcp_f32 v{t1}, v{t1}']
        for k in range(16):
            o.append(f'v_mul_f32 v{S+k}, v{S+k}, v{t1}')
        o += self.cvt_tile(S, S)
        return o

    def slowpath(self):
        return f'''
L_slow:
    s_mov_b32 {sCnt}, 0
L_spin:
    buffer_load_dword v{vFlag}, v{vt[0]}, {srd(SRD_DBG)}, {sFlag} offen sc1
    s_waitcnt vmcnt(0)
    v_readfirstlane_b32 s3, v{vFlag}
    s_add_u32 {sCnt}, {sCnt}, 1
    s_nop 3
    s_cmp_eq_u32 s3, 16
    s_cbranch_scc1 L_back
    s_cmp_lt_u32 {sCnt}, 0x40000
    s_cbranch_scc1 L_spin
    s_branch L_back
'''

    def stamps_out(self):
        if not self.a.stamps: return ''
        return f'''
    s_memtime s[92:93]
    s_waitcnt lgkmcnt(0)
    v_writelane_b32 v255, s92, 62
    v_writelane_b32 v255, s94, 63
    s_lshl_b32 s3, s2, 2
    s_add_u32 s3, s3, {sW}
    s_lshl_b32 s3, s3, 8
    s_add_u32 s3, s3, 0x400000
    s_add_u32 s96, s32, s3
    s_addc_u32 s97, s33, 0
    s_mov_b32 s98, 256
    s_mov_b32 s99, 0x20000
    v_mbcnt_lo_u32_b32 v254, -1, 0
    v_mbcnt_hi_u32_b32 v254, -1, v254
    v_lshlrev_b32 v254, 2, v254
    buffer_store_dword v255, v254, s[96:99], 0 offen
'''

    def build(self):
        self.prologue()
        self.body()
        ins = self.p.finalize()
        txt = render(ins)
        s = ''
        s += open(self.a.header).read()
        s += f'; @launch grid=(256,1,1) block=(256,1,1) lds={LDS_BYTES}\n'
        s += '.amdgcn_target "amdgcn-amd-amdhsa--gfx950"\n.text\n'
        s += f'.globl {NAME}\n.p2align 8\n.type {NAME},@function\n{NAME}:\n'
        s += txt
        s += 'L_fin:\n' + self.stamps_out() + '    s_endpgm\n'
        s += self.slowpath()
        s += 'L_end:\n'
        if self.a.stamps: s += '    s_cmp_ge_u32 s2, 256\n    s_cbranch_scc0 L_fin\n'
        s += '    s_endpgm\n'
        s += f'''.section .rodata,"a"
.p2align 6
.amdhsa_kernel {NAME}
  .amdhsa_next_free_vgpr 432
  .amdhsa_next_free_sgpr 102
  .amdhsa_accum_offset 256
  .amdhsa_group_segment_fixed_size 0
  .amdhsa_kernarg_size 104
  .amdhsa_user_sgpr_count 2
  .amdhsa_user_sgpr_kernarg_segment_ptr 1
  .amdhsa_system_sgpr_workgroup_id_x 1
.end_amdhsa_kernel
'''
        return s, ins

def main():
    ap = argparse.ArgumentParser()
    ap.add_argument('-o', default='concat_heads__gqa_block_cached__gqa_block_cached__near_ridge.s')
    ap.add_argument('--header', default='header.txt')
    ap.add_argument('--stamps', action='store_true')
    ap.add_argument('--codepf', type=int, default=32768)
    ap.add_argument('--sig', type=int, default=6)
    ap.add_argument('--flagld', type=int, default=9)
    ap.add_argument('--flagck', type=int, default=14)
    ap.add_argument('--nodma', action='store_true')
    ap.add_argument('--nobar', action='store_true')
    ap.add_argument('--noreads', action='store_true')
    a = ap.parse_args()
    a.pv = [(19, 0), (20, 1), (26, 2)]
    g = Gen(a)
    s, ins = g.build()
    open(a.o, 'w').write(s)
    from collections import Counter
    print(Counter(x.kind for x in ins), file=sys.stderr)

if __name__ == '__main__':
    main()
```

```python
import sys, argparse
from ir import *

NAME = 'concat_heads__gqa_block_cached__gqa_block_cached__near_ridge_kernel'
SLOT = 24576
EXB = 147456
LDS_BYTES = 163840

sW = 's4'
SRD_X, SRD_WQ, SRD_K, SRD_V, SRD_WO, SRD_P, SRD_OUT, SRD_DBG, SRD_CODE = 36, 40, 44, 48, 52, 56, 60, 64, 68
def srd(b): return f's[{b}:{b+3}]'
sM0a, sM0b, sM0k = 's72', 's73', 's74'
sT = ['s75', 's76', 's77', 's78']
sKb = ['s79', 's80']
sIdle, sPst, sPld, sFlag = 's81', 's82', 's83', 's84'
sBr, sSlot, sH, sRg, sR64, sCt, sX4 = 's34', 's35', 's85', 's86', 's87', 's88', 's89'
sCnt = 's90'
STAMP0 = 92

def QA(beta, t): return 64*beta + 16*t
def SS(beta): return 128 + 16*beta
def OT(g): return 160 + 16*g
TMP = 192
vBx = [[208, 209], [210, 211]]
vAw = [212, 213, 214, 215]
vX = [216, 217]; vWq = [218, 219, 220, 221]; vKd = [222, 223, 224, 225]
vKr = [[226, 227], [228, 229]]
vAv = [230, 231]; vBo = [232, 233]
vV = [234, 235]; vO = [236, 237, 238, 239]
vP, vOut, vExW, vExR1, vExR2, vDummy, vFlag, vOne = 240, 241, 242, 243, 244, 245, 246, 247
vt = list(range(248, 256))
def VW(hp, g): return 32*hp + 16*g
def VWB(jj, hp, g): return 64 + 32*(jj & 1) + 16*hp + 8*g
def FA(f, t): return 24*f + 4*t
def FB(f, b): return 24*f + 16 + 4*b
def KF(beta, t, u): return 48 + 32*beta + 8*t + 4*u
def PF(jj, hp, u): return 112 + 16*jj + 8*hp + 4*u

def vr(b, n=1): return f'v{b}' if n == 1 else f'v[{b}:{b+n-1}]'
def ar(b, n=1): return f'a{b}' if n == 1 else f'a[{b}:{b+n-1}]'

def interleave(mf, fill, first=0, maxper=None):
    out = []
    n = len(mf)
    if n == 0: return list(fill)
    k = len(fill)
    idx = 0
    for g in range(n):
        out.append(mf[g])
        if g < first: continue
        rem_g = n - g
        take = -(-(k - idx) // rem_g) if maxper is None else min(maxper, k - idx)
        for _ in range(take):
            out.append(fill[idx]); idx += 1
    out += fill[idx:]
    return out

class Gen:
    def __init__(self, a):
        self.a = a
        self.p = Prog()
        self.nstamp = 0

    def stamp(self):
        if not self.a.stamps: return []
        k = self.nstamp; self.nstamp += 1
        return [('stamp', k)]

    def dma_item(self, i):
        slot = (i % 6) * SLOT
        ta, tb = sT[(i & 1)*2], sT[(i & 1)*2 + 1]
        f = []
        if i < 14:
            c = i
            f.append([f's_add_u32 m0, {sM0a}, {slot}', f's_mov_b32 {ta}, {64*c}',
                      I(f'buffer_load_dwordx4 v{vX[0]}, {srd(SRD_X)}, {ta} offen lds', ('it', i))])
            f.append([I(f'buffer_load_dwordx4 v{vX[1]}, {srd(SRD_X)}, {ta} offen offset:1024 lds', ('it', i))])
            f.append([f's_add_u32 m0, {sM0b}, {slot}', f's_mov_b32 {tb}, {262144*c}',
                      I(f'buffer_load_dwordx4 v{vWq[0]}, {srd(SRD_WQ)}, {tb} offen lds', ('it', i))])
            for k in range(1, 4):
                f.append([I(f'buffer_load_dwordx4 v{vWq[k]}, {srd(SRD_WQ)}, {tb} offen offset:{1024*k} lds', ('it', i))])
        else:
            n = i - 14; jj, cc = n >> 3, n & 7
            f.append([f's_add_u32 m0, {sM0a}, {slot}', f's_mov_b32 {ta}, {jj*16384 + cc*64}',
                      I(f'buffer_load_dwordx4 v{vV[0]}, {srd(SRD_V)}, {ta} offen lds', ('it', i))])
            f.append([I(f'buffer_load_dwordx4 v{vV[1]}, {srd(SRD_V)}, {ta} offen offset:1024 lds', ('it', i))])
            f.append([f's_add_u32 m0, {sM0b}, {slot}', f's_mov_b32 {tb}, {jj*458752 + cc*28672}',
                      I(f'buffer_load_dwordx4 v{vO[0]}, {srd(SRD_WO)}, {tb} offen lds', ('it', i))])
            for k in range(1, 4):
                f.append([I(f'buffer_load_dwordx4 v{vO[k]}, {srd(SRD_WO)}, {tb} offen offset:{1024*k} lds', ('it', i))])
        return f

    def dma_k(self, a):
        beta, dq = a >> 1, a & 1
        f = [[f's_mov_b32 m0, {sM0k}', f's_add_u32 s91, {sKb[beta]}, {dq*128}',
              I(f'buffer_load_dwordx4 v{vKd[0]}, {srd(SRD_K)}, s91 offen lds', ('k', a))]]
        for k in range(1, 4):
            f.append([I(f'buffer_load_dwordx4 v{vKd[k]}, {srd(SRD_K)}, s91 offen offset:{1024*k} lds', ('k', a))])
        return f

    def read_k(self, a):
        beta, dq = a >> 1, a & 1
        return [f'ds_read_b128 {ar(KF(beta, 2*dq+tp, u), 4)}, v{vKr[tp][u]}' for tp in range(2) for u in range(2)]

    def reads_g(self, c, s, f):
        so = (c % 6 & 1) * SLOT
        r = []
        def rdA(t):
            return [f'ds_read_b64_tr_b16 {ar(FA(f,t)+2*m, 2)}, v{vAw[t]} offset:{so + s*8192 + m*2048}' for m in range(2)]
        def rdB(b):
            return [f'ds_read_b128 {ar(FB(f,b), 4)}, v{vBx[b][s]} offset:{so}']
        r += rdB(1) + rdA(0) + rdA(1) + rdA(2) + rdA(3) + rdB(0)
        return r

    def mf_g(self, c, s, f):
        m = []
        for beta in (1, 0):
            for t in range(4):
                d = vr(QA(beta, t), 16)
                cin = '0' if (c == 0 and s == 0) else d
                m.append(f'v_mfma_f32_32x32x16_bf16 {d}, {ar(FA(f,t),4)}, {ar(FB(f,beta),4)}, {cin}')
        return m

    def reads_w(self, n, s, f):
        i = 14 + n
        so = (i % 6 & 1) * SLOT
        r = [f'ds_read_b128 {ar(FB(f,0),4)}, v{vAv[s]} offset:{so}']
        for hp in range(2):
            for g in range(2):
                r += [f'ds_read_b64_tr_b16 {ar(FA(f,2*hp+g)+2*m, 2)}, v{vBo[g]} offset:{so + hp*4096 + s*2048 + m*512}' for m in range(2)]
        return r

    def mf_w(self, n, s, f):
        m = []
        for hp in range(2):
            for g in range(2):
                d = vr(VW(hp, g), 16)
                cin = '0' if ((n & 7) == 0 and s == 0) else d
                m.append(f'v_mfma_f32_32x32x16_bf16 {d}, {ar(FB(f,0),4)}, {ar(FA(f,2*hp+g),4)}, {cin}')
        return m

    def roll(self, regs, i):
        pair_prev, pair = ((i-1) % 6) >> 1, (i % 6) >> 1
        d = (pair - pair_prev) * 2 * SLOT
        if d == 0: return []
        if d > 0: return [f'v_add_u32 v{r}, {d}, v{r}' for r in regs]
        return [f'v_subrev_u32 v{r}, {-d}, v{r}' for r in regs]

    def top(self, i):
        p = self.p
        if self.a.stamps:
            p.e(f's_memtime s[92:93]')
        p.wait_vm(('it', i))
        p.wait_lgkm0()
        if self.a.stamps:
            k = self.nstamp; self.nstamp += 1
            p.e(f'v_writelane_b32 v255, s92, {k}') if k < 64 else None
        p.e('s_barrier')

    def cvt_tile(self, src, dst):
        return [f'v_cvt_pk_bf16_f32 v{dst+k}, v{src+2*k}, v{src+2*k+1}' for k in range(8)]

    def prologue(self):
        p = self.p; a = self.a
        p.e('s_cmp_ge_u32 s2, 256')
        p.e('s_cbranch_scc1 L_end')
        p.e('s_load_dwordx16 s[8:23], s[0:1], 0')
        p.e('s_load_dwordx4 s[24:27], s[0:1], 64')
        p.e('s_load_dwordx4 s[28:31], s[0:1], 80')
        p.e('s_load_dwordx2 s[32:33], s[0:1], 96')
        if a.stamps:
            p.e('v_mov_b32 v255, 0')
            p.e('s_memtime s[94:95]')
        p.e(f'''
        v_lshrrev_b32 v1, 6, v0
        v_and_b32 v2, 63, v0
        s_and_b32 {sX4}, s2, 3
        s_bfe_u32 {sBr}, s2, 0x10002
        s_lshr_b32 {sSlot}, s2, 3
        v_readfirstlane_b32 {sW}, v1
        s_and_b32 s3, {sSlot}, 3
        s_lshl_b32 {sH}, {sX4}, 2
        s_add_u32 {sH}, {sH}, s3
        s_lshr_b32 {sRg}, {sSlot}, 2
        ''')
        p.e('''
        v_lshrrev_b32 v3, 2, v2
        v_and_b32 v4, 3, v2
        v_lshrrev_b32 v5, 4, v2
        v_lshrrev_b32 v7, 5, v2
        v_and_b32 v8, 31, v2
        v_lshrrev_b32 v9, 3, v2
        v_and_b32 v10, 7, v2
        ''')
        p.e(f'''
        v_xor_b32 v11, v4, v5
        v_lshlrev_b32 v11, 4, v11
        s_lshl_b32 s3, {sW}, 5
        v_add_u32 v12, s3, v3
        v_mul_u32_u24 v12, 896, v12
        v_add_u32 v{vX[0]}, v11, v12
        v_add_u32 v{vX[1]}, {16*896-1024}, v{vX[0]}
        ''')
        p.e(f's_lshl_b32 s3, {sW}, 3')
        for i in range(4):
            p.e(f'''
            v_add_u32 v12, {2*i}, v7
            v_and_b32 v13, 3, v12
            v_lshlrev_b32 v13, 2, v13
            v_xor_b32 v13, v8, v13
            v_lshlrev_b32 v13, 4, v13
            v_add_u32 v12, s3, v12
            v_lshl_add_u32 v12, v12, 13, v13
            v_subrev_u32 v{vWq[i]}, {1024*i}, v12
            ''') if i else p.e(f'''
            v_and_b32 v13, 3, v7
            v_lshlrev_b32 v13, 2, v13
            v_xor_b32 v13, v8, v13
            v_lshlrev_b32 v13, 4, v13
            v_add_u32 v12, s3, v7
            v_lshl_add_u32 v{vWq[0]}, v12, 13, v13
            ''')
        p.e(f'''
        s_lshl_b32 {sM0a}, {sW}, 11
        s_lshl_b32 {sM0b}, {sW}, 12
        s_add_u32 {sM0k}, {sM0b}, {EXB}
        s_add_u32 {sM0b}, {sM0b}, 8192
        ''')
        p.wait_lgkm0()
        p.e(f's_cmp_eq_u32 {sBr}, 0')
        for (dst, pa, pb) in ((SRD_X, 8, 18), (SRD_WQ, 14, 24), (SRD_K, 10, 20), (SRD_V, 12, 22), (SRD_WO, 16, 26)):
            p.e(f's_cselect_b32 s{dst}, s{pa}, s{pb}')
            p.e(f's_cselect_b32 s{dst+1}, s{pa+1}, s{pb+1}')
        p.e(f'''
        s_mul_i32 s3, {sRg}, 114688
        s_add_u32 s{SRD_X}, s{SRD_X}, s3
        s_addc_u32 s{SRD_X+1}, s{SRD_X+1}, 0
        s_sub_u32 s{SRD_X+2}, 917504, s3
        s_mov_b32 s{SRD_X+3}, 0x20000
        s_lshl_b32 s3, {sH}, 9
        s_add_u32 s{SRD_WQ}, s{SRD_WQ}, s3
        s_addc_u32 s{SRD_WQ+1}, s{SRD_WQ+1}, 0
        s_sub_u32 s{SRD_WQ+2}, 3670016, s3
        s_mov_b32 s{SRD_WQ+3}, 0x20000
        ''')
        for i in range(6):
            for g in self.dma_item(i): p.add(g)
        if a.codepf:
            p.e(f'''
            s_getpc_b64 s[{SRD_CODE}:{SRD_CODE+1}]
            s_mov_b32 s{SRD_CODE+2}, {a.codepf}
            s_mov_b32 s{SRD_CODE+3}, 0x20000
            s_lshl_b32 s3, {sSlot}, 2
            s_add_u32 s3, s3, {sW}
            s_lshl_b32 s3, s3, 1
            v_add_u32 v12, s3, v7
            v_lshlrev_b32 v12, 7, v12
            buffer_load_dword v{vDummy}, v12, {srd(SRD_CODE)}, 0 offen
            ''')
        p.e(f'''
        s_lshl_b32 s3, {sRg}, 5
        s_lshr_b32 s5, {sH}, 1
        s_add_u32 s3, s3, s5
        s_lshl_b32 s3, s3, 14
        s_add_u32 s{SRD_K}, s{SRD_K}, s3
        s_addc_u32 s{SRD_K+1}, s{SRD_K+1}, 0
        s_sub_u32 s{SRD_K+2}, 4194304, s3
        s_mov_b32 s{SRD_K+3}, 0x20000
        s_and_b32 s5, {sW}, 1
        s_lshr_b32 s6, {sW}, 1
        ''')
        p.e(f'''
        s_lshl_b32 s3, s6, 1
        s_add_u32 s7, s3, s5
        s_lshl_b32 {sKb[0]}, s7, 17
        s_xor_b32 s7, s7, 1
        s_lshl_b32 {sKb[1]}, s7, 17
        s_lshl_b32 s3, s5, 8
        v_lshl_add_u32 v12, v9, 9, s3
        v_xor_b32 v13, v10, v5
        v_lshl_add_u32 v{vKd[0]}, v13, 4, v12
        v_xor_b32 v13, 4, v13
        v_lshl_add_u32 v14, v13, 4, v12
        v_add_u32 v{vKd[1]}, {8*512-1024}, v14
        v_add_u32 v{vKd[2]}, {16*512-2048}, v{vKd[0]}
        v_add_u32 v{vKd[3]}, {24*512-3072}, v14
        ''')
        for g in self.dma_k(0): p.add(g)
        p.e(f'''
        v_lshrrev_b32 v12, 2, v8
        v_and_b32 v12, 3, v12
        v_xor_b32 v12, v12, v7
        v_lshlrev_b32 v12, 4, v12
        v_lshl_add_u32 v12, v8, 6, v12
        s_lshl_b32 s3, s6, 12
        s_lshl_b32 s7, s5, 11
        s_add_u32 s7, s7, s3
        v_add_u32 v{vBx[0][0]}, s7, v12
        s_xor_b32 s7, s7, 2048
        v_add_u32 v{vBx[1][0]}, s7, v12
        v_xor_b32 v{vBx[0][1]}, 32, v{vBx[0][0]}
        v_xor_b32 v{vBx[1][1]}, 32, v{vBx[1][0]}
        ''')
        p.e(f'''
        s_add_u32 s3, {sM0a}, {2*SLOT}
        v_add_u32 v{vAv[0]}, s3, v12
        v_xor_b32 v{vAv[1]}, 32, v{vAv[0]}
        ''')
        p.e('''
        v_lshrrev_b32 v13, 2, v2
        v_and_b32 v13, 3, v13
        v_and_b32 v14, 1, v5
        v_and_b32 v15, 1, v2
        v_lshl_add_u32 v15, v14, 1, v15
        v_lshrrev_b32 v16, 1, v2
        v_and_b32 v16, 1, v16
        v_lshlrev_b32 v16, 3, v16
        v_lshl_add_u32 v16, v15, 4, v16
        v_lshl_add_u32 v17, v7, 3, v13
        ''')
        p.e(f'''
        s_lshl_b32 s3, s5, 8
        s_add_u32 s3, s3, 8192
        v_lshl_add_u32 v18, v17, 9, v16
        v_add_u32 v18, s3, v18
        ''')
        for t in range(4):
            p.e(f'''
            v_xor_b32 v19, {t}, v13
            v_lshl_add_u32 v{vAw[t]}, v19, 6, v18
            ''')
        p.e(f'''
        s_lshl_b32 s3, s6, 13
        s_add_u32 s3, s3, {2*SLOT + 8192}
        v_lshl_add_u32 v18, v17, 7, v16
        v_add_u32 v18, s3, v18
        v_lshrrev_b32 v19, 1, v13
        v_xor_b32 v19, s6, v19
        v_lshl_add_u32 v{vBo[0]}, v19, 6, v18
        v_xor_b32 v{vBo[1]}, 64, v{vBo[0]}
        ''')
        p.e(f'''
        v_lshrrev_b32 v12, 1, v8
        v_and_b32 v12, 7, v12
        v_xor_b32 v12, v12, v7
        v_lshlrev_b32 v12, 4, v12
        v_lshl_add_u32 v12, v8, 7, v12
        v_add_u32 v{vKr[0][0]}, {sM0k}, v12
        v_xor_b32 v{vKr[0][1]}, 32, v{vKr[0][0]}
        v_xor_b32 v{vKr[1][0]}, 64, v{vKr[0][0]}
        v_xor_b32 v{vKr[1][1]}, 96, v{vKr[0][0]}
        ''')
        p.e(f'''
        s_and_b32 s3, {sX4}, 1
        s_lshr_b32 s7, {sX4}, 1
        s_cmp_lt_u32 {sSlot}, 24
        s_cbranch_scc1 L_t1
        s_sub_u32 {sR64}, {sSlot}, 24
        s_lshl_b32 s3, s3, 2
        s_add_u32 {sR64}, {sR64}, s3
        s_mov_b32 {sCt}, 3
        s_branch L_t2
        L_t1:
        s_and_b32 {sR64}, {sSlot}, 7
        s_lshr_b32 {sCt}, {sSlot}, 3
        s_lshl_b32 s3, s3, 2
        s_add_u32 {sCt}, {sCt}, s3
        L_t2:
        s_and_b32 {sR64}, {sR64}, 7
        s_lshl_b32 s7, s7, 3
        s_add_u32 {sR64}, {sR64}, s7
        s_cmp_ge_u32 {sSlot}, 28
        s_cselect_b32 {sIdle}, 1, 0
        ''')
        p.e(f'''
        s_lshl_b32 s3, {sR64}, 18
        s_add_u32 s{SRD_V}, s{SRD_V}, s3
        s_addc_u32 s{SRD_V+1}, s{SRD_V+1}, 0
        s_sub_u32 s{SRD_V+2}, 4194304, s3
        s_mov_b32 s{SRD_V+3}, 0x20000
        s_lshl_b32 s3, {sCt}, 7
        s_add_u32 s{SRD_WO}, s{SRD_WO}, s3
        s_addc_u32 s{SRD_WO+1}, s{SRD_WO+1}, 0
        s_sub_u32 s{SRD_WO+2}, 3670016, s3
        s_mov_b32 s{SRD_WO+3}, 0x20000
        s_cmp_eq_u32 {sIdle}, 1
        s_cselect_b32 s{SRD_V+2}, 0, s{SRD_V+2}
        s_cselect_b32 s{SRD_WO+2}, 0, s{SRD_WO+2}
        ''')
        p.e(f'''
        s_lshl_b32 s3, s5, 17
        s_lshl_b32 s7, s6, 16
        s_add_u32 s3, s3, s7
        v_lshl_add_u32 v12, v3, 9, v11
        v_add_u32 v{vV[0]}, s3, v12
        v_add_u32 v{vV[1]}, {16*512-1024}, v{vV[0]}
        ''')
        p.e(f'''
        s_lshl_b32 s3, s6, 3
        s_add_u32 s3, s3, s5
        s_lshl_b32 s3, s3, 8
        v_add_u32 v12, s3, v9
        v_mul_u32_u24 v12, 896, v12
        v_lshlrev_b32 v13, 2, v14
        v_xor_b32 v13, v10, v13
        v_lshl_add_u32 v{vO[0]}, v13, 4, v12
        v_add_u32 v{vO[1]}, {7168-1024}, v{vO[0]}
        v_add_u32 v{vO[2]}, {2*(7168-1024)}, v{vO[0]}
        v_add_u32 v{vO[3]}, {3*(7168-1024)}, v{vO[0]}
        ''')
        p.e(f'''
        s_lshl_b32 s3, {sBr}, 20
        s_add_u32 s{SRD_P}, s32, s3
        s_addc_u32 s{SRD_P+1}, s33, 0
        s_mov_b32 s{SRD_P+2}, 0x100000
        s_mov_b32 s{SRD_P+3}, 0x20000
        s_lshl_b32 s3, {sRg}, 2
        s_add_u32 s3, s3, {sW}
        s_lshl_b32 s3, s3, 4
        s_add_u32 s3, s3, {sH}
        s_lshl_b32 {sPst}, s3, 11
        s_lshl_b32 s3, {sR64}, 1
        s_add_u32 s3, s3, s5
        s_lshl_b32 s3, s3, 1
        s_add_u32 s3, s3, s6
        s_lshl_b32 {sPld}, s3, 14
        v_lshlrev_b32 v{vP}, 4, v2
        ''')
        p.e(f'''
        s_mul_i32 s3, {sR64}, {64*1792}
        s_mul_i32 s7, {sBr}, 896
        s_add_u32 s3, s3, s7
        s_lshl_b32 s7, {sCt}, 7
        s_add_u32 s3, s3, s7
        s_add_u32 s{SRD_OUT}, s28, s3
        s_addc_u32 s{SRD_OUT+1}, s29, 0
        s_sub_u32 s{SRD_OUT+2}, {1024*1792}, s3
        s_mov_b32 s{SRD_OUT+3}, 0x20000
        s_lshl_b32 s3, s5, 5
        v_add_u32 v12, s3, v8
        v_mul_u32_u24 v12, 1792, v12
        s_lshl_b32 s3, s6, 6
        v_lshl_add_u32 v13, v7, 4, s3
        v_add_u32 v{vOut}, v12, v13
        ''')
        p.e(f'''
        v_add_u32 v{vExW}, {sM0k}, v{vP}
        v_xor_b32 v{vExR1}, 4096, v{vExW}
        v_xor_b32 v{vExR2}, 8192, v{vExW}
        ''')
        p.e(f'''
        s_mov_b32 s{SRD_DBG}, s30
        s_mov_b32 s{SRD_DBG+1}, s31
        s_mov_b32 s{SRD_DBG+2}, 256
        s_mov_b32 s{SRD_DBG+3}, 0x20000
        s_lshl_b32 s3, {sBr}, 3
        s_lshr_b32 s7, {sR64}, 1
        s_add_u32 s7, s7, s3
        s_lshl_b32 {sFlag}, s7, 4
        s_add_u32 s3, s3, {sRg}
        s_lshl_b32 s3, s3, 4
        v_mov_b32 v{vFlag+0}, s3
        v_mov_b32 v{vOne}, 1
        v_mov_b32 v{vt[0]}, 0
        ''')

    def body(self):
        p = self.p; a = self.a
        greg = [vBx[0][0], vBx[0][1], vBx[1][0], vBx[1][1]] + vAw
        wreg = vAv + vBo
        KISSUE = {2: 1, 6: 2, 10: 3}
        KREAD = {1: 0, 5: 1, 9: 2, 13: 3}
        for c in range(14):
            self.top(c)
            fillA = list(self.reads_g(c, 0, 0))
            dm = self.dma_item(c + 5) if c >= 1 else []
            kiss = self.dma_k(KISSUE[c]) if c in KISSUE else []
            segA_m = self.mf_g(c - 1, 1, 1) if c > 0 else []
            p.add(interleave(segA_m, fillA + kiss + dm[:2], maxper=3 if c > 0 else None))
            fillB = list(self.reads_g(c, 1, 1))
            tail = dm[2:]
            if c in KREAD:
                w = I('s_waitcnt vmcnt(0)'); w.note = ('vm', ('k', KREAD[c]))
                tail = tail + [w] + self.read_k(KREAD[c])
            rl = self.roll(greg, c + 1) if (c + 1) % 2 == 0 and c + 1 < 14 else []
            p.add(interleave(self.mf_g(c, 0, 0), fillB + tail + rl, maxper=None))
        self.top(14)
        last = self.mf_g(13, 1, 1)
        rd0 = self.reads_w(0, 0, 0)
        dm = self.dma_item(19)
        seq = []
        seq += [last[0]] + rd0[:3] + [last[1]] + rd0[3:6] + [last[2]] + rd0[6:] + [last[3]] + dm[:2]
        for t in range(4):
            seq += [last[4 + t]] + self.cvt_tile(QA(1, t), QA(1, t))
        qk = {}
        for beta in (1, 0):
            qk[beta] = []
            for t in range(4):
                for u in range(2):
                    d = vr(SS(beta), 16)
                    cin = '0' if (t == 0 and u == 0) else d
                    qk[beta].append(f'v_mfma_f32_32x32x16_bf16 {d}, {ar(KF(beta,t,u),4)}, {vr(QA(beta,t)+4*u,4)}, {cin}')
        cv0 = [x for t in range(4) for x in self.cvt_tile(QA(0, t), QA(0, t))]
        seq += interleave(qk[1], dm[2:] + cv0, maxper=5)
        swr = [f'ds_write_b128 v{vExW}, {vr(SS(1)+4*k,4)} offset:{1024*k}' for k in range(4)]
        seq += qk[0][:4] + swr + qk[0][4:]
        p.add(seq)
        p.add(interleave(self.mf_w(0, 0, 0), self.reads_w(0, 1, 1)))
        for n in range(1, 32):
            i = 14 + n; jj, cc = n >> 3, n & 7
            self.top(i)
            pre = []
            if n == a.sig:
                pre += [f's_cmp_lg_u32 {sW}, 0', 's_cbranch_scc1 L_nosig', 's_mov_b64 exec, 1',
                        I(f'buffer_atomic_add v{vOne}, v{vFlag}, {srd(SRD_DBG)}, 0 offen'),
                        's_mov_b64 exec, -1', 'L_nosig:']
                p.add(pre[:2]);
                p.ins.append(I(pre[2])); x = pre[3]; x.kind = 'salu_fake'; p.ins.append(x); p.add(pre[4:])
                p.e(f's_cmp_eq_u32 {sIdle}, 1')
                p.e('s_cbranch_scc1 L_end')
            if (i % 2) == 0: p.add(self.roll(wreg, i))
            rd0 = self.reads_w(n, 0, 0)
            dm = self.dma_item(i + 5) if i + 5 <= 45 else []
            segA = self.mf_w(n - 1, 1, 1)
            extraA, extraB, premf = [], [], []
            if n == 1:
                part = [f'ds_read_b128 {vr(TMP+4*k,4)}, v{vExR1} offset:{1024*k}' for k in range(4)]
                p.add(interleave(segA, part + rd0))
                p.add(self.softmax())
                st = [I(f'buffer_store_dwordx4 {vr(SS(0)+4*u,4)}, v{vP}, {srd(SRD_P)}, {sPst} offen offset:{1024*u} sc1', ('pst', 0)) for u in range(2)]
                p.add(st)
                p.add(interleave(self.mf_w(n, 0, 0), self.reads_w(n, 1, 1) + dm))
                continue
            if n == a.flagld:
                extraA.append(I(f'buffer_load_dword v{vFlag}, v{vt[0]}, {srd(SRD_DBG)}, {sFlag} offen sc1', ('flag', 0)))
            if n == a.flagck:
                premf += [f'v_readfirstlane_b32 s3, v{vFlag}', 's_cmp_eq_u32 s3, 16', 's_cbranch_scc0 L_slow', 'L_back:']
            pl = []
            if n == a.flagck:
                pl = self.pload(0) + self.pload(1)
            if n == a.flagck + 1:
                pl = self.pload(2) + self.pload(3)
            p.add(premf)
            if cc == 0:
                pj = jj - 1
                seq = [segA[0]] + rd0[:3] + [segA[1]] + rd0[3:6] + [segA[2]] + rd0[6:] + [segA[3]] + extraA + pl + dm[:3]
                nb = self.mf_w(n, 0, 0)
                k = 0
                for hp in range(2):
                    for g in range(2):
                        seq += self.cvt_tile(VW(hp, g), VWB(pj, hp, g)) + [nb[k]]; k += 1
                p.add(seq)
                p.add(self.reads_w(n, 1, 1) + dm[3:])
            else:
                ex = []
                for (st, pj) in a.pv:
                    if n == st: ex += self.pvw(pj)
                p.add(interleave(segA, rd0 + extraA + pl + dm[:3]))
                p.add(interleave(self.mf_w(n, 0, 0) + ex, self.reads_w(n, 1, 1) + dm[3:]))
        segA = self.mf_w(31, 1, 1)
        p.add(segA)
        order = [(0, 1), (1, 1), (0, 0), (1, 0)]
        cv = {k: self.cvt_tile(VW(*k), VWB(3, *k)) for k in order}
        pv = self.pvw(3, order='g1first')
        p.add(cv[(0, 1)] + cv[(1, 1)])
        p.add(interleave(pv[:4], cv[(0, 0)] + cv[(1, 0)]))
        p.add(pv[4:6])
        p.add([f'ds_write_b128 v{vExW}, {vr(OT(1)+4*k,4)} offset:{1024*k}' for k in range(4)])
        p.add(pv[6:])
        p.wait_lgkm0()
        p.e('s_barrier')
        p.add([f'ds_read_b128 {vr(TMP+4*k,4)}, v{vExR2} offset:{1024*k}' for k in range(4)])
        p.add([f'v_add_f32 v{OT(0)+k}, v{OT(0)+k}, v{TMP+k}' for k in range(16)])
        p.add(self.cvt_tile(OT(0), OT(0)))
        for u in range(2):
            p.e(f'buffer_store_dwordx4 {vr(OT(0)+4*u,4)}, v{vOut}, {srd(SRD_OUT)}, 0 offen offset:{32*u}')

    def pload(self, jj):
        out = [f's_add_u32 s91, {sPld}, {jj*4096}']
        for hp in range(2):
            for u in range(2):
                out.append(I(f'buffer_load_dwordx4 {ar(PF(jj,hp,u),4)}, v{vP}, {srd(SRD_P)}, s91 offen offset:{hp*2048 + u*1024} sc1'))
        return out

    def pvw(self, jj, order=None):
        m = []
        gs = (1, 0) if order == 'g1first' else None
        first = (jj == 0)
        if gs:
            for g in gs:
                for hp in range(2):
                    for u in range(2):
                        d = vr(OT(g), 16)
                        m.append(f'v_mfma_f32_32x32x16_bf16 {d}, {vr(VWB(jj,hp,g)+4*u,4)}, {ar(PF(jj,hp,u),4)}, {d}')
            return m
        for hp in range(2):
            for u in range(2):
                for g in range(2):
                    d = vr(OT(g), 16)
                    cin = '0' if (first and hp == 0 and u == 0) else d
                    m.append(f'v_mfma_f32_32x32x16_bf16 {d}, {vr(VWB(jj,hp,g)+4*u,4)}, {ar(PF(jj,hp,u),4)}, {cin}')
        return m

    def softmax(self):
        S = SS(0); t0, t1, t2 = vt[1], vt[2], vt[3]
        o = []
        o += [f'v_add_f32 v{S+k}, v{S+k}, v{TMP+k}' for k in range(16)]
        o.append(f'v_max3_f32 v{t0}, v{S}, v{S+1}, v{S+2}')
        for k in range(3, 15, 2):
            o.append(f'v_max3_f32 v{t0}, v{t0}, v{S+k}, v{S+k+1}')
        o.append(f'v_max_f32 v{t0}, v{t0}, v{S+15}')
        o += [f'v_mov_b32 v{t1}, v{t0}', f'v_permlane32_swap_b32 v{t0}, v{t1}', f'v_max_f32 v{t0}, v{t0}, v{t1}',
              's_mov_b32 s3, 0x3db8aa3b',
              f'v_mul_f32 v{t0}, s3, v{t0}']
        for k in range(16):
            o.append(f'v_fma_f32 v{S+k}, v{S+k}, s3, -v{t0}')
        for k in range(16):
            o.append(f'v_exp_f32 v{S+k}, v{S+k}')
        o.append(f'v_add_f32 v{t1}, v{S}, v{S+1}')
        o.append(f'v_add_f32 v{t2}, v{S+2}, v{S+3}')
        for k in range(4, 16, 2):
            o.append(f'v_add_f32 v{t1}, v{t1}, v{S+k}')
            o.append(f'v_add_f32 v{t2}, v{t2}, v{S+k+1}')
        o += [f'v_add_f32 v{t1}, v{t1}, v{t2}', f'v_mov_b32 v{t2}, v{t1}', f'v_permlane32_swap_b32 v{t1}, v{t2}',
              f'v_add_f32 v{t1}, v{t1}, v{t2}', f'v_rcp_f32 v{t1}, v{t1}']
        for k in range(16):
            o.append(f'v_mul_f32 v{S+k}, v{S+k}, v{t1}')
        o += self.cvt_tile(S, S)
        return o

    def slowpath(self):
        return f'''
L_slow:
    s_mov_b32 {sCnt}, 0
L_spin:
    buffer_load_dword v{vFlag}, v{vt[0]}, {srd(SRD_DBG)}, {sFlag} offen sc1
    s_waitcnt vmcnt(0)
    v_readfirstlane_b32 s3, v{vFlag}
    s_add_u32 {sCnt}, {sCnt}, 1
    s_nop 3
    s_cmp_eq_u32 s3, 16
    s_cbranch_scc1 L_back
    s_cmp_lt_u32 {sCnt}, 0x40000
    s_cbranch_scc1 L_spin
    s_branch L_back
'''

    def stamps_out(self):
        if not self.a.stamps: return ''
        return f'''
    s_memtime s[92:93]
    s_waitcnt lgkmcnt(0)
    v_writelane_b32 v255, s92, 62
    v_writelane_b32 v255, s94, 63
    s_lshl_b32 s3, s2, 2
    s_add_u32 s3, s3, {sW}
    s_lshl_b32 s3, s3, 8
    s_add_u32 s3, s3, 0x400000
    s_add_u32 s96, s32, s3
    s_addc_u32 s97, s33, 0
    s_mov_b32 s98, 256
    s_mov_b32 s99, 0x20000
    v_mbcnt_lo_u32_b32 v254, -1, 0
    v_mbcnt_hi_u32_b32 v254, -1, v254
    v_lshlrev_b32 v254, 2, v254
    buffer_store_dword v255, v254, s[96:99], 0 offen
'''

    def build(self):
        self.prologue()
        self.body()
        ins = self.p.finalize()
        txt = render(ins)
        s = ''
        s += open(self.a.header).read()
        s += f'; @launch grid=(256,1,1) block=(256,1,1) lds={LDS_BYTES}\n'
        s += '.amdgcn_target "amdgcn-amd-amdhsa--gfx950"\n.text\n'
        s += f'.globl {NAME}\n.p2align 8\n.type {NAME},@function\n{NAME}:\n'
        s += txt
        s += 'L_fin:\n' + self.stamps_out() + '    s_endpgm\n'
        s += self.slowpath()
        s += 'L_end:\n'
        if self.a.stamps: s += '    s_cmp_ge_u32 s2, 256\n    s_cbranch_scc0 L_fin\n'
        s += '    s_endpgm\n'
        s += f'''.section .rodata,"a"
.p2align 6
.amdhsa_kernel {NAME}
  .amdhsa_next_free_vgpr 432
  .amdhsa_next_free_sgpr 102
  .amdhsa_accum_offset 256
  .amdhsa_group_segment_fixed_size 0
  .amdhsa_kernarg_size 104
  .amdhsa_user_sgpr_count 2
  .amdhsa_user_sgpr_kernarg_segment_ptr 1
  .amdhsa_system_sgpr_workgroup_id_x 1
.end_amdhsa_kernel
'''
        return s, ins

def main():
    ap = argparse.ArgumentParser()
    ap.add_argument('-o', default='concat_heads__gqa_block_cached__gqa_block_cached__near_ridge.s')
    ap.add_argument('--header', default='header.txt')
    ap.add_argument('--stamps', action='store_true')
    ap.add_argument('--codepf', type=int, default=32768)
    ap.add_argument('--sig', type=int, default=6)
    ap.add_argument('--flagld', type=int, default=9)
    ap.add_argument('--flagck', type=int, default=14)
    a = ap.parse_args()
    a.pv = [(19, 0), (20, 1), (26, 2)]
    g = Gen(a)
    s, ins = g.build()
    open(a.o, 'w').write(s)
    from collections import Counter
    print(Counter(x.kind for x in ins), file=sys.stderr)

if __name__ == '__main__':
    main()
```

```python
import sys, argparse
from ir import *

NAME = 'concat_heads__gqa_block_cached__gqa_block_cached__near_ridge_kernel'
SA = 16384
BB = 98304
EXB = 147456
LDS_BYTES = 163840

sW = 's4'
SRD_X, SRD_WQ, SRD_K, SRD_V, SRD_WO, SRD_P, SRD_OUT, SRD_DBG, SRD_CODE = 36, 40, 44, 48, 52, 56, 60, 64, 68
def srd(b): return f's[{b}:{b+3}]'
sM0 = 's72'
sPA, sPB = 's73', 's74'
sTa, sTb = ['s75', 's76'], ['s77', 's78']
sKb = ['s79', 's80']
sIdle, sPst, sPld, sFlag = 's81', 's82', 's83', 's84'
sBr, sSlot, sH, sRg, sR64, sCt, sX4 = 's34', 's35', 's85', 's86', 's87', 's88', 's89'
sCnt = 's90'
sJ0, sC0 = 's5', 's6'
sJ0, sC0, sVb = 's96', 's97', 's98'
sDh, sBp = 's5', 's6'
sJA, sJB = 's99', 's100'

def QA(beta, t): return 64*beta + 16*t
def SS(beta): return 128 + 16*beta
def OT(g): return 160 + 16*g
TMP = 192
vBx = [[[160, 161], [162, 163]], [[164, 165], [166, 167]]]
vAw = [168, 169, 170, 171]
vX = [172, 173, 174, 175]; vWq = [176, 177, 178, 179]
vKr = [[180, 181], [182, 183]]
vKd = [208, 209, 210, 211]
vAv = [[212, 213], [214, 215]]
vBo = [216, 217]
vO = [218, 219, 220, 221]
vP, vOut, vExW, vExR1, vExR2, vDummy, vFlag, vOne = 222, 223, 224, 225, 226, 227, 228, 229
vt = list(range(230, 240))
def VW(hp, g): return 32*hp + 16*g
def VWB(jj, hp, g): return 64 + 32*(jj & 1) + 16*hp + 8*g
def FA(f, t): return 24*f + 4*t
def FB(f, b): return 24*f + 16 + 4*b
def KF(beta, t, u): return 48 + 32*beta + 8*t + 4*u
def PF(jj, hp, u): return 112 + 16*jj + 8*hp + 4*u
def vr(b, n=1): return f'v{b}' if n == 1 else f'v[{b}:{b+n-1}]'
def ar(b, n=1): return f'a{b}' if n == 1 else f'a[{b}:{b+n-1}]'

def spread(mf, early, even, late=(), per=3):
    n = len(mf)
    if n == 0: return list(early) + list(even) + list(late)
    gaps = [[] for _ in range(n)]
    idx = 0
    g = 0
    while idx < len(early):
        for _ in range(per):
            if idx < len(early): gaps[min(g, n-1)].append(early[idx]); idx += 1
        g += 1
    first = min(g, n-1) if len(even) <= n - g or g >= n else max(0, n - len(even))
    if g >= n: first = 0
    k = len(even); m = n - first
    for j, x in enumerate(even):
        gaps[first + min(m-1, int(j * m / k))].append(x)
    out = []
    for mm, gp in zip(mf, gaps):
        out.append(mm); out += gp
    return out + list(late)

class Gen:
    def __init__(self, a):
        self.a = a
        self.p = Prog()
        self.nstamp = 0
        self.pol = {k: (' nt' if k in a.nt else '') for k in 'xqkvo'}

    def dma_A(self, i):
        slot = (i % 6) * SA
        t = sTa[i & 1]
        if self.a.nodma and i >= 6: return []
        if i < 14:
            par = i & 1
            pre = [f's_lshl_b32 {t}, {sPA}, 19']
            if par: pre += [f's_add_u32 {t}, {t}, 262144'] + self.adv7(sPA)
            regs, sr, pol = vWq, SRD_WQ, self.pol['q']
        else:
            n = i - 14; tt, par = n >> 1, n & 1
            pre = []
            if n % 8 == 0:
                pre += [f's_add_u32 {sJA}, {sJ0}, {tt >> 2}', f's_and_b32 {sJA}, {sJA}, 3', f's_mul_i32 {sJA}, {sJA}, 458752']
            pre += [f's_add_u32 {t}, {sC0}, {tt & 3}', f's_and_b32 {t}, {t}, 3', f's_mul_i32 {t}, {t}, 57344', f's_add_u32 {t}, {t}, {sJA}']
            if par: pre += [f's_add_u32 {t}, {t}, 28672']
            regs, sr, pol = vO, SRD_WO, self.pol['o']
        f = [[f's_add_u32 m0, {sM0}, {slot}'] + pre]
        f[0].append(I(f'buffer_load_dwordx4 v{regs[0]}, {srd(sr)}, {t} offen{pol} lds', ('A', i)))
        for k in range(1, 4):
            f.append([I(f'buffer_load_dwordx4 v{regs[k]}, {srd(sr)}, {t} offen offset:{1024*k}{pol} lds', ('A', i))])
        return f

    def adv7(self, r):
        return [f's_add_u32 {r}, {r}, 1', f's_cmp_eq_u32 {r}, 7', f's_cselect_b32 {r}, 0, {r}']

    def dma_B(self, pi):
        slot = BB + (pi % 3) * SA
        t = sTb[pi & 1]
        if self.a.nodma and pi >= 3: return []
        if pi < 7:
            pre = [f's_lshl_b32 {t}, {sPB}, 7'] + self.adv7(sPB)
            regs, sr, pol = vX, SRD_X, self.pol['x']
        else:
            tt = pi - 7
            pre = []
            if tt % 4 == 0:
                pre += [f's_add_u32 {sJB}, {sJ0}, {tt >> 2}', f's_and_b32 {sJB}, {sJB}, 3', f's_lshl_b32 {sJB}, {sJB}, 14', f's_add_u32 {sJB}, {sJB}, {sVb}']
            pre += [f's_add_u32 {t}, {sC0}, {tt & 3}', f's_and_b32 {t}, {t}, 3', f's_lshl_b32 {t}, {t}, 7', f's_add_u32 {t}, {t}, {sJB}']
            regs, sr, pol = vKd, SRD_V, self.pol['v']
        g0 = [f's_add_u32 m0, {sM0}, {slot}'] + pre
        f = [g0 + [I(f'buffer_load_dwordx4 v{regs[0]}, {srd(sr)}, {t} offen{pol} lds', ('B', pi))]]
        for k in range(1, 4):
            pre2 = [f's_add_u32 m0, {sM0}, {slot}', 's_nop 0'] if k == 2 else []
            f.append(pre2 + [I(f'buffer_load_dwordx4 v{regs[k]}, {srd(sr)}, {t} offen offset:{1024*k}{pol} lds', ('B', pi))])
        return f

    def dma_k(self, a):
        beta, dq = a >> 1, a & 1
        pol = self.pol['k']
        f = [[f's_add_u32 m0, {sM0}, {EXB}', f's_add_u32 s91, {sKb[beta]}, {dq*128}',
              I(f'buffer_load_dwordx4 v{vKd[0]}, {srd(SRD_K)}, s91 offen{pol} lds', ('k', a))]]
        for k in range(1, 4):
            f.append([I(f'buffer_load_dwordx4 v{vKd[k]}, {srd(SRD_K)}, s91 offen offset:{1024*k}{pol} lds', ('k', a))])
        return f

    def read_k(self, a):
        beta, dq = a >> 1, a & 1
        return [f'ds_read_b128 {ar(KF(beta, 2*dq+tp, u), 4)}, v{vKr[tp][u]}' for tp in range(2) for u in range(2)]

    def reads_g(self, c, s, f):
        so = (c % 3) * SA
        bo = ((c >> 1) % 3) * SA
        par = c & 1
        rdA = lambda t: [f'ds_read_b64_tr_b16 {ar(FA(f,t)+2*m, 2)}, v{vAw[t]} offset:{so + s*8192 + m*2048}' for m in range(2)]
        rdB = lambda b: [f'ds_read_b128 {ar(FB(f,b), 4)}, v{vBx[b][par][s]} offset:{bo}']
        if self.a.noreads and c > 0: return []
        return rdB(1) + rdA(0) + rdA(1) + rdA(2) + rdA(3) + rdB(0)

    def mf_g(self, c, s, f):
        m = []
        for beta in (1, 0):
            for t in range(4):
                d = vr(QA(beta, t), 16)
                cin = '0' if (c == 0 and s == 0) else d
                m.append(f'v_mfma_f32_32x32x16_bf16 {d}, {ar(FA(f,t),4)}, {ar(FB(f,beta),4)}, {cin}')
        return m

    def reads_w(self, n, s, f):
        i = 14 + n
        so = (i % 3) * SA
        bo = ((i >> 1) % 3) * SA
        par = i & 1
        if self.a.noreads: return []
        r = [f'ds_read_b128 {ar(FB(f,0),4)}, v{vAv[par][s]} offset:{bo}']
        for hp in range(2):
            for g in range(2):
                r += [f'ds_read_b64_tr_b16 {ar(FA(f,2*hp+g)+2*m, 2)}, v{vBo[g]} offset:{so + hp*4096 + s*2048 + m*512}' for m in range(2)]
        return r

    def mf_w(self, n, s, f):
        m = []
        for hp in range(2):
            for g in range(2):
                d = vr(VW(hp, g), 16)
                cin = '0' if ((n & 7) == 0 and s == 0) else d
                m.append(f'v_mfma_f32_32x32x16_bf16 {d}, {ar(FB(f,0),4)}, {ar(FA(f,2*hp+g),4)}, {cin}')
        return m

    def roll(self, regs, i):
        if i % 3 != 0 or i == 0: return []
        if (i % 6) == 3: return [f'v_add_u32 v{r}, {3*SA}, v{r}' for r in regs]
        return [f'v_subrev_u32 v{r}, {3*SA}, v{r}' for r in regs]

    def top(self, i):
        p = self.p
        if self.a.stamps: p.e('s_memtime s[92:93]')
        if not (self.a.nodma and i >= 6):
            p.wait_vm(('A', i))
            if i % 2 == 0: p.wait_vm(('B', i >> 1))
        p.wait_lgkm0()
        if self.a.stamps:
            k = self.nstamp; self.nstamp += 1
            if k < 62: p.e(f'v_writelane_b32 v255, s92, {k}')
        if not self.a.nobar: p.e('s_barrier')

    def pstamp(self, lane):
        if not self.a.stamps: return []
        return ['s_memtime s[92:93]', 's_waitcnt lgkmcnt(0)', f'v_writelane_b32 v255, s92, {lane}']

    def cvt_tile(self, src, dst):
        return [f'v_cvt_pk_bf16_f32 v{dst+k}, v{src+2*k}, v{src+2*k+1}' for k in range(8)]

    def make_schedule(self):
        a = self.a
        sched = {s: [] for s in range(-1, 46)}
        A = {i: self.dma_A(i) for i in range(46)}
        B = {q: self.dma_B(q) for q in range(23)}
        order = []
        pro = [('B', 0), ('A', 0), ('A', 1)]
        for k, idx in pro: sched[-1] += (A if k == 'A' else B)[idx]
        nextA, nextB, halfB = 2, 1, 0
        for s in range(0, 46):
            budget = a.catch
            out = []
            while budget > 0:
                canA = nextA < 46 and (nextA < 6 or nextA - 6 < s) and nextA <= s + 5 and budget >= 4
                free = nextB < 23 and (nextB < 3 or 2*(nextB - 3) + 1 < s)
                canB = free and (nextB < 3 or halfB == 0 or s >= 2*nextB - 3) and budget >= 2
                dA = nextA if canA else 999
                dB = (2*nextB) if canB else 999
                if dA == 999 and dB == 999: break
                if dB <= dA:
                    g = B[nextB]
                    if g: out += g[2*halfB:2*halfB+2]
                    budget -= 2
                    halfB ^= 1
                    if halfB == 0: nextB += 1
                else:
                    out += A[nextA]; nextA += 1; budget -= 4
            sched[s] = out
        assert nextA == 46 and nextB == 23 and halfB == 0, (nextA, nextB, halfB)
        return sched

    def prologue(self, sched):
        p = self.p; a = self.a
        p.e('s_cmp_ge_u32 s2, 256')
        p.e('s_cbranch_scc1 L_end')
        p.e('s_load_dwordx16 s[8:23], s[0:1], 0')
        p.e('s_load_dwordx4 s[24:27], s[0:1], 64')
        p.e('s_load_dwordx4 s[28:31], s[0:1], 80')
        p.e('s_load_dwordx2 s[32:33], s[0:1], 96')
        if a.stamps:
            p.e('v_mov_b32 v255, 0')
            p.e('s_memtime s[94:95]')
        p.e(f'''
        v_lshrrev_b32 v1, 6, v0
        v_and_b32 v2, 63, v0
        s_and_b32 {sX4}, s2, 3
        s_bfe_u32 {sBr}, s2, 0x10002
        s_lshr_b32 {sSlot}, s2, 3
        v_readfirstlane_b32 {sW}, v1
        s_and_b32 s3, {sSlot}, 3
        s_lshl_b32 {sH}, {sX4}, 2
        s_add_u32 {sH}, {sH}, s3
        s_lshr_b32 {sRg}, {sSlot}, 2
        ''')
        if a.rot1 == 7:
            p.e(f'''
            s_lshl_b32 s3, s3, 1
            s_add_u32 s3, s3, {sRg}
            s_cmp_ge_u32 s3, 7
            s_cselect_b32 s7, 7, 0
            s_sub_u32 s3, s3, s7
            s_cmp_ge_u32 s3, 7
            s_cselect_b32 s7, 7, 0
            s_sub_u32 {sPA}, s3, s7
            s_mov_b32 {sPB}, {sPA}
            ''')
        elif a.rot1 in (2, 4):
            mul = {2: 3, 4: 2}[a.rot1]
            p.e(f'''
            s_add_u32 s3, s3, {sRg}
            s_and_b32 s3, s3, {a.rot1-1}
            s_mul_i32 {sPA}, s3, {mul}
            s_mov_b32 {sPB}, {sPA}
            ''')
        else:
            p.e(f's_mov_b32 {sPA}, 0\ns_mov_b32 {sPB}, 0')
        p.e('''
        v_lshrrev_b32 v5, 4, v2
        v_lshrrev_b32 v9, 3, v2
        v_and_b32 v10, 7, v2
        v_lshrrev_b32 v7, 5, v2
        v_and_b32 v8, 31, v2
        ''')
        p.e(f'''
        v_xor_b32 v11, v10, v5
        v_lshlrev_b32 v11, 4, v11
        v_xor_b32 v3, 64, v11
        s_lshl_b32 s3, {sW}, 5
        v_add_u32 v12, s3, v9
        v_mul_u32_u24 v12, 896, v12
        v_add_u32 v{vX[0]}, v11, v12
        v_add_u32 v13, v3, v12
        v_add_u32 v{vX[1]}, {8*896-1024}, v13
        v_add_u32 v{vX[2]}, {16*896-2048}, v{vX[0]}
        v_add_u32 v{vX[3]}, {24*896-3072}, v13
        ''')
        p.e(f'''
        s_lshl_b32 s3, {sW}, 3
        v_lshlrev_b32 v13, 2, v7
        v_xor_b32 v13, v8, v13
        v_lshlrev_b32 v13, 4, v13
        v_add_u32 v12, s3, v7
        v_lshl_add_u32 v{vWq[0]}, v12, 13, v13
        v_xor_b32 v13, 128, v13
        v_lshl_add_u32 v14, v12, 13, v13
        v_add_u32 v{vWq[1]}, {2*8192-1024}, v14
        v_add_u32 v{vWq[2]}, {4*8192-2048}, v{vWq[0]}
        v_add_u32 v{vWq[3]}, {6*8192-3072}, v14
        s_lshl_b32 {sM0}, {sW}, 12
        ''')
        p.wait_lgkm0()
        p.add(self.pstamp(50))
        p.e(f's_cmp_eq_u32 {sBr}, 0')
        for (dst, pa, pb) in ((SRD_X, 8, 18), (SRD_WQ, 14, 24)):
            p.e(f's_cselect_b32 s{dst}, s{pa}, s{pb}')
            p.e(f's_cselect_b32 s{dst+1}, s{pa+1}, s{pb+1}')
        p.e(f'''
        s_mul_i32 s3, {sRg}, 114688
        s_add_u32 s{SRD_X}, s{SRD_X}, s3
        s_addc_u32 s{SRD_X+1}, s{SRD_X+1}, 0
        s_sub_u32 s{SRD_X+2}, 917504, s3
        s_mov_b32 s{SRD_X+3}, 0x20000
        s_lshl_b32 s3, {sH}, 9
        s_add_u32 s{SRD_WQ}, s{SRD_WQ}, s3
        s_addc_u32 s{SRD_WQ+1}, s{SRD_WQ+1}, 0
        s_sub_u32 s{SRD_WQ+2}, 3670016, s3
        s_mov_b32 s{SRD_WQ+3}, 0x20000
        ''')
        groups = list(sched[-1])
        S = Prog()
        q = S
        q.e(f's_cmp_eq_u32 {sBr}, 0')
        for (dst, pa, pb) in ((SRD_K, 10, 20), (SRD_V, 12, 22), (SRD_WO, 16, 26)):
            q.e(f's_cselect_b32 s{dst}, s{pa}, s{pb}')
            q.e(f's_cselect_b32 s{dst+1}, s{pa+1}, s{pb+1}')
        q.e(f'''
        s_and_b32 {sDh}, {sW}, 1
        s_lshr_b32 {sBp}, {sW}, 1
        ''')
        q.e(f'''
        v_lshrrev_b32 v12, 1, v8
        v_and_b32 v12, 7, v12
        v_xor_b32 v12, v12, v7
        v_lshlrev_b32 v12, 4, v12
        v_lshl_add_u32 v12, v8, 7, v12
        s_lshl_b32 s3, {sBp}, 13
        s_lshl_b32 s7, {sDh}, 12
        s_add_u32 s7, s7, s3
        s_add_u32 s7, s7, {BB}
        v_add_u32 v{vBx[0][0][0]}, s7, v12
        s_xor_b32 s7, s7, 4096
        v_add_u32 v{vBx[1][0][0]}, s7, v12
        ''')
        for b in range(2):
            q.e(f'''
            v_xor_b32 v{vBx[b][0][1]}, 32, v{vBx[b][0][0]}
            v_xor_b32 v{vBx[b][1][0]}, 64, v{vBx[b][0][0]}
            v_xor_b32 v{vBx[b][1][1]}, 96, v{vBx[b][0][0]}
            ''')
        q.e('''
        v_lshrrev_b32 v13, 2, v2
        v_and_b32 v13, 3, v13
        v_and_b32 v14, 1, v5
        v_and_b32 v15, 1, v2
        v_lshl_add_u32 v15, v14, 1, v15
        v_lshrrev_b32 v16, 1, v2
        v_and_b32 v16, 1, v16
        v_lshlrev_b32 v16, 3, v16
        v_lshl_add_u32 v16, v15, 4, v16
        v_lshl_add_u32 v17, v7, 3, v13
        ''')
        q.e(f'''
        s_lshl_b32 s3, {sDh}, 8
        v_lshl_add_u32 v18, v17, 9, v16
        v_add_u32 v18, s3, v18
        ''')
        for t in range(4):
            q.e(f'''
            v_xor_b32 v19, {t}, v13
            v_lshl_add_u32 v{vAw[t]}, v19, 6, v18
            ''')
        setup1 = S.ins; S = Prog(); q = S
        q.e(f'''
        s_add_u32 s3, {sM0}, {EXB}
        v_add_u32 v{vKr[0][0]}, s3, v12
        v_xor_b32 v{vKr[0][1]}, 32, v{vKr[0][0]}
        v_xor_b32 v{vKr[1][0]}, 64, v{vKr[0][0]}
        v_xor_b32 v{vKr[1][1]}, 96, v{vKr[0][0]}
        s_add_u32 s3, {sM0}, {BB}
        v_add_u32 v{vAv[0][0]}, s3, v12
        v_xor_b32 v{vAv[0][1]}, 32, v{vAv[0][0]}
        v_xor_b32 v{vAv[1][0]}, 64, v{vAv[0][0]}
        v_xor_b32 v{vAv[1][1]}, 96, v{vAv[0][0]}
        ''')
        q.e(f'''
        s_lshl_b32 s3, {sBp}, 13
        v_lshl_add_u32 v18, v17, 7, v16
        v_add_u32 v18, s3, v18
        v_lshrrev_b32 v19, 1, v13
        v_xor_b32 v19, {sBp}, v19
        v_lshl_add_u32 v{vBo[0]}, v19, 6, v18
        v_xor_b32 v{vBo[1]}, 64, v{vBo[0]}
        ''')
        q.e(f'''
        v_lshlrev_b32 v12, 9, v9
        v_add_u32 v{vKd[0]}, v11, v12
        v_add_u32 v13, v3, v12
        v_add_u32 v{vKd[1]}, {8*512-1024}, v13
        v_add_u32 v{vKd[2]}, {16*512-2048}, v{vKd[0]}
        v_add_u32 v{vKd[3]}, {24*512-3072}, v13
        s_lshl_b32 s3, {sRg}, 5
        s_lshr_b32 s7, {sH}, 1
        s_add_u32 s3, s3, s7
        s_lshl_b32 s3, s3, 14
        s_add_u32 s{SRD_K}, s{SRD_K}, s3
        s_addc_u32 s{SRD_K+1}, s{SRD_K+1}, 0
        s_sub_u32 s{SRD_K+2}, 4194304, s3
        s_mov_b32 s{SRD_K+3}, 0x20000
        s_lshl_b32 s3, {sBp}, 1
        s_add_u32 s7, s3, {sDh}
        s_lshl_b32 {sKb[0]}, s7, 17
        s_xor_b32 s7, s7, 1
        s_lshl_b32 {sKb[1]}, s7, 17
        s_lshl_b32 s3, {sDh}, 8
        s_add_u32 {sKb[0]}, {sKb[0]}, s3
        s_add_u32 {sKb[1]}, {sKb[1]}, s3
        ''')
        setup2 = S.ins; S = Prog(); q = S
        q.e(f'''
        s_and_b32 s3, {sX4}, 1
        s_lshl_b32 s3, s3, 2
        s_lshr_b32 {sCt}, {sSlot}, 3
        s_mov_b32 {sJ0}, {sCt}
        s_add_u32 {sCt}, {sCt}, s3
        s_and_b32 {sR64}, {sSlot}, 7
        s_add_u32 s7, {sR64}, s3
        s_cmp_lt_u32 {sSlot}, 24
        s_cselect_b32 {sCt}, {sCt}, 3
        s_cselect_b32 {sR64}, {sR64}, s7
        s_and_b32 {sR64}, {sR64}, 7
        ''')
        if a.rot2:
            q.e(f'''
            s_add_u32 {sJ0}, {sJ0}, {sR64}
            s_and_b32 {sJ0}, {sJ0}, 3
            s_lshr_b32 {sC0}, {sR64}, 2
            s_lshl_b32 {sC0}, {sC0}, 1
            ''')
        else:
            q.e(f's_mov_b32 {sJ0}, 0\ns_mov_b32 {sC0}, 0')
        q.e(f'''
        s_lshr_b32 s7, {sX4}, 1
        s_lshl_b32 s7, s7, 3
        s_add_u32 {sR64}, {sR64}, s7
        s_cmp_ge_u32 {sSlot}, 28
        s_cselect_b32 {sIdle}, 1, 0
        s_lshl_b32 s3, {sR64}, 18
        s_add_u32 s{SRD_V}, s{SRD_V}, s3
        s_addc_u32 s{SRD_V+1}, s{SRD_V+1}, 0
        s_sub_u32 s{SRD_V+2}, 4194304, s3
        s_mov_b32 s{SRD_V+3}, 0x20000
        s_lshl_b32 s3, {sCt}, 7
        s_add_u32 s{SRD_WO}, s{SRD_WO}, s3
        s_addc_u32 s{SRD_WO+1}, s{SRD_WO+1}, 0
        s_sub_u32 s{SRD_WO+2}, 3670016, s3
        s_mov_b32 s{SRD_WO+3}, 0x20000
        s_cmp_eq_u32 {sIdle}, 1
        s_cselect_b32 s{SRD_V+2}, 0, s{SRD_V+2}
        s_cselect_b32 s{SRD_WO+2}, 0, s{SRD_WO+2}
        s_lshl_b32 s3, {sDh}, 17
        s_lshl_b32 s7, {sBp}, 16
        s_add_u32 {sVb}, s3, s7
        ''')
        q.e(f'''
        s_lshl_b32 s3, {sBp}, 3
        s_add_u32 s3, s3, {sDh}
        s_lshl_b32 s3, s3, 8
        v_add_u32 v12, s3, v9
        v_mul_u32_u24 v12, 896, v12
        v_lshlrev_b32 v13, 2, v14
        v_xor_b32 v13, v10, v13
        v_lshl_add_u32 v{vO[0]}, v13, 4, v12
        v_add_u32 v{vO[1]}, {7168-1024}, v{vO[0]}
        v_add_u32 v{vO[2]}, {2*(7168-1024)}, v{vO[0]}
        v_add_u32 v{vO[3]}, {3*(7168-1024)}, v{vO[0]}
        ''')
        q.e(f'''
        s_lshl_b32 s3, {sBr}, 20
        s_add_u32 s{SRD_P}, s32, s3
        s_addc_u32 s{SRD_P+1}, s33, 0
        s_mov_b32 s{SRD_P+2}, 0x100000
        s_mov_b32 s{SRD_P+3}, 0x20000
        s_lshl_b32 s3, {sRg}, 2
        s_add_u32 s3, s3, {sW}
        s_lshl_b32 s3, s3, 4
        s_add_u32 s3, s3, {sH}
        s_lshl_b32 {sPst}, s3, 11
        s_lshl_b32 s3, {sR64}, 1
        s_add_u32 s3, s3, {sDh}
        s_lshl_b32 s3, s3, 1
        s_add_u32 s3, s3, {sBp}
        s_lshl_b32 {sPld}, s3, 14
        v_lshlrev_b32 v{vP}, 4, v2
        s_mul_i32 s3, {sR64}, {64*1792}
        s_mul_i32 s7, {sBr}, 896
        s_add_u32 s3, s3, s7
        s_lshl_b32 s7, {sCt}, 7
        s_add_u32 s3, s3, s7
        s_add_u32 s{SRD_OUT}, s28, s3
        s_addc_u32 s{SRD_OUT+1}, s29, 0
        s_sub_u32 s{SRD_OUT+2}, {1024*1792}, s3
        s_mov_b32 s{SRD_OUT+3}, 0x20000
        s_lshl_b32 s3, {sDh}, 5
        v_add_u32 v12, s3, v8
        v_mul_u32_u24 v12, 1792, v12
        s_lshl_b32 s3, {sBp}, 6
        v_lshl_add_u32 v13, v7, 4, s3
        v_add_u32 v{vOut}, v12, v13
        s_add_u32 s3, {sM0}, {EXB}
        v_add_u32 v{vExW}, s3, v{vP}
        v_xor_b32 v{vExR1}, 4096, v{vExW}
        v_xor_b32 v{vExR2}, 8192, v{vExW}
        s_mov_b32 s{SRD_DBG}, s30
        s_mov_b32 s{SRD_DBG+1}, s31
        s_mov_b32 s{SRD_DBG+2}, 256
        s_mov_b32 s{SRD_DBG+3}, 0x20000
        s_lshl_b32 s3, {sBr}, 3
        s_lshr_b32 s7, {sR64}, 1
        s_add_u32 s7, s7, s3
        s_lshl_b32 {sFlag}, s7, 4
        s_add_u32 s3, s3, {sRg}
        s_lshl_b32 s3, s3, 4
        v_mov_b32 v{vFlag}, s3
        v_mov_b32 v{vOne}, 1
        v_mov_b32 v{vt[0]}, 0
        ''')
        setup3 = S.ins
        pf = []
        if a.codepf:
            pf = [f's_getpc_b64 s[{SRD_CODE}:{SRD_CODE+1}]', f's_mov_b32 s{SRD_CODE+2}, {a.codepf}', f's_mov_b32 s{SRD_CODE+3}, 0x20000',
                  f's_lshl_b32 s3, {sSlot}, 2', f's_add_u32 s3, s3, {sW}', f's_lshl_b32 s3, s3, 1', f'v_add_u32 v20, s3, v7',
                  f'v_lshlrev_b32 v20, 7, v20', f'buffer_load_dword v{vDummy}, v20, {srd(SRD_CODE)}, 0 offen']
        p.add(self.pstamp(51))
        p.add(groups[:8])
        p.add(self.pstamp(52))
        p.add(setup1)
        p.add(self.pstamp(53))
        p.add(groups[8:])
        p.add(self.pstamp(54))
        p.add(pf)
        p.add(setup2)
        p.add(self.dma_k(0))
        p.add(self.pstamp(55))
        p.add(setup3)

    def body(self, sched):
        p = self.p; a = self.a
        KISSUE = {2: 1, 6: 2, 10: 3}
        KREAD = {1: 0, 5: 1, 9: 2, 13: 3}
        for c in range(14):
            self.top(c)
            dm = sched[c]
            kiss = self.dma_k(KISSUE[c]) if c in KISSUE else []
            alld = kiss + dm
            h = (len(alld) + 1) // 2 if c > 0 else 0
            segA_m = self.mf_g(c - 1, 1, 1) if c > 0 else []
            p.add(spread(segA_m, self.reads_g(c, 0, 0), alld[:h]))
            tail = []
            if c in KREAD:
                w = I('s_waitcnt vmcnt(0)'); w.note = ('vm', ('k', KREAD[c]))
                tail = [w] + self.read_k(KREAD[c])
            rl = self.roll(vAw, c + 1) if c + 1 < 14 else []
            p.add(spread(self.mf_g(c, 0, 0), self.reads_g(c, 1, 1), alld[h:], tail + rl))
        self.top(14)
        last = self.mf_g(13, 1, 1)
        rd0 = self.reads_w(0, 0, 0)
        dm = sched[14]
        seq = [last[0]] + rd0[:3] + [last[1]] + rd0[3:6] + [last[2]] + rd0[6:] + [last[3]] + dm[:2]
        for t in range(4):
            seq += [last[4 + t]] + self.cvt_tile(QA(1, t), QA(1, t))
        qk = {}
        for beta in (1, 0):
            qk[beta] = []
            for t in range(4):
                for u in range(2):
                    d = vr(SS(beta), 16)
                    cin = '0' if (t == 0 and u == 0) else d
                    qk[beta].append(f'v_mfma_f32_32x32x16_bf16 {d}, {ar(KF(beta,t,u),4)}, {vr(QA(beta,t)+4*u,4)}, {cin}')
        cv0 = [x for t in range(4) for x in self.cvt_tile(QA(0, t), QA(0, t))]
        seq += spread(qk[1], [], cv0)
        swr = [f'ds_write_b128 v{vExW}, {vr(SS(1)+4*k,4)} offset:{1024*k}' for k in range(4)]
        seq += spread(qk[0][:4], [], dm[2:]) + swr + qk[0][4:]
        p.add(seq)
        p.add(spread(self.mf_w(0, 0, 0), self.reads_w(0, 1, 1), [], self.roll(vBo, 15)))
        for n in range(1, 32):
            i = 14 + n; pos, cc = n >> 3, n & 7
            self.top(i)
            if n == a.sig:
                p.e(f's_cmp_lg_u32 {sW}, 0')
                p.e('s_cbranch_scc1 L_nosig')
                p.e('s_mov_b64 exec, 1')
                x = I(f'buffer_atomic_add v{vOne}, v{vFlag}, {srd(SRD_DBG)}, 0 offen'); x.kind = 'fake'; p.ins.append(x)
                p.e('s_mov_b64 exec, -1')
                p.e('L_nosig:')
                p.e(f's_cmp_eq_u32 {sIdle}, 1')
                p.e('s_cbranch_scc1 L_end')
            rd0 = self.reads_w(n, 0, 0)
            dm = sched[i]
            segA = self.mf_w(n - 1, 1, 1)
            rl = self.roll(vBo, i + 1) if i + 1 < 46 else []
            if n == 1:
                part = [f'ds_read_b128 {vr(TMP+4*k,4)}, v{vExR1} offset:{1024*k}' for k in range(4)]
                p.add(spread(segA, part + rd0, []))
                p.add(self.softmax())
                p.add([I(f'buffer_store_dwordx4 {vr(SS(0)+4*u,4)}, v{vP}, {srd(SRD_P)}, {sPst} offen offset:{1024*u} sc1', ('pst', 0)) for u in range(2)])
                p.add(spread(self.mf_w(n, 0, 0), self.reads_w(n, 1, 1), dm, rl))
                continue
            extra = []
            if n == a.flagld:
                extra.append(I(f'buffer_load_dword v{vFlag}, v{vt[0]}, {srd(SRD_DBG)}, {sFlag} offen sc1', ('flag', 0)))
            if n == a.flagck:
                p.add([f'v_readfirstlane_b32 s3, v{vFlag}', 's_cmp_eq_u32 s3, 16', 's_cbranch_scc0 L_slow', 'L_back:'])
            pl = []
            if n == a.flagck: pl = self.pload(0) + self.pload(1)
            if n == a.flagck + 1: pl = self.pload(2) + self.pload(3)
            h = (len(dm) + 1) // 2
            if cc == 0:
                pj = pos - 1
                seq = [segA[0]] + rd0[:3] + [segA[1]] + rd0[3:6] + [segA[2]] + rd0[6:] + [segA[3]] + extra + pl + dm[:h]
                nb = self.mf_w(n, 0, 0)
                k = 0
                for hp in range(2):
                    for g in range(2):
                        seq += self.cvt_tile(VW(hp, g), VWB(pj, hp, g)) + [nb[k]]; k += 1
                p.add(seq)
                p.add(self.reads_w(n, 1, 1) + dm[h:] + rl)
            else:
                ex = []
                for (st, pj) in a.pv:
                    if n == st: ex += self.pvw(pj)
                p.add(spread(segA, rd0, extra + pl + dm[:h]))
                p.add(spread(self.mf_w(n, 0, 0) + ex, self.reads_w(n, 1, 1), dm[h:], rl))
        p.add(self.mf_w(31, 1, 1))
        order = [(0, 1), (1, 1), (0, 0), (1, 0)]
        cv = {k: self.cvt_tile(VW(*k), VWB(3, *k)) for k in order}
        pv = self.pvw(3, order='g1first')
        p.add(cv[(0, 1)] + cv[(1, 1)])
        p.add(spread(pv[:4], [], cv[(0, 0)] + cv[(1, 0)]))
        p.add(pv[4:6])
        p.add([f'ds_write_b128 v{vExW}, {vr(OT(1)+4*k,4)} offset:{1024*k}' for k in range(4)])
        p.add(pv[6:])
        p.wait_lgkm0()
        p.e('s_barrier')
        p.add([f'ds_read_b128 {vr(TMP+4*k,4)}, v{vExR2} offset:{1024*k}' for k in range(4)])
        p.add([f'v_add_f32 v{OT(0)+k}, v{OT(0)+k}, v{TMP+k}' for k in range(16)])
        p.add(self.cvt_tile(OT(0), OT(0)))
        for u in range(2):
            p.e(f'buffer_store_dwordx4 {vr(OT(0)+4*u,4)}, v{vOut}, {srd(SRD_OUT)}, 0 offen offset:{32*u}')

    def pload(self, pos):
        out = [[f's_add_u32 s91, {sJ0}, {pos}', 's_and_b32 s91, s91, 3', 's_lshl_b32 s91, s91, 12', f's_add_u32 s91, s91, {sPld}',
                I(f'buffer_load_dwordx4 {ar(PF(pos,0,0),4)}, v{vP}, {srd(SRD_P)}, s91 offen sc1')]]
        for k in range(1, 4):
            hp, u = k >> 1, k & 1
            out.append([I(f'buffer_load_dwordx4 {ar(PF(pos,hp,u),4)}, v{vP}, {srd(SRD_P)}, s91 offen offset:{hp*2048 + u*1024} sc1')])
        return out

    def pvw(self, jj, order=None):
        m = []
        if order == 'g1first':
            for g in (1, 0):
                for hp in range(2):
                    for u in range(2):
                        d = vr(OT(g), 16)
                        m.append(f'v_mfma_f32_32x32x16_bf16 {d}, {vr(VWB(jj,hp,g)+4*u,4)}, {ar(PF(jj,hp,u),4)}, {d}')
            return m
        for hp in range(2):
            for u in range(2):
                for g in range(2):
                    d = vr(OT(g), 16)
                    cin = '0' if (jj == 0 and hp == 0 and u == 0) else d
                    m.append(f'v_mfma_f32_32x32x16_bf16 {d}, {vr(VWB(jj,hp,g)+4*u,4)}, {ar(PF(jj,hp,u),4)}, {cin}')
        return m

    def softmax(self):
        S = SS(0); t0, t1, t2 = vt[1], vt[2], vt[3]
        o = []
        o += [f'v_add_f32 v{S+k}, v{S+k}, v{TMP+k}' for k in range(16)]
        o.append(f'v_max3_f32 v{t0}, v{S}, v{S+1}, v{S+2}')
        for k in range(3, 15, 2):
            o.append(f'v_max3_f32 v{t0}, v{t0}, v{S+k}, v{S+k+1}')
        o.append(f'v_max_f32 v{t0}, v{t0}, v{S+15}')
        o += [f'v_mov_b32 v{t1}, v{t0}', f'v_permlane32_swap_b32 v{t0}, v{t1}', f'v_max_f32 v{t0}, v{t0}, v{t1}',
              's_mov_b32 s3, 0x3db8aa3b', f'v_mul_f32 v{t0}, s3, v{t0}']
        for k in range(16): o.append(f'v_fma_f32 v{S+k}, v{S+k}, s3, -v{t0}')
        for k in range(16): o.append(f'v_exp_f32 v{S+k}, v{S+k}')
        o.append(f'v_add_f32 v{t1}, v{S}, v{S+1}')
        o.append(f'v_add_f32 v{t2}, v{S+2}, v{S+3}')
        for k in range(4, 16, 2):
            o.append(f'v_add_f32 v{t1}, v{t1}, v{S+k}')
            o.append(f'v_add_f32 v{t2}, v{t2}, v{S+k+1}')
        o += [f'v_add_f32 v{t1}, v{t1}, v{t2}', f'v_mov_b32 v{t2}, v{t1}', f'v_permlane32_swap_b32 v{t1}, v{t2}',
              f'v_add_f32 v{t1}, v{t1}, v{t2}', f'v_rcp_f32 v{t1}, v{t1}']
        for k in range(16): o.append(f'v_mul_f32 v{S+k}, v{S+k}, v{t1}')
        o += self.cvt_tile(S, S)
        return o

    def slowpath(self):
        return f'''
L_slow:
    s_mov_b32 {sCnt}, 0
L_spin:
    buffer_load_dword v{vFlag}, v{vt[0]}, {srd(SRD_DBG)}, {sFlag} offen sc1
    s_waitcnt vmcnt(0)
    v_readfirstlane_b32 s3, v{vFlag}
    s_add_u32 {sCnt}, {sCnt}, 1
    s_nop 3
    s_cmp_eq_u32 s3, 16
    s_cbranch_scc1 L_back
    s_cmp_lt_u32 {sCnt}, 0x40000
    s_cbranch_scc1 L_spin
    s_branch L_back
'''

    def stamps_out(self):
        if not self.a.stamps: return ''
        return f'''
    s_memtime s[92:93]
    s_waitcnt lgkmcnt(0)
    v_writelane_b32 v255, s92, 62
    v_writelane_b32 v255, s94, 63
    s_lshl_b32 s3, s2, 2
    s_add_u32 s3, s3, {sW}
    s_lshl_b32 s3, s3, 8
    s_add_u32 s3, s3, 0x400000
    s_add_u32 s8, s32, s3
    s_addc_u32 s9, s33, 0
    s_mov_b32 s10, 256
    s_mov_b32 s11, 0x20000
    v_mbcnt_lo_u32_b32 v254, -1, 0
    v_mbcnt_hi_u32_b32 v254, -1, v254
    v_lshlrev_b32 v254, 2, v254
    buffer_store_dword v255, v254, s[8:11], 0 offen
'''

    def build(self):
        sched = self.make_schedule()
        if self.a.verbose:
            for s in range(-1, 46):
                toks = []
                for g in sched[s]:
                    for x in g:
                        if isinstance(x, I) and x.tok: toks.append(x.tok)
                print(s, toks, file=sys.stderr)
        self.prologue(sched)
        self.body(sched)
        ins = self.p.finalize()
        owner = None; fresh = False
        for x in ins:
            if x.kind == 'salu' and ('m0', 0) in x.wr: fresh = True
            if x.kind == 'dma':
                if fresh: owner = x.tok; fresh = False
                assert owner == x.tok, (owner, x.tok, x.t)
        txt = render(ins)
        s = open(self.a.header).read()
        s += f'; @launch grid=(256,1,1) block=(256,1,1) lds={LDS_BYTES}\n'
        s += '.amdgcn_target "amdgcn-amd-amdhsa--gfx950"\n.text\n'
        s += f'.globl {NAME}\n.p2align 8\n.type {NAME},@function\n{NAME}:\n'
        s += txt
        s += 'L_fin:\n' + self.stamps_out() + '    s_endpgm\n'
        s += self.slowpath()
        s += 'L_end:\n'
        if self.a.stamps: s += '    s_cmp_ge_u32 s2, 256\n    s_cbranch_scc0 L_fin\n'
        s += '    s_endpgm\n'
        s += f'''.section .rodata,"a"
.p2align 6
.amdhsa_kernel {NAME}
  .amdhsa_next_free_vgpr 432
  .amdhsa_next_free_sgpr 102
  .amdhsa_accum_offset 256
  .amdhsa_group_segment_fixed_size 0
  .amdhsa_kernarg_size 104
  .amdhsa_user_sgpr_count 2
  .amdhsa_user_sgpr_kernarg_segment_ptr 1
  .amdhsa_system_sgpr_workgroup_id_x 1
.end_amdhsa_kernel
'''
        return s, ins

def main():
    ap = argparse.ArgumentParser()
    ap.add_argument('-o', default='concat_heads__gqa_block_cached__gqa_block_cached__near_ridge.s')
    ap.add_argument('--header', default='header.txt')
    ap.add_argument('--stamps', action='store_true')
    ap.add_argument('--codepf', type=int, default=32768)
    ap.add_argument('--sig', type=int, default=6)
    ap.add_argument('--flagld', type=int, default=9)
    ap.add_argument('--flagck', type=int, default=14)
    ap.add_argument('--pv0', type=int, default=19)
    ap.add_argument('--nt', default='')
    ap.add_argument('--rot1', type=int, default=4)
    ap.add_argument('--rot2', type=int, default=1)
    ap.add_argument('--catch', type=int, default=8)
    ap.add_argument('--catch_steps', type=int, default=4)
    ap.add_argument('--nodma', action='store_true')
    ap.add_argument('--nobar', action='store_true')
    ap.add_argument('--noreads', action='store_true')
    ap.add_argument('--verbose', action='store_true')
    a = ap.parse_args()
    a.pv = [(a.pv0, 0), (a.pv0 + 1, 1), (26, 2)]
    g = Gen(a)
    s, ins = g.build()
    open(a.o, 'w').write(s)
    from collections import Counter
    print(Counter(x.kind for x in ins), file=sys.stderr)

if __name__ == '__main__':
    main()
```

```python
import sys, argparse
from ir import *

NAME = 'concat_heads__gqa_block_cached__gqa_block_cached__near_ridge_kernel'
SA = 16384
BB = 98304
EXB = 147456
LDS_BYTES = 163840

sW = 's4'
SRD_X, SRD_WQ, SRD_K, SRD_V, SRD_WO, SRD_P, SRD_OUT, SRD_DBG, SRD_CODE = 36, 40, 44, 48, 52, 56, 60, 64, 68
def srd(b): return f's[{b}:{b+3}]'
sM0 = 's72'
sPA, sPB = 's73', 's74'
sTa, sTb = ['s75', 's76'], ['s77', 's78']
sKb = ['s79', 's80']
sIdle, sPst, sPld, sFlag = 's81', 's82', 's83', 's84'
sBr, sSlot, sH, sRg, sR64, sCt, sX4 = 's34', 's35', 's85', 's86', 's87', 's88', 's89'
sCnt = 's90'
sJ0, sC0 = 's5', 's6'
sJ0, sC0, sVb = 's96', 's97', 's98'
sDh, sBp = 's5', 's6'
sJA, sJB = 's99', 's100'

def QA(beta, t): return 64*beta + 16*t
def SS(beta): return 128 + 16*beta
def OT(g): return 160 + 16*g
TMP = 192
vBx = [[[160, 161], [162, 163]], [[164, 165], [166, 167]]]
vAw = [168, 169, 170, 171]
vX = [172, 173, 174, 175]; vWq = [176, 177, 178, 179]
vKr = [[180, 181], [182, 183]]
vKd = [208, 209, 210, 211]
vAv = [[212, 213], [214, 215]]
vBo = [216, 217]
vO = [218, 219, 220, 221]
vP, vOut, vExW, vExR1, vExR2, vDummy, vFlag, vOne = 222, 223, 224, 225, 226, 227, 228, 229
vt = list(range(230, 240))
def VW(hp, g): return 32*hp + 16*g
def VWB(jj, hp, g): return 64 + 32*(jj & 1) + 16*hp + 8*g
def FA(f, t): return 24*f + 4*t
def FB(f, b): return 24*f + 16 + 4*b
def KF(beta, t, u): return 48 + 32*beta + 8*t + 4*u
def PF(jj, hp, u): return 112 + 16*jj + 8*hp + 4*u
def vr(b, n=1): return f'v{b}' if n == 1 else f'v[{b}:{b+n-1}]'
def ar(b, n=1): return f'a{b}' if n == 1 else f'a[{b}:{b+n-1}]'

def spread(mf, early, even, late=(), per=3):
    n = len(mf)
    if n == 0: return list(early) + list(even) + list(late)
    gaps = [[] for _ in range(n)]
    idx = 0
    g = 0
    while idx < len(early):
        for _ in range(per):
            if idx < len(early): gaps[min(g, n-1)].append(early[idx]); idx += 1
        g += 1
    first = min(g, n-1) if len(even) <= n - g or g >= n else max(0, n - len(even))
    if g >= n: first = 0
    k = len(even); m = n - first
    for j, x in enumerate(even):
        gaps[first + min(m-1, int(j * m / k))].append(x)
    out = []
    for mm, gp in zip(mf, gaps):
        out.append(mm); out += gp
    return out + list(late)

class Gen:
    def __init__(self, a):
        self.a = a
        self.p = Prog()
        self.nstamp = 0
        self.pol = {k: (' nt' if k in a.nt else '') for k in 'xqkvo'}

    def dma_A(self, i):
        slot = (i % 6) * SA
        t = sTa[i & 1]
        if self.a.nodma and i >= 6: return []
        if i < 14:
            par = i & 1
            pre = [f's_lshl_b32 {t}, {sPA}, 19']
            if par: pre += [f's_add_u32 {t}, {t}, 262144'] + self.adv7(sPA)
            regs, sr, pol = vWq, SRD_WQ, self.pol['q']
        else:
            n = i - 14; tt, par = n >> 1, n & 1
            pre = []
            if n % 8 == 0:
                pre += [f's_add_u32 {sJA}, {sJ0}, {tt >> 2}', f's_and_b32 {sJA}, {sJA}, 3', f's_mul_i32 {sJA}, {sJA}, 458752']
            pre += [f's_add_u32 {t}, {sC0}, {tt & 3}', f's_and_b32 {t}, {t}, 3', f's_mul_i32 {t}, {t}, 57344', f's_add_u32 {t}, {t}, {sJA}']
            if par: pre += [f's_add_u32 {t}, {t}, 28672']
            regs, sr, pol = vO, SRD_WO, self.pol['o']
        f = [[f's_add_u32 m0, {sM0}, {slot}'] + pre]
        f[0].append(I(f'buffer_load_dwordx4 v{regs[0]}, {srd(sr)}, {t} offen{pol} lds', ('A', i)))
        for k in range(1, 4):
            f.append([I(f'buffer_load_dwordx4 v{regs[k]}, {srd(sr)}, {t} offen offset:{1024*k}{pol} lds', ('A', i))])
        return f

    def adv7(self, r):
        return [f's_add_u32 {r}, {r}, 1', f's_cmp_eq_u32 {r}, 7', f's_cselect_b32 {r}, 0, {r}']

    def dma_B(self, pi):
        slot = BB + (pi % 3) * SA
        t = sTb[pi & 1]
        if self.a.nodma and pi >= 3: return []
        if pi < 7:
            pre = [f's_lshl_b32 {t}, {sPB}, 7'] + self.adv7(sPB)
            regs, sr, pol = vX, SRD_X, self.pol['x']
        else:
            tt = pi - 7
            pre = []
            if tt % 4 == 0:
                pre += [f's_add_u32 {sJB}, {sJ0}, {tt >> 2}', f's_and_b32 {sJB}, {sJB}, 3', f's_lshl_b32 {sJB}, {sJB}, 14', f's_add_u32 {sJB}, {sJB}, {sVb}']
            pre += [f's_add_u32 {t}, {sC0}, {tt & 3}', f's_and_b32 {t}, {t}, 3', f's_lshl_b32 {t}, {t}, 7', f's_add_u32 {t}, {t}, {sJB}']
            regs, sr, pol = vKd, SRD_V, self.pol['v']
        g0 = [f's_add_u32 m0, {sM0}, {slot}'] + pre
        f = [g0 + [I(f'buffer_load_dwordx4 v{regs[0]}, {srd(sr)}, {t} offen{pol} lds', ('B', pi))]]
        for k in range(1, 4):
            pre2 = [f's_add_u32 m0, {sM0}, {slot}', 's_nop 0'] if k == 2 else []
            f.append(pre2 + [I(f'buffer_load_dwordx4 v{regs[k]}, {srd(sr)}, {t} offen offset:{1024*k}{pol} lds', ('B', pi))])
        return f

    def dma_k(self, a):
        beta, dq = a >> 1, a & 1
        pol = self.pol['k']
        f = [[f's_add_u32 m0, {sM0}, {EXB}', f's_add_u32 s91, {sKb[beta]}, {dq*128}',
              I(f'buffer_load_dwordx4 v{vKd[0]}, {srd(SRD_K)}, s91 offen{pol} lds', ('k', a))]]
        for k in range(1, 4):
            f.append([I(f'buffer_load_dwordx4 v{vKd[k]}, {srd(SRD_K)}, s91 offen offset:{1024*k}{pol} lds', ('k', a))])
        return f

    def read_k(self, a):
        beta, dq = a >> 1, a & 1
        return [f'ds_read_b128 {ar(KF(beta, 2*dq+tp, u), 4)}, v{vKr[tp][u]}' for tp in range(2) for u in range(2)]

    def reads_g(self, c, s, f):
        so = (c % 3) * SA
        bo = ((c >> 1) % 3) * SA
        par = c & 1
        rdA = lambda t: [f'ds_read_b64_tr_b16 {ar(FA(f,t)+2*m, 2)}, v{vAw[t]} offset:{so + s*8192 + m*2048}' for m in range(2)]
        rdB = lambda b: [f'ds_read_b128 {ar(FB(f,b), 4)}, v{vBx[b][par][s]} offset:{bo}']
        if self.a.noreads and c > 0: return []
        return rdB(1) + rdA(0) + rdA(1) + rdA(2) + rdA(3) + rdB(0)

    def mf_g(self, c, s, f):
        m = []
        for beta in (1, 0):
            for t in range(4):
                d = vr(QA(beta, t), 16)
                cin = '0' if (c == 0 and s == 0) else d
                m.append(f'v_mfma_f32_32x32x16_bf16 {d}, {ar(FA(f,t),4)}, {ar(FB(f,beta),4)}, {cin}')
        return m

    def reads_w(self, n, s, f):
        i = 14 + n
        so = (i % 3) * SA
        bo = ((i >> 1) % 3) * SA
        par = i & 1
        if self.a.noreads: return []
        r = [f'ds_read_b128 {ar(FB(f,0),4)}, v{vAv[par][s]} offset:{bo}']
        for hp in range(2):
            for g in range(2):
                r += [f'ds_read_b64_tr_b16 {ar(FA(f,2*hp+g)+2*m, 2)}, v{vBo[g]} offset:{so + hp*4096 + s*2048 + m*512}' for m in range(2)]
        return r

    def mf_w(self, n, s, f):
        m = []
        for hp in range(2):
            for g in range(2):
                d = vr(VW(hp, g), 16)
                cin = '0' if ((n & 7) == 0 and s == 0) else d
                m.append(f'v_mfma_f32_32x32x16_bf16 {d}, {ar(FB(f,0),4)}, {ar(FA(f,2*hp+g),4)}, {cin}')
        return m

    def roll(self, regs, i):
        if i % 3 != 0 or i == 0: return []
        if (i % 6) == 3: return [f'v_add_u32 v{r}, {3*SA}, v{r}' for r in regs]
        return [f'v_subrev_u32 v{r}, {3*SA}, v{r}' for r in regs]

    def top(self, i):
        p = self.p
        if self.a.stamps: p.e('s_memtime s[92:93]')
        if not (self.a.nodma and i >= 6):
            p.wait_vm(('A', i))
            if i % 2 == 0: p.wait_vm(('B', i >> 1))
        p.wait_lgkm0()
        if self.a.stamps:
            k = self.nstamp; self.nstamp += 1
            if k < 62: p.e(f'v_writelane_b32 v255, s92, {k}')
        if not self.a.nobar: p.e('s_barrier')

    def pstamp(self, lane):
        if not self.a.stamps: return []
        return ['s_memtime s[92:93]', 's_waitcnt lgkmcnt(0)', f'v_writelane_b32 v255, s92, {lane}']

    def cvt_tile(self, src, dst):
        return [f'v_cvt_pk_bf16_f32 v{dst+k}, v{src+2*k}, v{src+2*k+1}' for k in range(8)]

    def make_schedule(self):
        a = self.a
        sched = {s: [] for s in range(-1, 46)}
        A = {i: self.dma_A(i) for i in range(46)}
        B = {q: self.dma_B(q) for q in range(23)}
        order = []
        pro = [('B', 0), ('A', 0), ('A', 1)]
        for k, idx in pro: sched[-1] += (A if k == 'A' else B)[idx]
        nextA, nextB, halfB = 2, 1, 0
        for s in range(0, 46):
            budget = a.catch
            out = []
            while budget > 0:
                canA = nextA < 46 and (nextA < 6 or nextA - 6 < s) and nextA <= s + 5 and budget >= 4
                free = nextB < 23 and (nextB < 3 or 2*(nextB - 3) + 1 < s)
                canB = free and (nextB < 3 or halfB == 0 or s >= 2*nextB - 3) and budget >= 2
                dA = nextA if canA else 999
                dB = (2*nextB) if canB else 999
                if dA == 999 and dB == 999: break
                if dB <= dA:
                    g = B[nextB]
                    if g: out += g[2*halfB:2*halfB+2]
                    budget -= 2
                    halfB ^= 1
                    if halfB == 0: nextB += 1
                else:
                    out += A[nextA]; nextA += 1; budget -= 4
            sched[s] = out
        assert nextA == 46 and nextB == 23 and halfB == 0, (nextA, nextB, halfB)
        return sched

    def prologue(self, sched):
        p = self.p; a = self.a
        p.e('s_cmp_ge_u32 s2, 256')
        p.e('s_cbranch_scc1 L_end')
        p.e('s_load_dwordx16 s[8:23], s[0:1], 0')
        p.e('s_load_dwordx4 s[24:27], s[0:1], 64')
        p.e('s_load_dwordx4 s[28:31], s[0:1], 80')
        p.e('s_load_dwordx2 s[32:33], s[0:1], 96')
        if a.stamps:
            p.e('v_mov_b32 v255, 0')
            p.e('s_memtime s[94:95]')
        if a.dbgclk:
            p.e('s_memtime s[94:95]')
            p.e('s_memrealtime s[92:93]')
        p.e(f'''
        v_lshrrev_b32 v1, 6, v0
        v_and_b32 v2, 63, v0
        s_and_b32 {sX4}, s2, 3
        s_bfe_u32 {sBr}, s2, 0x10002
        s_lshr_b32 {sSlot}, s2, 3
        v_readfirstlane_b32 {sW}, v1
        s_and_b32 s3, {sSlot}, 3
        s_lshl_b32 {sH}, {sX4}, 2
        s_add_u32 {sH}, {sH}, s3
        s_lshr_b32 {sRg}, {sSlot}, 2
        ''')
        if a.rot1 == 7:
            p.e(f'''
            s_lshl_b32 s3, s3, 1
            s_add_u32 s3, s3, {sRg}
            s_cmp_ge_u32 s3, 7
            s_cselect_b32 s7, 7, 0
            s_sub_u32 s3, s3, s7
            s_cmp_ge_u32 s3, 7
            s_cselect_b32 s7, 7, 0
            s_sub_u32 {sPA}, s3, s7
            s_mov_b32 {sPB}, {sPA}
            ''')
        elif a.rot1 in (2, 4):
            mul = {2: 3, 4: 2}[a.rot1]
            p.e(f'''
            s_add_u32 s3, s3, {sRg}
            s_and_b32 s3, s3, {a.rot1-1}
            s_mul_i32 {sPA}, s3, {mul}
            s_mov_b32 {sPB}, {sPA}
            ''')
        else:
            p.e(f's_mov_b32 {sPA}, 0\ns_mov_b32 {sPB}, 0')
        p.e('''
        v_lshrrev_b32 v5, 4, v2
        v_lshrrev_b32 v9, 3, v2
        v_and_b32 v10, 7, v2
        v_lshrrev_b32 v7, 5, v2
        v_and_b32 v8, 31, v2
        ''')
        p.e(f'''
        v_xor_b32 v11, v10, v5
        v_lshlrev_b32 v11, 4, v11
        v_xor_b32 v3, 64, v11
        s_lshl_b32 s3, {sW}, 5
        v_add_u32 v12, s3, v9
        v_mul_u32_u24 v12, 896, v12
        v_add_u32 v{vX[0]}, v11, v12
        v_add_u32 v13, v3, v12
        v_add_u32 v{vX[1]}, {8*896-1024}, v13
        v_add_u32 v{vX[2]}, {16*896-2048}, v{vX[0]}
        v_add_u32 v{vX[3]}, {24*896-3072}, v13
        ''')
        p.e(f'''
        s_lshl_b32 s3, {sW}, 3
        v_lshlrev_b32 v13, 2, v7
        v_xor_b32 v13, v8, v13
        v_lshlrev_b32 v13, 4, v13
        v_add_u32 v12, s3, v7
        v_lshl_add_u32 v{vWq[0]}, v12, 13, v13
        v_xor_b32 v13, 128, v13
        v_lshl_add_u32 v14, v12, 13, v13
        v_add_u32 v{vWq[1]}, {2*8192-1024}, v14
        v_add_u32 v{vWq[2]}, {4*8192-2048}, v{vWq[0]}
        v_add_u32 v{vWq[3]}, {6*8192-3072}, v14
        s_lshl_b32 {sM0}, {sW}, 12
        ''')
        p.wait_lgkm0()
        p.add(self.pstamp(50))
        p.e(f's_cmp_eq_u32 {sBr}, 0')
        for (dst, pa, pb) in ((SRD_X, 8, 18), (SRD_WQ, 14, 24)):
            p.e(f's_cselect_b32 s{dst}, s{pa}, s{pb}')
            p.e(f's_cselect_b32 s{dst+1}, s{pa+1}, s{pb+1}')
        p.e(f'''
        s_mul_i32 s3, {sRg}, 114688
        s_add_u32 s{SRD_X}, s{SRD_X}, s3
        s_addc_u32 s{SRD_X+1}, s{SRD_X+1}, 0
        s_sub_u32 s{SRD_X+2}, 917504, s3
        s_mov_b32 s{SRD_X+3}, 0x20000
        s_lshl_b32 s3, {sH}, 9
        s_add_u32 s{SRD_WQ}, s{SRD_WQ}, s3
        s_addc_u32 s{SRD_WQ+1}, s{SRD_WQ+1}, 0
        s_sub_u32 s{SRD_WQ+2}, 3670016, s3
        s_mov_b32 s{SRD_WQ+3}, 0x20000
        ''')
        groups = list(sched[-1])
        S = Prog()
        q = S
        q.e(f's_cmp_eq_u32 {sBr}, 0')
        for (dst, pa, pb) in ((SRD_K, 10, 20), (SRD_V, 12, 22), (SRD_WO, 16, 26)):
            q.e(f's_cselect_b32 s{dst}, s{pa}, s{pb}')
            q.e(f's_cselect_b32 s{dst+1}, s{pa+1}, s{pb+1}')
        q.e(f'''
        s_and_b32 {sDh}, {sW}, 1
        s_lshr_b32 {sBp}, {sW}, 1
        ''')
        q.e(f'''
        v_lshrrev_b32 v12, 1, v8
        v_and_b32 v12, 7, v12
        v_xor_b32 v12, v12, v7
        v_lshlrev_b32 v12, 4, v12
        v_lshl_add_u32 v12, v8, 7, v12
        s_lshl_b32 s3, {sBp}, 13
        s_lshl_b32 s7, {sDh}, 12
        s_add_u32 s7, s7, s3
        s_add_u32 s7, s7, {BB}
        v_add_u32 v{vBx[0][0][0]}, s7, v12
        s_xor_b32 s7, s7, 4096
        v_add_u32 v{vBx[1][0][0]}, s7, v12
        ''')
        for b in range(2):
            q.e(f'''
            v_xor_b32 v{vBx[b][0][1]}, 32, v{vBx[b][0][0]}
            v_xor_b32 v{vBx[b][1][0]}, 64, v{vBx[b][0][0]}
            v_xor_b32 v{vBx[b][1][1]}, 96, v{vBx[b][0][0]}
            ''')
        q.e('''
        v_lshrrev_b32 v13, 2, v2
        v_and_b32 v13, 3, v13
        v_and_b32 v14, 1, v5
        v_and_b32 v15, 1, v2
        v_lshl_add_u32 v15, v14, 1, v15
        v_lshrrev_b32 v16, 1, v2
        v_and_b32 v16, 1, v16
        v_lshlrev_b32 v16, 3, v16
        v_lshl_add_u32 v16, v15, 4, v16
        v_lshl_add_u32 v17, v7, 3, v13
        ''')
        q.e(f'''
        s_lshl_b32 s3, {sDh}, 8
        v_lshl_add_u32 v18, v17, 9, v16
        v_add_u32 v18, s3, v18
        ''')
        for t in range(4):
            q.e(f'''
            v_xor_b32 v19, {t}, v13
            v_lshl_add_u32 v{vAw[t]}, v19, 6, v18
            ''')
        setup1 = S.ins; S = Prog(); q = S
        q.e(f'''
        s_add_u32 s3, {sM0}, {EXB}
        v_add_u32 v{vKr[0][0]}, s3, v12
        v_xor_b32 v{vKr[0][1]}, 32, v{vKr[0][0]}
        v_xor_b32 v{vKr[1][0]}, 64, v{vKr[0][0]}
        v_xor_b32 v{vKr[1][1]}, 96, v{vKr[0][0]}
        s_add_u32 s3, {sM0}, {BB}
        v_add_u32 v{vAv[0][0]}, s3, v12
        v_xor_b32 v{vAv[0][1]}, 32, v{vAv[0][0]}
        v_xor_b32 v{vAv[1][0]}, 64, v{vAv[0][0]}
        v_xor_b32 v{vAv[1][1]}, 96, v{vAv[0][0]}
        ''')
        q.e(f'''
        s_lshl_b32 s3, {sBp}, 13
        v_lshl_add_u32 v18, v17, 7, v16
        v_add_u32 v18, s3, v18
        v_lshrrev_b32 v19, 1, v13
        v_xor_b32 v19, {sBp}, v19
        v_lshl_add_u32 v{vBo[0]}, v19, 6, v18
        v_xor_b32 v{vBo[1]}, 64, v{vBo[0]}
        ''')
        q.e(f'''
        v_lshlrev_b32 v12, 9, v9
        v_add_u32 v{vKd[0]}, v11, v12
        v_add_u32 v13, v3, v12
        v_add_u32 v{vKd[1]}, {8*512-1024}, v13
        v_add_u32 v{vKd[2]}, {16*512-2048}, v{vKd[0]}
        v_add_u32 v{vKd[3]}, {24*512-3072}, v13
        s_lshl_b32 s3, {sRg}, 5
        s_lshr_b32 s7, {sH}, 1
        s_add_u32 s3, s3, s7
        s_lshl_b32 s3, s3, 14
        s_add_u32 s{SRD_K}, s{SRD_K}, s3
        s_addc_u32 s{SRD_K+1}, s{SRD_K+1}, 0
        s_sub_u32 s{SRD_K+2}, 4194304, s3
        s_mov_b32 s{SRD_K+3}, 0x20000
        s_lshl_b32 s3, {sBp}, 1
        s_add_u32 s7, s3, {sDh}
        s_lshl_b32 {sKb[0]}, s7, 17
        s_xor_b32 s7, s7, 1
        s_lshl_b32 {sKb[1]}, s7, 17
        s_lshl_b32 s3, {sDh}, 8
        s_add_u32 {sKb[0]}, {sKb[0]}, s3
        s_add_u32 {sKb[1]}, {sKb[1]}, s3
        ''')
        setup2 = S.ins; S = Prog(); q = S
        q.e(f'''
        s_and_b32 s3, {sX4}, 1
        s_lshl_b32 s3, s3, 2
        s_lshr_b32 {sCt}, {sSlot}, 3
        s_mov_b32 {sJ0}, {sCt}
        s_add_u32 {sCt}, {sCt}, s3
        s_and_b32 {sR64}, {sSlot}, 7
        s_add_u32 s7, {sR64}, s3
        s_cmp_lt_u32 {sSlot}, 24
        s_cselect_b32 {sCt}, {sCt}, 3
        s_cselect_b32 {sR64}, {sR64}, s7
        s_and_b32 {sR64}, {sR64}, 7
        ''')
        if a.rot2:
            q.e(f'''
            s_add_u32 {sJ0}, {sJ0}, {sR64}
            s_and_b32 {sJ0}, {sJ0}, 3
            s_lshr_b32 {sC0}, {sR64}, 2
            s_lshl_b32 {sC0}, {sC0}, 1
            ''')
        else:
            q.e(f's_mov_b32 {sJ0}, 0\ns_mov_b32 {sC0}, 0')
        q.e(f'''
        s_lshr_b32 s7, {sX4}, 1
        s_lshl_b32 s7, s7, 3
        s_add_u32 {sR64}, {sR64}, s7
        s_cmp_ge_u32 {sSlot}, 28
        s_cselect_b32 {sIdle}, 1, 0
        s_lshl_b32 s3, {sR64}, 18
        s_add_u32 s{SRD_V}, s{SRD_V}, s3
        s_addc_u32 s{SRD_V+1}, s{SRD_V+1}, 0
        s_sub_u32 s{SRD_V+2}, 4194304, s3
        s_mov_b32 s{SRD_V+3}, 0x20000
        s_lshl_b32 s3, {sCt}, 7
        s_add_u32 s{SRD_WO}, s{SRD_WO}, s3
        s_addc_u32 s{SRD_WO+1}, s{SRD_WO+1}, 0
        s_sub_u32 s{SRD_WO+2}, 3670016, s3
        s_mov_b32 s{SRD_WO+3}, 0x20000
        s_cmp_eq_u32 {sIdle}, 1
        s_cselect_b32 s{SRD_V+2}, 0, s{SRD_V+2}
        s_cselect_b32 s{SRD_WO+2}, 0, s{SRD_WO+2}
        s_lshl_b32 s3, {sDh}, 17
        s_lshl_b32 s7, {sBp}, 16
        s_add_u32 {sVb}, s3, s7
        ''')
        q.e(f'''
        s_lshl_b32 s3, {sBp}, 3
        s_add_u32 s3, s3, {sDh}
        s_lshl_b32 s3, s3, 8
        v_add_u32 v12, s3, v9
        v_mul_u32_u24 v12, 896, v12
        v_lshlrev_b32 v13, 2, v14
        v_xor_b32 v13, v10, v13
        v_lshl_add_u32 v{vO[0]}, v13, 4, v12
        v_add_u32 v{vO[1]}, {7168-1024}, v{vO[0]}
        v_add_u32 v{vO[2]}, {2*(7168-1024)}, v{vO[0]}
        v_add_u32 v{vO[3]}, {3*(7168-1024)}, v{vO[0]}
        ''')
        q.e(f'''
        s_lshl_b32 s3, {sBr}, 20
        s_add_u32 s{SRD_P}, s32, s3
        s_addc_u32 s{SRD_P+1}, s33, 0
        s_mov_b32 s{SRD_P+2}, 0x100000
        s_mov_b32 s{SRD_P+3}, 0x20000
        s_lshl_b32 s3, {sRg}, 2
        s_add_u32 s3, s3, {sW}
        s_lshl_b32 s3, s3, 4
        s_add_u32 s3, s3, {sH}
        s_lshl_b32 {sPst}, s3, 11
        s_lshl_b32 s3, {sR64}, 1
        s_add_u32 s3, s3, {sDh}
        s_lshl_b32 s3, s3, 1
        s_add_u32 s3, s3, {sBp}
        s_lshl_b32 {sPld}, s3, 14
        v_lshlrev_b32 v{vP}, 4, v2
        s_mul_i32 s3, {sR64}, {64*1792}
        s_mul_i32 s7, {sBr}, 896
        s_add_u32 s3, s3, s7
        s_lshl_b32 s7, {sCt}, 7
        s_add_u32 s3, s3, s7
        s_add_u32 s{SRD_OUT}, s28, s3
        s_addc_u32 s{SRD_OUT+1}, s29, 0
        s_sub_u32 s{SRD_OUT+2}, {1024*1792}, s3
        s_mov_b32 s{SRD_OUT+3}, 0x20000
        s_lshl_b32 s3, {sDh}, 5
        v_add_u32 v12, s3, v8
        v_mul_u32_u24 v12, 1792, v12
        s_lshl_b32 s3, {sBp}, 6
        v_lshl_add_u32 v13, v7, 4, s3
        v_add_u32 v{vOut}, v12, v13
        s_add_u32 s3, {sM0}, {EXB}
        v_add_u32 v{vExW}, s3, v{vP}
        v_xor_b32 v{vExR1}, 4096, v{vExW}
        v_xor_b32 v{vExR2}, 8192, v{vExW}
        s_mov_b32 s{SRD_DBG}, s30
        s_mov_b32 s{SRD_DBG+1}, s31
        s_mov_b32 s{SRD_DBG+2}, 256
        s_mov_b32 s{SRD_DBG+3}, 0x20000
        s_lshl_b32 s3, {sBr}, 3
        s_lshr_b32 s7, {sR64}, 1
        s_add_u32 s7, s7, s3
        s_lshl_b32 {sFlag}, s7, 4
        s_add_u32 s3, s3, {sRg}
        s_lshl_b32 s3, s3, 4
        v_mov_b32 v{vFlag}, s3
        v_mov_b32 v{vOne}, 1
        v_mov_b32 v{vt[0]}, 0
        ''')
        setup3 = S.ins
        pf = []
        if a.codepf:
            pf = [f's_getpc_b64 s[{SRD_CODE}:{SRD_CODE+1}]', f's_mov_b32 s{SRD_CODE+2}, {a.codepf}', f's_mov_b32 s{SRD_CODE+3}, 0x20000',
                  f's_lshl_b32 s3, {sSlot}, 2', f's_add_u32 s3, s3, {sW}', f's_lshl_b32 s3, s3, 1', f'v_add_u32 v20, s3, v7',
                  f'v_lshlrev_b32 v20, 7, v20', f'buffer_load_dword v{vDummy}, v20, {srd(SRD_CODE)}, 0 offen']
        p.add(self.pstamp(51))
        p.add(groups[:8])
        p.add(self.pstamp(52))
        p.add(setup1)
        p.add(self.pstamp(53))
        p.add(groups[8:])
        p.add(self.pstamp(54))
        p.add(pf)
        p.add(setup2)
        p.add(self.dma_k(0))
        p.add(self.pstamp(55))
        p.add(setup3)

    def body(self, sched):
        p = self.p; a = self.a
        KISSUE = {2: 1, 6: 2, 10: 3}
        KREAD = {1: 0, 5: 1, 9: 2, 13: 3}
        for c in range(14):
            self.top(c)
            dm = sched[c]
            kiss = self.dma_k(KISSUE[c]) if c in KISSUE else []
            alld = kiss + dm
            h = (len(alld) + 1) // 2 if c > 0 else 0
            segA_m = self.mf_g(c - 1, 1, 1) if c > 0 else []
            p.add(spread(segA_m, self.reads_g(c, 0, 0), alld[:h]))
            tail = []
            if c in KREAD:
                w = I('s_waitcnt vmcnt(0)'); w.note = ('vm', ('k', KREAD[c]))
                tail = [w] + self.read_k(KREAD[c])
            rl = self.roll(vAw, c + 1) if c + 1 < 14 else []
            p.add(spread(self.mf_g(c, 0, 0), self.reads_g(c, 1, 1), alld[h:], tail + rl))
        self.top(14)
        last = self.mf_g(13, 1, 1)
        rd0 = self.reads_w(0, 0, 0)
        dm = sched[14]
        seq = [last[0]] + rd0[:3] + [last[1]] + rd0[3:6] + [last[2]] + rd0[6:] + [last[3]] + dm[:2]
        for t in range(4):
            seq += [last[4 + t]] + self.cvt_tile(QA(1, t), QA(1, t))
        qk = {}
        for beta in (1, 0):
            qk[beta] = []
            for t in range(4):
                for u in range(2):
                    d = vr(SS(beta), 16)
                    cin = '0' if (t == 0 and u == 0) else d
                    qk[beta].append(f'v_mfma_f32_32x32x16_bf16 {d}, {ar(KF(beta,t,u),4)}, {vr(QA(beta,t)+4*u,4)}, {cin}')
        cv0 = [x for t in range(4) for x in self.cvt_tile(QA(0, t), QA(0, t))]
        seq += spread(qk[1], [], cv0)
        swr = [f'ds_write_b128 v{vExW}, {vr(SS(1)+4*k,4)} offset:{1024*k}' for k in range(4)]
        seq += spread(qk[0][:4], [], dm[2:]) + swr + qk[0][4:]
        p.add(seq)
        p.add(spread(self.mf_w(0, 0, 0), self.reads_w(0, 1, 1), [], self.roll(vBo, 15)))
        for n in range(1, 32):
            i = 14 + n; pos, cc = n >> 3, n & 7
            self.top(i)
            if n == a.sig:
                p.e(f's_cmp_lg_u32 {sW}, 0')
                p.e('s_cbranch_scc1 L_nosig')
                p.e('s_mov_b64 exec, 1')
                x = I(f'buffer_atomic_add v{vOne}, v{vFlag}, {srd(SRD_DBG)}, 0 offen'); x.kind = 'fake'; p.ins.append(x)
                p.e('s_mov_b64 exec, -1')
                p.e('L_nosig:')
                p.e(f's_cmp_eq_u32 {sIdle}, 1')
                p.e('s_cbranch_scc1 L_end')
            rd0 = self.reads_w(n, 0, 0)
            dm = sched[i]
            segA = self.mf_w(n - 1, 1, 1)
            rl = self.roll(vBo, i + 1) if i + 1 < 46 else []
            if n == 1:
                part = [f'ds_read_b128 {vr(TMP+4*k,4)}, v{vExR1} offset:{1024*k}' for k in range(4)]
                p.add(spread(segA, part + rd0, []))
                p.add(self.softmax())
                p.add([I(f'buffer_store_dwordx4 {vr(SS(0)+4*u,4)}, v{vP}, {srd(SRD_P)}, {sPst} offen offset:{1024*u} sc1', ('pst', 0)) for u in range(2)])
                p.add(spread(self.mf_w(n, 0, 0), self.reads_w(n, 1, 1), dm, rl))
                continue
            extra = []
            if n == a.flagld:
                extra.append(I(f'buffer_load_dword v{vFlag}, v{vt[0]}, {srd(SRD_DBG)}, {sFlag} offen sc1', ('flag', 0)))
            if n == a.flagck:
                p.add([f'v_readfirstlane_b32 s3, v{vFlag}', 's_cmp_eq_u32 s3, 16', 's_cbranch_scc0 L_slow', 'L_back:'])
            pl = []
            if n == a.flagck: pl = self.pload(0) + self.pload(1)
            if n == a.flagck + 1: pl = self.pload(2) + self.pload(3)
            h = (len(dm) + 1) // 2
            if cc == 0:
                pj = pos - 1
                seq = [segA[0]] + rd0[:3] + [segA[1]] + rd0[3:6] + [segA[2]] + rd0[6:] + [segA[3]] + extra + pl + dm[:h]
                nb = self.mf_w(n, 0, 0)
                k = 0
                for hp in range(2):
                    for g in range(2):
                        seq += self.cvt_tile(VW(hp, g), VWB(pj, hp, g)) + [nb[k]]; k += 1
                p.add(seq)
                p.add(self.reads_w(n, 1, 1) + dm[h:] + rl)
            else:
                ex = []
                for (st, pj) in a.pv:
                    if n == st: ex += self.pvw(pj)
                p.add(spread(segA, rd0, extra + pl + dm[:h]))
                p.add(spread(self.mf_w(n, 0, 0) + ex, self.reads_w(n, 1, 1), dm[h:], rl))
        p.add(self.mf_w(31, 1, 1))
        order = [(0, 1), (1, 1), (0, 0), (1, 0)]
        cv = {k: self.cvt_tile(VW(*k), VWB(3, *k)) for k in order}
        pv = self.pvw(3, order='g1first')
        p.add(cv[(0, 1)] + cv[(1, 1)])
        p.add(spread(pv[:4], [], cv[(0, 0)] + cv[(1, 0)]))
        p.add(pv[4:6])
        p.add([f'ds_write_b128 v{vExW}, {vr(OT(1)+4*k,4)} offset:{1024*k}' for k in range(4)])
        p.add(pv[6:])
        p.wait_lgkm0()
        p.e('s_barrier')
        p.add([f'ds_read_b128 {vr(TMP+4*k,4)}, v{vExR2} offset:{1024*k}' for k in range(4)])
        p.add([f'v_add_f32 v{OT(0)+k}, v{OT(0)+k}, v{TMP+k}' for k in range(16)])
        p.add(self.cvt_tile(OT(0), OT(0)))
        for u in range(2):
            p.e(f'buffer_store_dwordx4 {vr(OT(0)+4*u,4)}, v{vOut}, {srd(SRD_OUT)}, 0 offen offset:{32*u}')

    def pload(self, pos):
        out = [[f's_add_u32 s91, {sJ0}, {pos}', 's_and_b32 s91, s91, 3', 's_lshl_b32 s91, s91, 12', f's_add_u32 s91, s91, {sPld}',
                I(f'buffer_load_dwordx4 {ar(PF(pos,0,0),4)}, v{vP}, {srd(SRD_P)}, s91 offen sc1')]]
        for k in range(1, 4):
            hp, u = k >> 1, k & 1
            out.append([I(f'buffer_load_dwordx4 {ar(PF(pos,hp,u),4)}, v{vP}, {srd(SRD_P)}, s91 offen offset:{hp*2048 + u*1024} sc1')])
        return out

    def pvw(self, jj, order=None):
        m = []
        if order == 'g1first':
            for g in (1, 0):
                for hp in range(2):
                    for u in range(2):
                        d = vr(OT(g), 16)
                        m.append(f'v_mfma_f32_32x32x16_bf16 {d}, {vr(VWB(jj,hp,g)+4*u,4)}, {ar(PF(jj,hp,u),4)}, {d}')
            return m
        for hp in range(2):
            for u in range(2):
                for g in range(2):
                    d = vr(OT(g), 16)
                    cin = '0' if (jj == 0 and hp == 0 and u == 0) else d
                    m.append(f'v_mfma_f32_32x32x16_bf16 {d}, {vr(VWB(jj,hp,g)+4*u,4)}, {ar(PF(jj,hp,u),4)}, {cin}')
        return m

    def softmax(self):
        S = SS(0); t0, t1, t2 = vt[1], vt[2], vt[3]
        o = []
        o += [f'v_add_f32 v{S+k}, v{S+k}, v{TMP+k}' for k in range(16)]
        o.append(f'v_max3_f32 v{t0}, v{S}, v{S+1}, v{S+2}')
        for k in range(3, 15, 2):
            o.append(f'v_max3_f32 v{t0}, v{t0}, v{S+k}, v{S+k+1}')
        o.append(f'v_max_f32 v{t0}, v{t0}, v{S+15}')
        o += [f'v_mov_b32 v{t1}, v{t0}', f'v_permlane32_swap_b32 v{t0}, v{t1}', f'v_max_f32 v{t0}, v{t0}, v{t1}',
              's_mov_b32 s3, 0x3db8aa3b', f'v_mul_f32 v{t0}, s3, v{t0}']
        for k in range(16): o.append(f'v_fma_f32 v{S+k}, v{S+k}, s3, -v{t0}')
        for k in range(16): o.append(f'v_exp_f32 v{S+k}, v{S+k}')
        o.append(f'v_add_f32 v{t1}, v{S}, v{S+1}')
        o.append(f'v_add_f32 v{t2}, v{S+2}, v{S+3}')
        for k in range(4, 16, 2):
            o.append(f'v_add_f32 v{t1}, v{t1}, v{S+k}')
            o.append(f'v_add_f32 v{t2}, v{t2}, v{S+k+1}')
        o += [f'v_add_f32 v{t1}, v{t1}, v{t2}', f'v_mov_b32 v{t2}, v{t1}', f'v_permlane32_swap_b32 v{t1}, v{t2}',
              f'v_add_f32 v{t1}, v{t1}, v{t2}', f'v_rcp_f32 v{t1}, v{t1}']
        for k in range(16): o.append(f'v_mul_f32 v{S+k}, v{S+k}, v{t1}')
        o += self.cvt_tile(S, S)
        return o

    def slowpath(self):
        return f'''
L_slow:
    s_mov_b32 {sCnt}, 0
L_spin:
    buffer_load_dword v{vFlag}, v{vt[0]}, {srd(SRD_DBG)}, {sFlag} offen sc1
    s_waitcnt vmcnt(0)
    v_readfirstlane_b32 s3, v{vFlag}
    s_add_u32 {sCnt}, {sCnt}, 1
    s_nop 3
    s_cmp_eq_u32 s3, 16
    s_cbranch_scc1 L_back
    s_cmp_lt_u32 {sCnt}, 0x40000
    s_cbranch_scc1 L_spin
    s_branch L_back
'''

    def stamps_out(self):
        if self.a.dbgclk:
            return f'''
    s_memtime s[8:9]
    s_memrealtime s[10:11]
    s_waitcnt lgkmcnt(0)
    s_sub_u32 s8, s8, s94
    s_sub_u32 s10, s10, s92
    s_and_b32 s3, s2, 63
    s_cmp_eq_u32 s3, 0
    s_cbranch_scc0 L_nodbg
    s_cmp_eq_u32 {sW}, 0
    s_cbranch_scc0 L_nodbg
    s_lshr_b32 s3, s2, 6
    s_lshl_b32 s3, s3, 4
    s_add_u32 s3, s3, 4
    v_mov_b32 v0, s3
    v_mov_b32 v2, s8
    v_mov_b32 v3, s10
    s_mov_b64 exec, 1
    buffer_store_dwordx2 v[2:3], v0, {srd(SRD_DBG)}, 0 offen
L_nodbg:
'''
        if not self.a.stamps: return ''
        return f'''
    s_memtime s[92:93]
    s_waitcnt lgkmcnt(0)
    v_writelane_b32 v255, s92, 62
    v_writelane_b32 v255, s94, 63
    s_lshl_b32 s3, s2, 2
    s_add_u32 s3, s3, {sW}
    s_lshl_b32 s3, s3, 8
    s_add_u32 s3, s3, 0x400000
    s_add_u32 s8, s32, s3
    s_addc_u32 s9, s33, 0
    s_mov_b32 s10, 256
    s_mov_b32 s11, 0x20000
    v_mbcnt_lo_u32_b32 v254, -1, 0
    v_mbcnt_hi_u32_b32 v254, -1, v254
    v_lshlrev_b32 v254, 2, v254
    buffer_store_dword v255, v254, s[8:11], 0 offen
'''

    def build(self):
        sched = self.make_schedule()
        if self.a.verbose:
            for s in range(-1, 46):
                toks = []
                for g in sched[s]:
                    for x in g:
                        if isinstance(x, I) and x.tok: toks.append(x.tok)
                print(s, toks, file=sys.stderr)
        self.prologue(sched)
        self.body(sched)
        ins = self.p.finalize()
        owner = None; fresh = False
        for x in ins:
            if x.kind == 'salu' and ('m0', 0) in x.wr: fresh = True
            if x.kind == 'dma':
                if fresh: owner = x.tok; fresh = False
                assert owner == x.tok, (owner, x.tok, x.t)
        txt = render(ins)
        s = open(self.a.header).read()
        s += f'; @launch grid=(256,1,1) block=(256,1,1) lds={LDS_BYTES}\n'
        s += '.amdgcn_target "amdgcn-amd-amdhsa--gfx950"\n.text\n'
        s += f'.globl {NAME}\n.p2align 8\n.type {NAME},@function\n{NAME}:\n'
        s += txt
        s += 'L_fin:\n' + self.stamps_out() + '    s_endpgm\n'
        s += self.slowpath()
        s += 'L_end:\n'
        if self.a.stamps: s += '    s_cmp_ge_u32 s2, 256\n    s_cbranch_scc0 L_fin\n'
        s += '    s_endpgm\n'
        s += f'''.section .rodata,"a"
.p2align 6
.amdhsa_kernel {NAME}
  .amdhsa_next_free_vgpr 432
  .amdhsa_next_free_sgpr 102
  .amdhsa_accum_offset 256
  .amdhsa_group_segment_fixed_size 0
  .amdhsa_kernarg_size 104
  .amdhsa_user_sgpr_count 2
  .amdhsa_user_sgpr_kernarg_segment_ptr 1
  .amdhsa_system_sgpr_workgroup_id_x 1
.end_amdhsa_kernel
'''
        return s, ins

def main():
    ap = argparse.ArgumentParser()
    ap.add_argument('-o', default='concat_heads__gqa_block_cached__gqa_block_cached__near_ridge.s')
    ap.add_argument('--header', default='header.txt')
    ap.add_argument('--stamps', action='store_true')
    ap.add_argument('--dbgclk', action='store_true')
    ap.add_argument('--codepf', type=int, default=32768)
    ap.add_argument('--sig', type=int, default=6)
    ap.add_argument('--flagld', type=int, default=9)
    ap.add_argument('--flagck', type=int, default=14)
    ap.add_argument('--pv0', type=int, default=19)
    ap.add_argument('--nt', default='')
    ap.add_argument('--rot1', type=int, default=4)
    ap.add_argument('--rot2', type=int, default=1)
    ap.add_argument('--catch', type=int, default=8)
    ap.add_argument('--catch_steps', type=int, default=4)
    ap.add_argument('--nodma', action='store_true')
    ap.add_argument('--nobar', action='store_true')
    ap.add_argument('--noreads', action='store_true')
    ap.add_argument('--verbose', action='store_true')
    a = ap.parse_args()
    a.pv = [(a.pv0, 0), (a.pv0 + 1, 1), (26, 2)]
    g = Gen(a)
    s, ins = g.build()
    open(a.o, 'w').write(s)
    from collections import Counter
    print(Counter(x.kind for x in ins), file=sys.stderr)

if __name__ == '__main__':
    main()
```

```python
import sys, argparse
from ir import *

NAME = 'concat_heads__gqa_block_cached__gqa_block_cached__near_ridge_kernel'
SA = 16384
BB = 98304
EXB = 147456
LDS_BYTES = 163840

sW = 's4'
SRD_X, SRD_WQ, SRD_K, SRD_V, SRD_WO, SRD_P, SRD_OUT, SRD_DBG, SRD_CODE = 36, 40, 44, 48, 52, 56, 60, 64, 68
def srd(b): return f's[{b}:{b+3}]'
sM0 = 's72'
sPA, sPB = 's73', 's74'
sTa, sTb = ['s75', 's76'], ['s77', 's78']
sKb = ['s79', 's80']
sIdle, sPst, sPld, sF1 = 's81', 's82', 's83', 's84'
sBr, sSlot, sH, sRg, sR4, sCt, sX4 = 's34', 's35', 's85', 's86', 's87', 's88', 's89'
sCnt = 's90'
sC0, sVb = 's96', 's97'
sDh, sBp = 's5', 's6'
sOwn = ['s98', 's99', 's100', 's101']
WS_FLG1, WS_FLG2, WS_PART = 6 << 20, (6 << 20) + (64 << 10), 8 << 20

def QA(beta, t): return 64*beta + 16*t
def SS(beta): return 128 + 16*beta
def OT(g): return 160 + 16*g
TMP = 192
vBx = [[[160, 161], [162, 163]], [[164, 165], [166, 167]]]
vAw = [168, 169, 170, 171]
vX = [172, 173, 174, 175]; vWq = [176, 177, 178, 179]
vKr = [[180, 181], [182, 183]]
def FV(s): return 208 + 4*s
vKd = [216, 217, 218, 219]
vAv = [[220, 221], [222, 223]]
vAt = [[224, 225], [226, 227]]
vBo = [228, 229]
vO = [230, 231, 232, 233]
vP, vOut, vExW, vExR1, vExR2, vDummy, vFlag, vOne, vZero, vF1 = 234, 235, 236, 237, 238, 239, 240, 241, 242, 243
vt = [244, 245, 246, 247, 248, 249]
def VW(hp, g): return 32*hp + 16*g
def VWB(pos, hp, g): return 64 + 32*(pos & 1) + 16*hp + 8*g
def PFV(pos, hp, u): return 128 + 16*(pos & 1) + 8*hp + 4*u
def FA(f, t): return 24*f + 4*t
def FB(f, b): return 24*f + 16 + 4*b
def KF(beta, t, u): return 48 + 32*beta + 8*t + 4*u
def WF(n, s, hp, g): return (112 + 32*n + 16*s + 8*hp + 4*g) % 256
def vr(b, n=1): return f'v{b}' if n == 1 else f'v[{b}:{b+n-1}]'
def ar(b, n=1): return f'a{b}' if n == 1 else f'a[{b}:{b+n-1}]'
VSLOT = {0: (BB+SA, 10), 1: (BB+2*SA, 12), 2: (BB, 14), 3: (BB+SA, 16), 4: (4*SA, 17), 5: (5*SA, 18), 6: (0, 19), 7: (SA, 20),
         8: (BB+2*SA, 21), 9: (2*SA, 22), 10: (BB, 23), 11: (BB+SA, 24), 12: (4*SA, 25), 13: (5*SA, 26), 14: (0, 28), 15: (SA, 30)}
EX1 = 3*SA

def spread(mf, early, even, late=(), per=3):
    n = len(mf)
    if n == 0: return list(early) + list(even) + list(late)
    gaps = [[] for _ in range(n)]
    idx = 0
    g = 0
    while idx < len(early):
        for _ in range(per):
            if idx < len(early): gaps[min(g, n-1)].append(early[idx]); idx += 1
        g += 1
    first = min(g, n-1) if len(even) <= n - g or g >= n else max(0, n - len(even))
    if g >= n: first = 0
    k = len(even); m = n - first
    for j, x in enumerate(even):
        gaps[first + min(m-1, int(j * m / k))].append(x)
    out = []
    for mm, gp in zip(mf, gaps):
        out.append(mm); out += gp
    return out + list(late)

class Gen:
    def __init__(self, a):
        self.a = a
        self.p = Prog()
        self.nstamp = 0
        self.pol = {k: (' nt' if k in a.nt else '') for k in 'xqkvo'}

    def dma_A(self, i):
        slot = (i % 6) * SA
        t = sTa[i & 1]
        if self.a.nodma and i >= 6: return []
        if i < 14:
            par = i & 1
            pre = [f's_lshl_b32 {t}, {sPA}, 19']
            if par: pre += [f's_add_u32 {t}, {t}, 262144'] + self.adv7(sPA)
            regs, sr, pol = vWq, SRD_WQ, self.pol['q']
        else:
            n = i - 14; tt, par = n >> 1, n & 1
            pre = [f's_add_u32 {t}, {sC0}, {tt}', f's_and_b32 {t}, {t}, 3', f's_mul_i32 {t}, {t}, 57344']
            if par: pre += [f's_add_u32 {t}, {t}, 28672']
            regs, sr, pol = vO, SRD_WO, self.pol['o']
        f = [[f's_add_u32 m0, {sM0}, {slot}'] + pre]
        f[0].append(I(f'buffer_load_dwordx4 v{regs[0]}, {srd(sr)}, {t} offen{pol} lds', ('A', i)))
        for k in range(1, 4):
            f.append([I(f'buffer_load_dwordx4 v{regs[k]}, {srd(sr)}, {t} offen offset:{1024*k}{pol} lds', ('A', i))])
        return f

    def adv7(self, r):
        return [f's_add_u32 {r}, {r}, 1', f's_cmp_eq_u32 {r}, 7', f's_cselect_b32 {r}, 0, {r}']

    def dma_B(self, pi):
        t = sTb[pi & 1]
        if self.a.nodma and pi >= 3: return []
        if pi < 7:
            slot = BB + (pi % 3) * SA
            pre = [f's_lshl_b32 {t}, {sPB}, 7'] + self.adv7(sPB)
            regs, sr, pol = vX, SRD_X, self.pol['x']
        else:
            tt = pi - 7; pos = tt >> 2
            slot = VSLOT[tt][0]
            pre = [f's_add_u32 {t}, {sC0}, {tt & 3}', f's_and_b32 {t}, {t}, 3', f's_lshl_b32 {t}, {t}, 7', f's_add_u32 {t}, {t}, {sVb}',
                   f's_lshl_b32 s91, {sOwn[pos]}, 18', f's_add_u32 {t}, {t}, s91']
            regs, sr, pol = vKd, SRD_V, self.pol['v']
        g0 = [f's_add_u32 m0, {sM0}, {slot}'] + pre
        f = [g0 + [I(f'buffer_load_dwordx4 v{regs[0]}, {srd(sr)}, {t} offen{pol} lds', ('B', pi))]]
        for k in range(1, 4):
            pre2 = [f's_add_u32 m0, {sM0}, {slot}', 's_nop 0'] if k == 2 else []
            f.append(pre2 + [I(f'buffer_load_dwordx4 v{regs[k]}, {srd(sr)}, {t} offen offset:{1024*k}{pol} lds', ('B', pi))])
        return f

    def dma_k(self, a):
        beta, dq = 1 - (a >> 1), a & 1
        pol = self.pol['k']
        f = [[f's_add_u32 m0, {sM0}, {EXB}', f's_add_u32 s91, {sKb[beta]}, {dq*128}',
              I(f'buffer_load_dwordx4 v{vKd[0]}, {srd(SRD_K)}, s91 offen{pol} lds', ('k', a))]]
        for k in range(1, 4):
            f.append([I(f'buffer_load_dwordx4 v{vKd[k]}, {srd(SRD_K)}, s91 offen offset:{1024*k}{pol} lds', ('k', a))])
        return f

    def read_k(self, a):
        beta, dq = 1 - (a >> 1), a & 1
        return [f'ds_read_b128 {ar(KF(beta, 2*dq+tp, u), 4)}, v{vKr[tp][u]}' for tp in range(2) for u in range(2)]

    def reads_g(self, c, s, f):
        so = (c % 3) * SA
        bo = ((c >> 1) % 3) * SA
        par = c & 1
        rdA = lambda t: [f'ds_read_b64_tr_b16 {ar(FA(f,t)+2*m, 2)}, v{vAw[t]} offset:{so + s*8192 + m*2048}' for m in range(2)]
        rdB = lambda b: [f'ds_read_b128 {ar(FB(f,b), 4)}, v{vBx[b][par][s]} offset:{bo}']
        if self.a.noreads and c > 0: return []
        return rdB(1) + rdA(0) + rdA(1) + rdA(2) + rdA(3) + rdB(0)

    def mf_g(self, c, s, f):
        m = []
        for beta in (1, 0):
            for t in range(4):
                d = vr(QA(beta, t), 16)
                cin = '0' if (c == 0 and s == 0) else d
                m.append(f'v_mfma_f32_32x32x16_bf16 {d}, {ar(FA(f,t),4)}, {ar(FB(f,beta),4)}, {cin}')
        return m

    def setva(self, tt):
        base = VSLOT[tt][0]
        return [f'v_add_u32 v{vAt[par][s]}, {base}, v{vAv[par][s]}' for par in range(2) for s in range(2)]

    def reads_w(self, n, s):
        i = 14 + n
        so = (i % 3) * SA
        par = n & 1
        if self.a.noreads: return []
        r = [f'ds_read_b128 {vr(FV(s),4)}, v{vAt[par][s]}']
        if n < 8:
            for hp in range(2):
                for g in range(2):
                    r += [f'ds_read_b64_tr_b16 {ar(WF(n,s,hp,g)+2*m, 2)}, v{vBo[g]} offset:{so + hp*4096 + s*2048 + m*512}' for m in range(2)]
        return r

    def mf_w(self, n, s):
        m = []
        for hp in range(2):
            for g in range(2):
                d = vr(VW(hp, g), 16)
                cin = '0' if ((n & 7) == 0 and s == 0) else d
                m.append(f'v_mfma_f32_32x32x16_bf16 {d}, {vr(FV(s),4)}, {ar(WF(n & 7,s,hp,g),4)}, {cin}')
        return m

    def roll(self, regs, i):
        if i % 3 != 0 or i == 0: return []
        if (i % 6) == 3: return [f'v_add_u32 v{r}, {3*SA}, v{r}' for r in regs]
        return [f'v_subrev_u32 v{r}, {3*SA}, v{r}' for r in regs]

    def top(self, i, bar=True):
        p = self.p
        if self.a.stamps: p.e('s_memtime s[92:93]')
        if self.a.stamps and self.a.rt: p.e('s_memrealtime s[30:31]')
        if not (self.a.nodma and i >= 6):
            if i <= 21: p.wait_vm(('A', i))
            if i % 2 == 0: p.wait_vm(('B', i >> 1))
        if bar or self.a.stamps: p.wait_lgkm0()
        if self.a.stamps:
            k = self.nstamp; self.nstamp += 1
            if k < (32 if self.a.post else 46): p.e(f'v_writelane_b32 v255, s92, {k}')
            if k < 50 and self.a.rt: p.e(f'v_writelane_b32 v253, s30, {k}')
        if bar and not self.a.nobar: p.e('s_barrier')
        if self.a.stamps and self.a.post and i < 12:
            p.add(self.pstamp(32 + i))

    def pstamp(self, lane):
        if not self.a.stamps: return []
        return ['s_memtime s[92:93]', 's_waitcnt lgkmcnt(0)', f'v_writelane_b32 v255, s92, {lane}']

    def cvt_tile(self, src, dst):
        return [f'v_cvt_pk_bf16_f32 v{dst+k}, v{src+2*k}, v{src+2*k+1}' for k in range(8)]

    def make_schedule(self):
        a = self.a
        A = {i: self.dma_A(i) for i in range(22)}
        B = {q: self.dma_B(q) for q in range(23)}
        T = {s: [] for s in range(-1, 46)}
        def add(s, *items): T[s] += list(items)
        add(-1, 'B0', 'A0', 'A1')
        add(0, 'B1', 'A2'); add(1, 'A3', 'A4'); add(2, 'B2', 'A5'); add(3, 'A6', 'B3a', 'A7'); add(4, 'B3b', 'A8', 'A9')
        add(5, 'B4a', 'A10'); add(6, 'B4b', 'A11'); add(7, 'B5a', 'A12'); add(8, 'B5b', 'A13', 'B6a')
        add(9, 'B6b', 'A14')
        if a.pace == 1:
            add(10, 'B7'); add(11, 'A15'); add(12, 'A16'); add(13, 'B8'); add(14, 'A17', 'A18'); add(15, 'B9', 'A19'); add(16, 'A20', 'B10a')
            add(17, 'B10b', 'A21', 'B11a'); add(18, 'B11b', 'B12'); add(19, 'B13')
        else:
            add(10, 'B7a', 'A15'); add(11, 'B7b', 'A16'); add(12, 'B8a', 'A17'); add(13, 'B8b', 'A18'); add(14, 'B9a', 'A19'); add(15, 'B9b', 'A20')
            add(16, 'B10', 'A21'); add(17, 'B11'); add(18, 'B12'); add(19, 'B13')
        for t in range(7, 16): add(VSLOT[t][1], f'B{7+t}')
        sched = {}
        for s_, items in T.items():
            out = []
            for it in items:
                k = it[0]; half = it[-1] if it[-1] in 'ab' else None
                idx = int(it[1:-1] if half else it[1:])
                if k == 'A':
                    assert idx < 6 or idx - 6 < s_, it
                    out += A[idx]
                else:
                    if idx < 7: assert idx < 3 or 2*(idx - 3) + 1 < s_, it
                    else: assert s_ >= VSLOT[idx - 7][1] - (0), (it, s_)
                    g = B[idx]
                    if not g: continue
                    out += g[:2] if half == 'a' else g[2:] if half == 'b' else g
            sched[s_] = out
        return sched

    def prologue(self, sched):
        p = self.p; a = self.a
        p.e('s_cmp_ge_u32 s2, 256')
        p.e('s_cbranch_scc1 L_end')
        p.e('s_load_dwordx16 s[8:23], s[0:1], 0')
        p.e('s_load_dwordx4 s[24:27], s[0:1], 64')
        p.e('s_load_dwordx4 s[28:31], s[0:1], 80')
        p.e('s_load_dwordx2 s[32:33], s[0:1], 96')
        if a.stamps:
            p.e('v_mov_b32 v255, 0')
            p.e('v_mov_b32 v253, 0')
            p.e('s_memtime s[94:95]')
            if a.rt: p.e('s_memrealtime s[28:29]') if False else None
        if a.dbgclk:
            p.e('s_memtime s[94:95]')
            p.e('s_memrealtime s[92:93]')
        p.e(f'''
        v_lshrrev_b32 v1, 6, v0
        v_and_b32 v2, 63, v0
        s_and_b32 {sX4}, s2, 3
        s_bfe_u32 {sBr}, s2, 0x10002
        s_lshr_b32 {sSlot}, s2, 3
        v_readfirstlane_b32 {sW}, v1
        s_and_b32 s3, {sSlot}, 3
        s_lshl_b32 {sH}, {sX4}, 2
        s_add_u32 {sH}, {sH}, s3
        s_lshr_b32 {sRg}, {sSlot}, 2
        ''')
        if a.rot1 == 7:
            p.e(f'''
            s_lshl_b32 s3, s3, 1
            s_add_u32 s3, s3, {sRg}
            s_cmp_ge_u32 s3, 7
            s_cselect_b32 s7, 7, 0
            s_sub_u32 s3, s3, s7
            s_cmp_ge_u32 s3, 7
            s_cselect_b32 s7, 7, 0
            s_sub_u32 {sPA}, s3, s7
            s_mov_b32 {sPB}, {sPA}
            ''')
        elif a.rot1 in (2, 4):
            mul = {2: 3, 4: 2}[a.rot1]
            p.e(f'''
            s_add_u32 s3, s3, {sRg}
            s_and_b32 s3, s3, {a.rot1-1}
            s_mul_i32 {sPA}, s3, {mul}
            s_mov_b32 {sPB}, {sPA}
            ''')
        else:
            p.e(f's_mov_b32 {sPA}, 0\ns_mov_b32 {sPB}, 0')
        p.e('''
        v_lshrrev_b32 v5, 4, v2
        v_lshrrev_b32 v9, 3, v2
        v_and_b32 v10, 7, v2
        v_lshrrev_b32 v7, 5, v2
        v_and_b32 v8, 31, v2
        ''')
        p.e(f'''
        v_xor_b32 v11, v10, v5
        v_lshlrev_b32 v11, 4, v11
        v_xor_b32 v3, 64, v11
        s_lshl_b32 s3, {sW}, 5
        v_add_u32 v12, s3, v9
        v_mul_u32_u24 v12, 896, v12
        v_add_u32 v{vX[0]}, v11, v12
        v_add_u32 v13, v3, v12
        v_add_u32 v{vX[1]}, {8*896-1024}, v13
        v_add_u32 v{vX[2]}, {16*896-2048}, v{vX[0]}
        v_add_u32 v{vX[3]}, {24*896-3072}, v13
        ''')
        p.e(f'''
        s_lshl_b32 s3, {sW}, 3
        v_lshlrev_b32 v13, 2, v7
        v_xor_b32 v13, v8, v13
        v_lshlrev_b32 v13, 4, v13
        v_add_u32 v12, s3, v7
        v_lshl_add_u32 v{vWq[0]}, v12, 13, v13
        v_xor_b32 v13, 128, v13
        v_lshl_add_u32 v14, v12, 13, v13
        v_add_u32 v{vWq[1]}, {2*8192-1024}, v14
        v_add_u32 v{vWq[2]}, {4*8192-2048}, v{vWq[0]}
        v_add_u32 v{vWq[3]}, {6*8192-3072}, v14
        s_lshl_b32 {sM0}, {sW}, 12
        ''')
        p.wait_lgkm0()
        p.add(self.pstamp(50))
        p.e(f's_cmp_eq_u32 {sBr}, 0')
        for (dst, pa, pb) in ((SRD_X, 8, 18), (SRD_WQ, 14, 24)):
            p.e(f's_cselect_b32 s{dst}, s{pa}, s{pb}')
            p.e(f's_cselect_b32 s{dst+1}, s{pa+1}, s{pb+1}')
        p.e(f'''
        s_mul_i32 s3, {sRg}, 114688
        s_add_u32 s{SRD_X}, s{SRD_X}, s3
        s_addc_u32 s{SRD_X+1}, s{SRD_X+1}, 0
        s_sub_u32 s{SRD_X+2}, 917504, s3
        s_mov_b32 s{SRD_X+3}, 0x20000
        s_lshl_b32 s3, {sH}, 9
        s_add_u32 s{SRD_WQ}, s{SRD_WQ}, s3
        s_addc_u32 s{SRD_WQ+1}, s{SRD_WQ+1}, 0
        s_sub_u32 s{SRD_WQ+2}, 3670016, s3
        s_mov_b32 s{SRD_WQ+3}, 0x20000
        ''')
        groups = list(sched[-1])
        S = Prog()
        q = S
        q.e(f's_cmp_eq_u32 {sBr}, 0')
        for (dst, pa, pb) in ((SRD_K, 10, 20), (SRD_V, 12, 22), (SRD_WO, 16, 26)):
            q.e(f's_cselect_b32 s{dst}, s{pa}, s{pb}')
            q.e(f's_cselect_b32 s{dst+1}, s{pa+1}, s{pb+1}')
        q.e(f'''
        s_and_b32 {sDh}, {sW}, 1
        s_lshr_b32 {sBp}, {sW}, 1
        ''')
        q.e(f'''
        v_lshrrev_b32 v12, 1, v8
        v_and_b32 v12, 7, v12
        v_xor_b32 v12, v12, v7
        v_lshlrev_b32 v12, 4, v12
        v_lshl_add_u32 v12, v8, 7, v12
        s_lshl_b32 s3, {sBp}, 13
        s_lshl_b32 s7, {sDh}, 12
        s_add_u32 s7, s7, s3
        s_add_u32 s7, s7, {BB}
        v_add_u32 v{vBx[0][0][0]}, s7, v12
        s_xor_b32 s7, s7, 4096
        v_add_u32 v{vBx[1][0][0]}, s7, v12
        ''')
        for b in range(2):
            q.e(f'''
            v_xor_b32 v{vBx[b][0][1]}, 32, v{vBx[b][0][0]}
            v_xor_b32 v{vBx[b][1][0]}, 64, v{vBx[b][0][0]}
            v_xor_b32 v{vBx[b][1][1]}, 96, v{vBx[b][0][0]}
            ''')
        q.e('''
        v_lshrrev_b32 v13, 2, v2
        v_and_b32 v13, 3, v13
        v_and_b32 v14, 1, v5
        v_and_b32 v15, 1, v2
        v_lshl_add_u32 v15, v14, 1, v15
        v_lshrrev_b32 v16, 1, v2
        v_and_b32 v16, 1, v16
        v_lshlrev_b32 v16, 3, v16
        v_lshl_add_u32 v16, v15, 4, v16
        v_lshl_add_u32 v17, v7, 3, v13
        ''')
        q.e(f'''
        s_lshl_b32 s3, {sDh}, 8
        v_lshl_add_u32 v18, v17, 9, v16
        v_add_u32 v18, s3, v18
        ''')
        for t in range(4):
            q.e(f'''
            v_xor_b32 v19, {t}, v13
            v_lshl_add_u32 v{vAw[t]}, v19, 6, v18
            ''')
        setup1 = S.ins; S = Prog(); q = S
        q.e(f'''
        s_add_u32 s3, {sM0}, {EXB}
        v_add_u32 v{vKr[0][0]}, s3, v12
        v_xor_b32 v{vKr[0][1]}, 32, v{vKr[0][0]}
        v_xor_b32 v{vKr[1][0]}, 64, v{vKr[0][0]}
        v_xor_b32 v{vKr[1][1]}, 96, v{vKr[0][0]}
        v_add_u32 v{vAv[0][0]}, {sM0}, v12
        v_xor_b32 v{vAv[0][1]}, 32, v{vAv[0][0]}
        v_xor_b32 v{vAv[1][0]}, 64, v{vAv[0][0]}
        v_xor_b32 v{vAv[1][1]}, 96, v{vAv[0][0]}
        ''')
        q.e(f'''
        s_lshl_b32 s3, {sBp}, 13
        v_lshl_add_u32 v18, v17, 7, v16
        v_add_u32 v18, s3, v18
        v_lshrrev_b32 v19, 1, v13
        v_xor_b32 v19, {sBp}, v19
        v_lshl_add_u32 v{vBo[0]}, v19, 6, v18
        v_xor_b32 v{vBo[1]}, 64, v{vBo[0]}
        ''')
        q.e(f'''
        v_lshlrev_b32 v12, 9, v9
        v_add_u32 v{vKd[0]}, v11, v12
        v_add_u32 v13, v3, v12
        v_add_u32 v{vKd[1]}, {8*512-1024}, v13
        v_add_u32 v{vKd[2]}, {16*512-2048}, v{vKd[0]}
        v_add_u32 v{vKd[3]}, {24*512-3072}, v13
        s_lshl_b32 s3, {sRg}, 5
        s_lshr_b32 s7, {sH}, 1
        s_add_u32 s3, s3, s7
        s_lshl_b32 s3, s3, 14
        s_add_u32 s{SRD_K}, s{SRD_K}, s3
        s_addc_u32 s{SRD_K+1}, s{SRD_K+1}, 0
        s_sub_u32 s{SRD_K+2}, 4194304, s3
        s_mov_b32 s{SRD_K+3}, 0x20000
        s_lshl_b32 s3, {sBp}, 1
        s_add_u32 s7, s3, {sDh}
        s_lshl_b32 {sKb[0]}, s7, 17
        s_xor_b32 s7, s7, 1
        s_lshl_b32 {sKb[1]}, s7, 17
        s_lshl_b32 s3, {sDh}, 8
        s_add_u32 {sKb[0]}, {sKb[0]}, s3
        s_add_u32 {sKb[1]}, {sKb[1]}, s3
        ''')
        q.e(f'''
        s_mov_b32 s{SRD_P}, s32
        s_mov_b32 s{SRD_P+1}, s33
        s_mov_b32 s{SRD_P+2}, {32 << 20}
        s_mov_b32 s{SRD_P+3}, 0x20000
        v_lshlrev_b32 v{vP}, 4, v2
        v_mov_b32 v{vZero}, 0
        v_mov_b32 v{vt[0]}, 0
        v_mov_b32 v{vt[1]}, 0
        v_mov_b32 v{vt[2]}, 0
        v_mov_b32 v{vt[3]}, 0
        s_lshl_b32 {sF1}, s2, 7
        s_add_u32 {sF1}, {sF1}, {WS_FLG1}
        s_lshl_b32 s3, s2, 2
        s_add_u32 s3, s3, {sW}
        s_lshl_b32 s3, s3, 7
        s_add_u32 s3, s3, {WS_FLG2}
        s_mov_b64 exec, 1
        buffer_store_dwordx4 v[{vt[0]}:{vt[3]}], v{vZero}, {srd(SRD_P)}, s3 offen sc1
        buffer_store_dword v{vZero}, v{vZero}, {srd(SRD_P)}, {sF1} offen sc1
        s_mov_b64 exec, -1
        ''')
        setup2 = S.ins; S = Prog(); q = S
        q.e(f'''
        s_and_b32 {sR4}, {sSlot}, 3
        s_lshr_b32 {sCt}, {sSlot}, 2
        s_cmp_ge_u32 {sSlot}, 28
        s_cselect_b32 {sIdle}, 1, 0
        s_cselect_b32 {sCt}, 0, {sCt}
        ''')
        if a.rot2:
            q.e(f's_add_u32 {sC0}, {sR4}, {sCt}\ns_and_b32 {sC0}, {sC0}, 3')
        else:
            q.e(f's_mov_b32 {sC0}, 0')
        if a.rotp:
            q.e(f'''
            s_mul_i32 s3, {sCt}, 11
            s_lshr_b32 s3, s3, 5
            s_mul_i32 s3, s3, 3
            s_sub_u32 s3, {sCt}, s3
            ''')
            for pos in range(3):
                q.e(f's_add_u32 s7, s3, {pos}\ns_cmp_ge_u32 s7, 3\ns_cselect_b32 {sOwn[pos]}, 3, 0\ns_sub_u32 s7, s7, {sOwn[pos]}\n'
                    f's_add_u32 s7, s7, {sX4}\ns_add_u32 s7, s7, 1\ns_and_b32 {sOwn[pos]}, s7, 3')
            q.e(f's_mov_b32 {sOwn[3]}, {sX4}')
        else:
            for pos in range(4):
                q.e(f's_add_u32 {sOwn[pos]}, {sX4}, {pos + 1}\ns_and_b32 {sOwn[pos]}, {sOwn[pos]}, 3')
        q.e(f'''
        s_lshl_b32 s3, {sR4}, 20
        s_add_u32 s{SRD_V}, s{SRD_V}, s3
        s_addc_u32 s{SRD_V+1}, s{SRD_V+1}, 0
        s_sub_u32 s{SRD_V+2}, 4194304, s3
        s_mov_b32 s{SRD_V+3}, 0x20000
        s_lshl_b32 s3, {sX4}, 1
        s_add_u32 s3, s3, {sBp}
        s_lshl_b32 s3, s3, 14
        s_lshl_b32 s7, {sDh}, 17
        s_add_u32 {sVb}, s3, s7
        s_lshl_b32 s3, {sCt}, 7
        s_add_u32 s{SRD_WO}, s{SRD_WO}, s3
        s_addc_u32 s{SRD_WO+1}, s{SRD_WO+1}, 0
        s_sub_u32 s{SRD_WO+2}, 3670016, s3
        s_mov_b32 s{SRD_WO+3}, 0x20000
        s_cmp_eq_u32 {sIdle}, 1
        s_cselect_b32 s{SRD_V+2}, 0, s{SRD_V+2}
        s_cselect_b32 s{SRD_WO+2}, 0, s{SRD_WO+2}
        ''')
        q.e(f'''
        s_lshl_b32 s3, {sX4}, 2
        s_add_u32 s3, s3, {sW}
        s_lshl_b32 s3, s3, 8
        v_add_u32 v12, s3, v9
        v_mul_u32_u24 v12, 896, v12
        v_lshlrev_b32 v13, 2, v14
        v_xor_b32 v13, v10, v13
        v_lshl_add_u32 v{vO[0]}, v13, 4, v12
        v_add_u32 v{vO[1]}, {7168-1024}, v{vO[0]}
        v_add_u32 v{vO[2]}, {2*(7168-1024)}, v{vO[0]}
        v_add_u32 v{vO[3]}, {3*(7168-1024)}, v{vO[0]}
        ''')
        q.e(f'''
        s_lshl_b32 s3, {sRg}, 2
        s_add_u32 s3, s3, {sW}
        s_lshl_b32 s3, s3, 4
        s_add_u32 s3, s3, {sH}
        s_lshl_b32 {sPst}, s3, 11
        s_lshl_b32 s3, {sBr}, 20
        s_add_u32 {sPst}, {sPst}, s3
        s_lshl_b32 s7, {sR4}, 3
        s_add_u32 s7, s7, {sDh}
        s_lshl_b32 s7, s7, 3
        s_lshl_b32 {sPld}, {sX4}, 1
        s_add_u32 {sPld}, {sPld}, {sBp}
        s_add_u32 {sPld}, {sPld}, s7
        s_lshl_b32 {sPld}, {sPld}, 12
        s_add_u32 {sPld}, {sPld}, s3
        ''')
        q.e(f'''
        s_lshl_b32 s3, {sR4}, 2
        s_add_u32 s3, s3, {sX4}
        s_mul_i32 s3, s3, {64*1792}
        s_mul_i32 s7, {sBr}, 896
        s_add_u32 s3, s3, s7
        s_lshl_b32 s7, {sCt}, 7
        s_add_u32 s3, s3, s7
        s_add_u32 s{SRD_OUT}, s28, s3
        s_addc_u32 s{SRD_OUT+1}, s29, 0
        s_sub_u32 s{SRD_OUT+2}, {1024*1792}, s3
        s_mov_b32 s{SRD_OUT+3}, 0x20000
        s_lshl_b32 s3, {sDh}, 5
        v_add_u32 v12, s3, v8
        v_mul_u32_u24 v12, 1792, v12
        s_lshl_b32 s3, {sBp}, 6
        v_lshl_add_u32 v13, v7, 4, s3
        v_add_u32 v{vOut}, v12, v13
        s_add_u32 s3, {sM0}, {EXB}
        v_add_u32 v{vExW}, s3, v{vP}
        v_xor_b32 v{vExR1}, 4096, v{vExW}
        v_xor_b32 v{vExR2}, 8192, v{vExW}
        s_mov_b32 s{SRD_DBG}, s30
        s_mov_b32 s{SRD_DBG+1}, s31
        s_mov_b32 s{SRD_DBG+2}, 256
        s_mov_b32 s{SRD_DBG+3}, 0x20000
        s_lshr_b32 s3, s2, 4
        s_lshl_b32 s3, s3, 4
        v_mov_b32 v{vFlag}, s3
        v_mov_b32 v{vOne}, 1
        s_mov_b32 s12, 0
        s_mov_b32 s13, 0
        s_mov_b32 s14, 0
        ''')
        q.e(f'''
        s_lshl_b32 s3, {sR4}, 3
        v_add_u32 v12, s3, v10
        v_lshlrev_b32 v12, 3, v12
        s_and_b32 s3, s2, 7
        v_add_u32 v12, s3, v12
        v_lshlrev_b32 v12, 7, v12
        v_add_u32 v{vF1}, {WS_FLG1}, v12
        ''')
        setup3 = S.ins
        pf = []
        if a.codepf:
            pf = [f's_getpc_b64 s[{SRD_CODE}:{SRD_CODE+1}]', f's_mov_b32 s{SRD_CODE+2}, {a.codepf}', f's_mov_b32 s{SRD_CODE+3}, 0x20000',
                  f's_lshl_b32 s3, {sSlot}, 2', f's_add_u32 s3, s3, {sW}', f's_lshl_b32 s3, s3, 1', f'v_add_u32 v20, s3, v7',
                  f'v_lshlrev_b32 v20, 7, v20', f'buffer_load_dword v{vDummy}, v20, {srd(SRD_CODE)}, 0 offen']
        p.add(self.pstamp(51))
        p.add(groups[:8])
        p.add(self.pstamp(52))
        p.add(setup1)
        p.add(self.pstamp(53))
        p.add(groups[8:])
        p.add(self.pstamp(54))
        p.add(pf)
        p.add(setup2)
        if a.kiss[0] < 0: p.add(self.dma_k(0))
        p.add(self.pstamp(55))
        p.add(setup3)

    def one_lane(self, label, instr):
        p = self.p
        p.e(f's_cmp_lg_u32 {sW}, 0')
        p.e(f's_cbranch_scc1 {label}')
        p.e('s_mov_b64 exec, 1')
        x = I(instr); x.kind = 'fake'; p.ins.append(x)
        p.e('s_mov_b64 exec, -1')
        p.e(f'{label}:')

    def body(self, sched):
        p = self.p; a = self.a
        KISSUE = {st: k for k, st in enumerate(a.kiss) if st >= 0}
        KREAD = {st: k for k, st in enumerate(a.kread)}
        for c in range(14):
            self.top(c)
            if c == a.initsig:
                self.one_lane('L_ni', f'buffer_atomic_add v{vOne}, v{vFlag}, {srd(SRD_DBG)}, 0 offen')
            dm = sched[c]
            kiss = self.dma_k(KISSUE[c]) if c in KISSUE else []
            alld = kiss + dm
            if c == a.initld:
                alld = [[f'v_and_b32 v{vt[4]}, 0xf0, v{vP}'.replace('0xf0', '240'),
                         I(f'buffer_load_dword v{vFlag}, v{vt[4]}, {srd(SRD_DBG)}, 0 offen sc1', ('init', 0))]] + alld
            h = (len(alld) + 1) // 2 if c > 0 else 0
            segA_m = self.mf_g(c - 1, 1, 1) if c > 0 else []
            p.add(spread(segA_m, self.reads_g(c, 0, 0), alld[:h]))
            tail = []
            if c in KREAD:
                w = I('s_waitcnt vmcnt(0)'); w.note = ('vm', ('k', KREAD[c]))
                tail = [w] + self.read_k(KREAD[c])
            rl = self.roll(vAw, c + 1) if c + 1 < 14 else []
            if c == 13: rl = self.setva(0)
            p.add(spread(self.mf_g(c, 0, 0), self.reads_g(c, 1, 1), alld[h:], tail + rl))
        self.top(14)
        last = self.mf_g(13, 1, 1)
        rd0 = self.reads_w(0, 0)
        dm = sched[14]
        seq = [last[0]] + rd0[:3] + [last[1]] + rd0[3:6] + [last[2]] + rd0[6:] + [last[3]] + dm[:2]
        for t in range(4):
            seq += [last[4 + t]] + self.cvt_tile(QA(1, t), QA(1, t))
        if 14 in KREAD:
            w = I('s_waitcnt vmcnt(0)'); w.note = ('vm', ('k', KREAD[14]))
            seq += [w] + self.read_k(KREAD[14])
        qk = {}
        for beta in (1, 0):
            qk[beta] = []
            for t in range(4):
                for u in range(2):
                    d = vr(SS(beta), 16)
                    cin = '0' if (t == 0 and u == 0) else d
                    qk[beta].append(f'v_mfma_f32_32x32x16_bf16 {d}, {ar(KF(beta,t,u),4)}, {vr(QA(beta,t)+4*u,4)}, {cin}')
        cv0 = [x for t in range(4) for x in self.cvt_tile(QA(0, t), QA(0, t))]
        seq += spread(qk[1], [], cv0)
        swr = [f'ds_write_b128 v{vExW}, {vr(SS(1)+4*k,4)} offset:{1024*k}' for k in range(4)]
        seq += spread(qk[0][:4], [], dm[2:]) + swr + qk[0][4:]
        p.add(seq)
        p.add(spread(self.mf_w(0, 0), self.reads_w(0, 1), [], self.roll(vBo, 15)))
        for n in range(1, 32):
            i = 14 + n; pos, cc = n >> 3, n & 7
            self.top(i, bar=(n <= 8))
            if n == a.initck:
                p.add([f'v_cmp_eq_u32 vcc, 16, v{vFlag}', 's_cmp_eq_u64 vcc, -1', 's_cbranch_scc0 L_slow0', 'L_back0:'])
            if n == a.sig:
                self.one_lane('L_nosig', f'buffer_store_dword v{vOne}, v{vZero}, {srd(SRD_P)}, {sF1} offen sc1')
                p.e(f's_cmp_eq_u32 {sIdle}, 1')
                p.e('s_cbranch_scc1 L_idle')
            rd0 = self.reads_w(n, 0)
            rd1 = self.reads_w(n, 1)
            dm = list(sched[i])
            segA = self.mf_w(n - 1, 1)
            segB = self.mf_w(n, 0)
            rl = self.roll(vBo, i + 1) if n < 7 else []
            if n % 2 == 1 and n < 31: rl = rl + self.setva((n + 1) >> 1)
            if n == 1:
                part = [f'ds_read_b128 {vr(TMP+4*k,4)}, v{vExR1} offset:{1024*k}' for k in range(4)]
                sm = self.softmax()
                st = [I(f'buffer_store_dwordx4 {vr(SS(0)+4*u,4)}, v{vP}, {srd(SRD_P)}, {sPst} offen offset:{1024*u} sc1', ('pst', 0)) for u in range(2)]
                p.add(spread(segA, part + rd0, []))
                p.add(spread(segB, rd1, sm, st + dm + rl))
                continue
            extra = []
            if n == a.flagld:
                extra.append(I(f'buffer_load_dword v{vFlag}, v{vF1}, {srd(SRD_P)}, 0 offen sc1', ('flag', 0)))
            if n == a.flagck:
                p.add([f'v_cmp_eq_u32 vcc, 1, v{vFlag}', 's_cmp_eq_u64 vcc, -1', 's_cbranch_scc0 L_slow1', 'L_back1:'])
            for (st, ps) in a.pld:
                if n == st: extra += self.pload(ps)
            for r in range(3):
                if n == a.red[r] + a.sigdelay[r]: extra = self.part_signal(r) + extra
            if n == a.finld:
                extra += [[f's_lshl_b32 s3, s2, 2', f's_add_u32 s3, s3, {sW}', 's_lshl_b32 s3, s3, 7', f's_add_u32 s3, s3, {WS_FLG2}',
                           I(f'buffer_load_dwordx4 v[{vt[0]}:{vt[3]}], v{vZero}, {srd(SRD_P)}, s3 offen sc1', ('fin', 0))]]
            if n == a.f01ld:
                extra += [[f's_lshl_b32 s3, s2, 2', f's_add_u32 s3, s3, {sW}', 's_lshl_b32 s3, s3, 7', f's_add_u32 s3, s3, {WS_FLG2}',
                           I(f'buffer_load_dwordx4 v[{vt[0]}:{vt[3]}], v{vZero}, {srd(SRD_P)}, s3 offen sc1', ('f01', 0))]]
            if n == a.f01ck:
                p.add(self.pstamp(46))
                p.add([f'v_and_b32 v{vt[4]}, v{vt[0]}, v{vt[1]}', f'v_readfirstlane_b32 s3, v{vt[4]}', 's_cmp_eq_u32 s3, 1', 's_cbranch_scc0 L_slow3', 'L_back3:'])
                p.add(self.pstamp(47))
                if not self.a.nobar: p.e('s_barrier')
                p.add(self.pstamp(48))
                extra += self.part_loads((0, 1))
            earlyA, fillB, lateB = [], [], []
            for r in range(3):
                if n == a.red[r]:
                    p.wait_lgkm0(); p.e('s_barrier')
                    earlyA = self.exr_list(r)
                    fillB = [f'v_add_f32 v{OT(0)+k}, v{OT(0)+k}, v{TMP+k}' for k in range(16)]
                    lateB = self.part_store(r)
                if n == a.red[r] - 1: lateB = lateB + self.exw_list(r)
            h = (len(dm) + 1) // 2
            if cc == 0:
                pj = pos - 1
                seq = [segA[0]] + rd0[:3] + [segA[1]] + rd0[3:6] + earlyA + [segA[2]] + rd0[6:] + [segA[3]] + dm[:h]
                k = 0
                for hp in range(2):
                    for g in range(2):
                        seq += self.cvt_tile(VW(hp, g), VWB(pj, hp, g)) + [segB[k]]; k += 1
                        if k == 1: seq += rd1
                p.add(seq)
                p.add(extra + dm[h:] + rl + fillB)
                if n in a.pv: p.add(self.pvw(a.pv[n], order='g1first'))
                p.add(lateB)
            else:
                ex = self.pvw(a.pv[n], order='g1first') if n in a.pv else []
                p.add(spread(segA, rd0 + earlyA, dm[:h]))
                p.add(spread(segB + ex, rd1, extra + fillB + dm[h:], rl + lateB))
        p.add(self.mf_w(31, 1))
        order = [(0, 1), (1, 1), (0, 0), (1, 0)]
        cv = {k: self.cvt_tile(VW(*k), VWB(3, *k)) for k in order}
        pv = self.pvw(3, order='g1first')
        p.add(cv[(0, 1)] + cv[(1, 1)])
        p.add(spread(pv[:4], [], cv[(0, 0)] + cv[(1, 0)]))
        p.add(pv[4:6])
        p.add([f'ds_write_b128 v{vExW}, {vr(OT(1)+4*k,4)} offset:{1024*k - EXB + EX1 + 0 if False else 1024*k}' for k in range(0)])
        self.exw(3)
        p.add(pv[6:])
        p.add(self.pstamp(56))
        p.add([f'v_and_b32 v{vt[4]}, v{vt[0]}, v{vt[1]}', f'v_and_b32 v{vt[4]}, v{vt[4]}, v{vt[2]}', f'v_readfirstlane_b32 s3, v{vt[4]}',
               's_cmp_eq_u32 s3, 1', 's_cbranch_scc0 L_slow2', 'L_back2:'])
        p.add(self.pstamp(57))
        p.wait_lgkm0()
        p.e('s_barrier')
        p.add(self.pstamp(58))
        self.exr(3)
        p.add(self.part_loads((2,)))
        p.add([f'v_add_f32 v{OT(0)+k}, v{OT(0)+k}, v{TMP+k}' for k in range(16)])
        for k in range(3):
            p.add([f'v_add_f32 v{OT(0)+e}, v{OT(0)+e}, v{self.PR(k)+e}' for e in range(16)])
        p.add(self.pstamp(59))
        p.add(self.cvt_tile(OT(0), OT(0)))
        for u in range(2):
            p.e(f'buffer_store_dwordx4 {vr(OT(0)+4*u,4)}, v{vOut}, {srd(SRD_OUT)}, 0 offen offset:{32*u}')

    def PR(self, k): return (64, 80, 0)[k]

    def part_loads(self, ks):
        out = []
        for k in ks:
            g = ['s_mul_i32 s91, s2, 12', f's_add_u32 s91, s91, {sW}', 's_lshl_b32 s91, s91, 12', f's_add_u32 s91, s91, {WS_PART + 16384*k}']
            for u in range(4):
                g.append(I(f'buffer_load_dwordx4 {vr(self.PR(k)+4*u,4)}, v{vP}, {srd(SRD_P)}, s91 offen offset:{1024*u} sc1'))
                out.append(g); g = []
        return out

    def exw_list(self, r):
        if r & 1:
            return [f'v_subrev_u32 v{vt[5]}, {EXB - EX1}, v{vExW}'] + [f'ds_write_b128 v{vt[5]}, {vr(OT(1)+4*k,4)} offset:{1024*k}' for k in range(4)]
        return [f'ds_write_b128 v{vExW}, {vr(OT(1)+4*k,4)} offset:{1024*k}' for k in range(4)]

    def exr_list(self, r):
        if r & 1:
            return [f'v_subrev_u32 v{vt[5]}, {EXB - EX1}, v{vExR2}'] + [f'ds_read_b128 {vr(TMP+4*k,4)}, v{vt[5]} offset:{1024*k}' for k in range(4)]
        return [f'ds_read_b128 {vr(TMP+4*k,4)}, v{vExR2} offset:{1024*k}' for k in range(4)]

    def exw(self, r): self.p.add(self.exw_list(r))
    def exr(self, r): self.p.add(self.exr_list(r))

    def part_store(self, r):
        o = ['s_and_b32 s3, s2, 0xfffffffc', f's_or_b32 s3, s3, {sOwn[r]}', 's_mul_i32 s3, s3, 12', f's_add_u32 s3, s3, {4*r}', f's_add_u32 s3, s3, {sW}',
             's_lshl_b32 s3, s3, 12', f's_add_u32 s91, s3, {WS_PART}']
        return o + [I(f'buffer_store_dwordx4 {vr(OT(0)+4*u,4)}, v{vP}, {srd(SRD_P)}, s91 offen offset:{1024*u} sc1', ('part', r)) for u in range(4)]

    def part_signal(self, r):
        w = I('s_waitcnt vmcnt(0)'); w.note = ('vm', ('part', r))
        x = I(f'buffer_store_dword v{vOne}, v{vZero}, {srd(SRD_P)}, s3 offen sc1')
        return [[w, 's_and_b32 s3, s2, 0xfffffffc', f's_or_b32 s3, s3, {sOwn[r]}', 's_lshl_b32 s3, s3, 2', f's_add_u32 s3, s3, {sW}',
                 's_lshl_b32 s3, s3, 7', f's_add_u32 s3, s3, {WS_FLG2 + 4*r}', 's_mov_b64 exec, 1', x, 's_mov_b64 exec, -1']]

    def pload(self, pos):
        out = [[f's_lshl_b32 s91, {sOwn[pos]}, 16', f's_add_u32 s91, s91, {sPld}',
                I(f'buffer_load_dwordx4 {vr(PFV(pos,0,0),4)}, v{vP}, {srd(SRD_P)}, s91 offen sc1')]]
        for k in range(1, 4):
            hp, u = k >> 1, k & 1
            out.append([I(f'buffer_load_dwordx4 {vr(PFV(pos,hp,u),4)}, v{vP}, {srd(SRD_P)}, s91 offen offset:{hp*2048 + u*1024} sc1')])
        return out

    def pvw(self, pos, order=None):
        m = []
        if order == 'g1first':
            for g in (1, 0):
                first = True
                for hp in range(2):
                    for u in range(2):
                        d = vr(OT(g), 16)
                        m.append(f'v_mfma_f32_32x32x16_bf16 {d}, {vr(VWB(pos,hp,g)+4*u,4)}, {vr(PFV(pos,hp,u),4)}, {"0" if first else d}')
                        first = False
            return m
        for hp in range(2):
            for u in range(2):
                for g in range(2):
                    d = vr(OT(g), 16)
                    cin = '0' if (hp == 0 and u == 0) else d
                    m.append(f'v_mfma_f32_32x32x16_bf16 {d}, {vr(VWB(pos,hp,g)+4*u,4)}, {vr(PFV(pos,hp,u),4)}, {cin}')
        return m

    def softmax(self):
        S = SS(0); t0, t1, t2 = vt[1], vt[2], vt[3]
        o = []
        o += [f'v_add_f32 v{S+k}, v{S+k}, v{TMP+k}' for k in range(16)]
        o.append(f'v_max3_f32 v{t0}, v{S}, v{S+1}, v{S+2}')
        for k in range(3, 15, 2):
            o.append(f'v_max3_f32 v{t0}, v{t0}, v{S+k}, v{S+k+1}')
        o.append(f'v_max_f32 v{t0}, v{t0}, v{S+15}')
        o += [f'v_mov_b32 v{t1}, v{t0}', f'v_permlane32_swap_b32 v{t0}, v{t1}', f'v_max_f32 v{t0}, v{t0}, v{t1}',
              's_mov_b32 s3, 0x3db8aa3b', f'v_mul_f32 v{t0}, s3, v{t0}']
        for k in range(16): o.append(f'v_fma_f32 v{S+k}, v{S+k}, s3, -v{t0}')
        for k in range(16): o.append(f'v_exp_f32 v{S+k}, v{S+k}')
        o.append(f'v_add_f32 v{t1}, v{S}, v{S+1}')
        o.append(f'v_add_f32 v{t2}, v{S+2}, v{S+3}')
        for k in range(4, 16, 2):
            o.append(f'v_add_f32 v{t1}, v{t1}, v{S+k}')
            o.append(f'v_add_f32 v{t2}, v{t2}, v{S+k+1}')
        o += [f'v_add_f32 v{t1}, v{t1}, v{t2}', f'v_mov_b32 v{t2}, v{t1}', f'v_permlane32_swap_b32 v{t1}, v{t2}',
              f'v_add_f32 v{t1}, v{t1}, v{t2}', f'v_rcp_f32 v{t1}, v{t1}']
        for k in range(16): o.append(f'v_mul_f32 v{S+k}, v{S+k}, v{t1}')
        o += self.cvt_tile(S, S)
        return o

    def slowpath(self):
        def spin(tag, load, test, back):
            return f'''
L_slow{tag}:
    s_mov_b32 {sCnt}, 0
L_spin{tag}:
    s_add_u32 s{12+min(tag,2)}, s{12+min(tag,2)}, {1 if tag < 3 else 64}
    {load}
    s_waitcnt vmcnt(0)
{test}
    s_cbranch_scc1 {back}
    s_add_u32 {sCnt}, {sCnt}, 1
    s_cmp_lt_u32 {sCnt}, 0x40000
    s_cbranch_scc1 L_spin{tag}
    s_branch {back}
'''
        s0 = spin(0, f'buffer_load_dword v{vFlag}, v{vt[4]}, {srd(SRD_DBG)}, 0 offen sc1',
                  f'    v_cmp_eq_u32 vcc, 16, v{vFlag}\n    s_nop 4\n    s_cmp_eq_u64 vcc, -1', 'L_back0')
        s1 = spin(1, f'buffer_load_dword v{vFlag}, v{vF1}, {srd(SRD_P)}, 0 offen sc1',
                  f'    v_cmp_eq_u32 vcc, 1, v{vFlag}\n    s_nop 4\n    s_cmp_eq_u64 vcc, -1', 'L_back1')
        pre2 = (f's_lshl_b32 s3, s2, 2\n    s_add_u32 s3, s3, {sW}\n    s_lshl_b32 s3, s3, 7\n    s_add_u32 s3, s3, {WS_FLG2}\n    '
                f'buffer_load_dwordx4 v[{vt[0]}:{vt[3]}], v{vZero}, {srd(SRD_P)}, s3 offen sc1')
        s2 = spin(2, pre2,
                  f'    v_and_b32 v{vt[4]}, v{vt[0]}, v{vt[1]}\n    v_and_b32 v{vt[4]}, v{vt[4]}, v{vt[2]}\n    s_nop 1\n'
                  f'    v_readfirstlane_b32 s3, v{vt[4]}\n    s_nop 4\n    s_cmp_eq_u32 s3, 1', 'L_back2')
        s3 = spin(3, pre2,
                  f'    v_and_b32 v{vt[4]}, v{vt[0]}, v{vt[1]}\n    s_nop 1\n'
                  f'    v_readfirstlane_b32 s3, v{vt[4]}\n    s_nop 4\n    s_cmp_eq_u32 s3, 1', 'L_back3')
        return s0 + s1 + s2 + s3

    def stamps_out(self):
        if self.a.dbgclk:
            return f'''
    s_memtime s[8:9]
    s_memrealtime s[10:11]
    s_waitcnt lgkmcnt(0)
    s_sub_u32 s8, s8, s94
    s_sub_u32 s10, s10, s92
    s_and_b32 s3, s2, 63
    s_cmp_eq_u32 s3, 0
    s_cbranch_scc0 L_nodbg
    s_cmp_eq_u32 {sW}, 0
    s_cbranch_scc0 L_nodbg
    s_lshr_b32 s3, s2, 6
    s_lshl_b32 s3, s3, 4
    s_add_u32 s3, s3, 4
    v_mov_b32 v0, s3
    v_mov_b32 v2, s8
    v_mov_b32 v3, s10
    s_mov_b64 exec, 1
    buffer_store_dwordx2 v[2:3], v0, {srd(SRD_DBG)}, 0 offen
L_nodbg:
'''
        if not self.a.stamps: return ''
        return f'''
    s_memtime s[92:93]
    s_waitcnt lgkmcnt(0)
    v_writelane_b32 v255, s92, 62
    s_lshl_b32 s13, s13, 8
    s_lshl_b32 s14, s14, 16
    s_or_b32 s12, s12, s13
    s_or_b32 s12, s12, s14
    v_writelane_b32 v255, s12, 61
    v_writelane_b32 v255, s94, 63
    s_lshl_b32 s3, s2, 2
    s_add_u32 s3, s3, {sW}
    s_lshl_b32 s3, s3, 8
    s_add_u32 s3, s3, 0x400000
    s_add_u32 s8, s32, s3
    s_addc_u32 s9, s33, 0
    s_mov_b32 s10, 256
    s_mov_b32 s11, 0x20000
    v_mbcnt_lo_u32_b32 v254, -1, 0
    v_mbcnt_hi_u32_b32 v254, -1, v254
    v_lshlrev_b32 v254, 2, v254
    buffer_store_dword v255, v254, s[8:11], 0 offen
    s_add_u32 s8, s8, 0x100000
    s_addc_u32 s9, s9, 0
    buffer_store_dword v253, v254, s[8:11], 0 offen
'''

    def build(self):
        sched = self.make_schedule()
        if self.a.verbose:
            for s in range(-1, 46):
                toks = []
                for g in sched[s]:
                    for x in g:
                        if isinstance(x, I) and x.tok: toks.append(x.tok)
                print(s, toks, file=sys.stderr)
        self.prologue(sched)
        self.body(sched)
        ins = self.p.finalize()
        owner = None; fresh = False
        for x in ins:
            if x.kind == 'salu' and ('m0', 0) in x.wr: fresh = True
            if x.kind == 'dma':
                if fresh: owner = x.tok; fresh = False
                assert owner == x.tok, (owner, x.tok, x.t)
        txt = render(ins)
        s = open(self.a.header).read()
        s += f'; @launch grid=(256,1,1) block=(256,1,1) lds={LDS_BYTES}\n'
        s += '.amdgcn_target "amdgcn-amd-amdhsa--gfx950"\n.text\n'
        s += f'.globl {NAME}\n.p2align 8\n.type {NAME},@function\n{NAME}:\n'
        s += txt
        s += 'L_fin:\n' + self.stamps_out() + '    s_endpgm\n'
        s += self.slowpath()
        s += 'L_idle:\n'
        if self.a.idlepf:
            s += f'''    s_lshl_b32 s3, {sR4}, 20
    s_sub_u32 s{SRD_V+2}, 4194304, s3
    s_lshl_b32 s3, {sX4}, 18
    s_add_u32 s3, s3, {sVb}
    v_lshlrev_b32 v0, 3, v{vP}
    buffer_load_dword v1, v0, {srd(SRD_V)}, s3 offen
    s_add_u32 s3, s3, 8192
    buffer_load_dword v2, v0, {srd(SRD_V)}, s3 offen
'''
        s += 'L_end:\n'
        if self.a.stamps: s += '    s_cmp_ge_u32 s2, 256\n    s_cbranch_scc0 L_fin\n'
        s += '    s_endpgm\n'
        s += f'''.section .rodata,"a"
.p2align 6
.amdhsa_kernel {NAME}
  .amdhsa_next_free_vgpr 512
  .amdhsa_next_free_sgpr 102
  .amdhsa_accum_offset 256
  .amdhsa_group_segment_fixed_size 0
  .amdhsa_kernarg_size 104
  .amdhsa_user_sgpr_count 2
  .amdhsa_user_sgpr_kernarg_segment_ptr 1
  .amdhsa_system_sgpr_workgroup_id_x 1
.end_amdhsa_kernel
'''
        return s, ins

def main():
    ap = argparse.ArgumentParser()
    ap.add_argument('-o', default='concat_heads__gqa_block_cached__gqa_block_cached__near_ridge.s')
    ap.add_argument('--header', default='header.txt')
    ap.add_argument('--stamps', action='store_true')
    ap.add_argument('--dbgclk', action='store_true')
    ap.add_argument('--rt', action='store_true')
    ap.add_argument('--post', action='store_true')
    ap.add_argument('--codepf', type=int, default=32768)
    ap.add_argument('--sig', type=int, default=6)
    ap.add_argument('--flagld', type=int, default=11)
    ap.add_argument('--flagck', type=int, default=13)
    ap.add_argument('--initsig', type=int, default=3)
    ap.add_argument('--initld', type=int, default=12)
    ap.add_argument('--initck', type=int, default=3)
    ap.add_argument('--finld', type=int, default=30)
    ap.add_argument('--sd2', type=int, default=3)
    ap.add_argument('--pace', type=int, default=1)
    ap.add_argument('--rotp', type=int, default=1)
    ap.add_argument('--idlepf', type=int, default=1)
    ap.add_argument('--f01ld', type=int, default=26)
    ap.add_argument('--f01ck', type=int, default=29)
    ap.add_argument('--kiss', default='3,6,9,12')
    ap.add_argument('--kread', default='5,8,11,14')
    ap.add_argument('--pv0', type=int, default=17)
    ap.add_argument('--nt', default='qkvo')
    ap.add_argument('--rot1', type=int, default=4)
    ap.add_argument('--rot2', type=int, default=1)
    ap.add_argument('--catch', type=int, default=10)
    ap.add_argument('--catch_steps', type=int, default=4)
    ap.add_argument('--nodma', action='store_true')
    ap.add_argument('--nobar', action='store_true')
    ap.add_argument('--noreads', action='store_true')
    ap.add_argument('--verbose', action='store_true')
    a = ap.parse_args()
    a.pld = [(a.flagck, 0), (a.flagck, 1), (a.pv0 + 1, 2), (a.pv0 + 3, 3)]
    a.pv = {a.pv0: 0, a.pv0 + 2: 1, 24: 2}
    a.red = [a.pv0 + 1, a.pv0 + 3, 25]
    a.kiss = [int(x) for x in a.kiss.split(',')]
    a.kread = [int(x) for x in a.kread.split(',')]
    a.sigdelay = [3, 3, a.sd2]
    g = Gen(a)
    s, ins = g.build()
    open(a.o, 'w').write(s)
    from collections import Counter
    print(Counter(x.kind for x in ins), file=sys.stderr)

if __name__ == '__main__':
    main()
```

```python
import sys, argparse
from ir import *

NAME = 'concat_heads__gqa_block_cached__gqa_block_cached__near_ridge_kernel'
SA = 16384
BB = 98304
EXB = 147456
LDS_BYTES = 163840

sW = 's4'
SRD_X, SRD_WQ, SRD_K, SRD_V, SRD_WO, SRD_P, SRD_OUT, SRD_DBG, SRD_CODE = 36, 40, 44, 48, 52, 56, 60, 64, 68
def srd(b): return f's[{b}:{b+3}]'
sM0 = 's72'
sPA, sPB = 's73', 's74'
sTa, sTb = ['s75', 's76'], ['s77', 's78']
sKb = ['s79', 's80']
sIdle, sPst, sPld, sF1 = 's81', 's82', 's83', 's84'
sBr, sSlot, sH, sRg, sR4, sCt, sX4 = 's34', 's35', 's85', 's86', 's87', 's88', 's89'
sCnt = 's90'
sC0, sVb = 's96', 's97'
sDh, sBp = 's5', 's6'
sOwn = ['s98', 's99', 's100', 's101']
WS_FLG1, WS_FLG2, WS_PART = 6 << 20, (6 << 20) + (64 << 10), 8 << 20

def QA(beta, t): return 64*beta + 16*t
def SS(beta): return 128 + 16*beta
def OT(g): return 160 + 16*g
TMP = 192
vBx = [[[160, 161], [162, 163]], [[164, 165], [166, 167]]]
vAw = [168, 169, 170, 171]
vX = [172, 173, 174, 175]; vWq = [176, 177, 178, 179]
vKr = [[180, 181], [182, 183]]
def FV(s): return 208 + 4*s
vKd = [216, 217, 218, 219]
vAv = [[220, 221], [222, 223]]
vAt = [[224, 225], [226, 227]]
vBo = [228, 229]
vO = [230, 231, 232, 233]
vP, vOut, vExW, vExR1, vExR2, vDummy, vFlag, vOne, vZero, vF1 = 234, 235, 236, 237, 238, 239, 240, 241, 242, 243
vt = [244, 245, 246, 247, 248, 249]
def VW(hp, g): return 32*hp + 16*g
def VWB(pos, hp, g): return 64 + 32*(pos & 1) + 16*hp + 8*g
def PFV(pos, hp, u): return 128 + 16*(pos & 1) + 8*hp + 4*u
def FA(f, t): return 24*f + 4*t
def FB(f, b): return 24*f + 16 + 4*b
def KF(beta, t, u): return 48 + 32*beta + 8*t + 4*u
def WF(n, s, hp, g): return (112 + 32*n + 16*s + 8*hp + 4*g) % 256
def vr(b, n=1): return f'v{b}' if n == 1 else f'v[{b}:{b+n-1}]'
def ar(b, n=1): return f'a{b}' if n == 1 else f'a[{b}:{b+n-1}]'
VSLOT = {0: (BB+SA, 10), 1: (BB+2*SA, 12), 2: (BB, 14), 3: (BB+SA, 16), 4: (4*SA, 17), 5: (5*SA, 18), 6: (0, 19), 7: (SA, 20),
         8: (BB+2*SA, 21), 9: (2*SA, 22), 10: (BB, 23), 11: (BB+SA, 24), 12: (4*SA, 25), 13: (5*SA, 26), 14: (0, 28), 15: (SA, 30)}
EX1 = 3*SA

def spread(mf, early, even, late=(), per=3):
    n = len(mf)
    if n == 0: return list(early) + list(even) + list(late)
    gaps = [[] for _ in range(n)]
    idx = 0
    g = 0
    while idx < len(early):
        for _ in range(per):
            if idx < len(early): gaps[min(g, n-1)].append(early[idx]); idx += 1
        g += 1
    first = min(g, n-1) if len(even) <= n - g or g >= n else max(0, n - len(even))
    if g >= n: first = 0
    k = len(even); m = n - first
    for j, x in enumerate(even):
        gaps[first + min(m-1, int(j * m / k))].append(x)
    out = []
    for mm, gp in zip(mf, gaps):
        out.append(mm); out += gp
    return out + list(late)

class Gen:
    def __init__(self, a):
        self.a = a
        self.p = Prog()
        self.nstamp = 0
        self.pol = {k: (' nt' if k in a.nt else '') for k in 'xqkvo'}

    def dma_A(self, i):
        slot = (i % 6) * SA
        t = sTa[i & 1]
        if self.a.nodma and i >= 6: return []
        if i < 14:
            par = i & 1
            pre = [f's_lshl_b32 {t}, {sPA}, 19']
            if par: pre += [f's_add_u32 {t}, {t}, 262144'] + self.adv7(sPA)
            regs, sr, pol = vWq, SRD_WQ, self.pol['q']
        else:
            n = i - 14; tt, par = n >> 1, n & 1
            pre = [f's_add_u32 {t}, {sC0}, {tt}', f's_and_b32 {t}, {t}, 3', f's_mul_i32 {t}, {t}, 57344']
            if par: pre += [f's_add_u32 {t}, {t}, 28672']
            regs, sr, pol = vO, SRD_WO, self.pol['o']
        f = [[f's_add_u32 m0, {sM0}, {slot}'] + pre]
        f[0].append(I(f'buffer_load_dwordx4 v{regs[0]}, {srd(sr)}, {t} offen{pol} lds', ('A', i)))
        for k in range(1, 4):
            f.append([I(f'buffer_load_dwordx4 v{regs[k]}, {srd(sr)}, {t} offen offset:{1024*k}{pol} lds', ('A', i))])
        return f

    def adv7(self, r):
        return [f's_add_u32 {r}, {r}, 1', f's_cmp_eq_u32 {r}, 7', f's_cselect_b32 {r}, 0, {r}']

    def dma_B(self, pi):
        t = sTb[pi & 1]
        if self.a.nodma and pi >= 3: return []
        if pi < 7:
            slot = BB + (pi % 3) * SA
            pre = [f's_lshl_b32 {t}, {sPB}, 7'] + self.adv7(sPB)
            regs, sr, pol = vX, SRD_X, self.pol['x']
        else:
            tt = pi - 7; pos = tt >> 2
            slot = VSLOT[tt][0]
            pre = [f's_add_u32 {t}, {sC0}, {tt & 3}', f's_and_b32 {t}, {t}, 3', f's_lshl_b32 {t}, {t}, 7', f's_add_u32 {t}, {t}, {sVb}',
                   f's_lshl_b32 s91, {sOwn[pos]}, 18', f's_add_u32 {t}, {t}, s91']
            regs, sr, pol = vKd, SRD_V, self.pol['v']
        g0 = [f's_add_u32 m0, {sM0}, {slot}'] + pre
        f = [g0 + [I(f'buffer_load_dwordx4 v{regs[0]}, {srd(sr)}, {t} offen{pol} lds', ('B', pi))]]
        for k in range(1, 4):
            pre2 = [f's_add_u32 m0, {sM0}, {slot}', 's_nop 0'] if k == 2 else []
            f.append(pre2 + [I(f'buffer_load_dwordx4 v{regs[k]}, {srd(sr)}, {t} offen offset:{1024*k}{pol} lds', ('B', pi))])
        return f

    def dma_k(self, a):
        beta, dq = 1 - (a >> 1), a & 1
        pol = self.pol['k']
        f = [[f's_add_u32 m0, {sM0}, {EXB}', f's_add_u32 s91, {sKb[beta]}, {dq*128}',
              I(f'buffer_load_dwordx4 v{vKd[0]}, {srd(SRD_K)}, s91 offen{pol} lds', ('k', a))]]
        for k in range(1, 4):
            f.append([I(f'buffer_load_dwordx4 v{vKd[k]}, {srd(SRD_K)}, s91 offen offset:{1024*k}{pol} lds', ('k', a))])
        return f

    def read_k(self, a):
        beta, dq = 1 - (a >> 1), a & 1
        return [f'ds_read_b128 {ar(KF(beta, 2*dq+tp, u), 4)}, v{vKr[tp][u]}' for tp in range(2) for u in range(2)]

    def reads_g(self, c, s, f):
        so = (c % 3) * SA
        bo = ((c >> 1) % 3) * SA
        par = c & 1
        rdA = lambda t: [f'ds_read_b64_tr_b16 {ar(FA(f,t)+2*m, 2)}, v{vAw[t]} offset:{so + s*8192 + m*2048}' for m in range(2)]
        rdB = lambda b: [f'ds_read_b128 {ar(FB(f,b), 4)}, v{vBx[b][par][s]} offset:{bo}']
        if self.a.noreads and c > 0: return []
        return rdB(1) + rdA(0) + rdA(1) + rdA(2) + rdA(3) + rdB(0)

    def mf_g(self, c, s, f):
        m = []
        for beta in (1, 0):
            for t in range(4):
                d = vr(QA(beta, t), 16)
                cin = '0' if (c == 0 and s == 0) else d
                m.append(f'v_mfma_f32_32x32x16_bf16 {d}, {ar(FA(f,t),4)}, {ar(FB(f,beta),4)}, {cin}')
        return m

    def setva(self, tt):
        base = VSLOT[tt][0]
        return [f'v_add_u32 v{vAt[par][s]}, {base}, v{vAv[par][s]}' for par in range(2) for s in range(2)]

    def reads_w(self, n, s):
        i = 14 + n
        so = (i % 3) * SA
        par = n & 1
        if self.a.noreads: return []
        r = [f'ds_read_b128 {vr(FV(s),4)}, v{vAt[par][s]}']
        if n < 8:
            for hp in range(2):
                for g in range(2):
                    r += [f'ds_read_b64_tr_b16 {ar(WF(n,s,hp,g)+2*m, 2)}, v{vBo[g]} offset:{so + hp*4096 + s*2048 + m*512}' for m in range(2)]
        return r

    def mf_w(self, n, s):
        m = []
        for hp in range(2):
            for g in range(2):
                d = vr(VW(hp, g), 16)
                cin = '0' if ((n & 7) == 0 and s == 0) else d
                m.append(f'v_mfma_f32_32x32x16_bf16 {d}, {vr(FV(s),4)}, {ar(WF(n & 7,s,hp,g),4)}, {cin}')
        return m

    def roll(self, regs, i):
        if i % 3 != 0 or i == 0: return []
        if (i % 6) == 3: return [f'v_add_u32 v{r}, {3*SA}, v{r}' for r in regs]
        return [f'v_subrev_u32 v{r}, {3*SA}, v{r}' for r in regs]

    def top(self, i, bar=True):
        p = self.p
        if self.a.stamps: p.e('s_memtime s[92:93]')
        if self.a.stamps and self.a.rt: p.e('s_memrealtime s[30:31]')
        if not (self.a.nodma and i >= 6):
            if i <= 21: p.wait_vm(('A', i))
            if i % 2 == 0: p.wait_vm(('B', i >> 1))
        if bar or self.a.stamps: p.wait_lgkm0()
        if self.a.stamps:
            k = self.nstamp; self.nstamp += 1
            if k < (32 if self.a.post else 46): p.e(f'v_writelane_b32 v255, s92, {k}')
            if k < 50 and self.a.rt: p.e(f'v_writelane_b32 v253, s30, {k}')
        if bar and not self.a.nobar: p.e('s_barrier')
        if self.a.stamps and self.a.post and i < 12:
            p.add(self.pstamp(32 + i))

    def pstamp(self, lane):
        if not self.a.stamps: return []
        return ['s_memtime s[92:93]', 's_waitcnt lgkmcnt(0)', f'v_writelane_b32 v255, s92, {lane}']

    def cvt_tile(self, src, dst):
        return [f'v_cvt_pk_bf16_f32 v{dst+k}, v{src+2*k}, v{src+2*k+1}' for k in range(8)]

    def make_schedule(self):
        a = self.a
        A = {i: self.dma_A(i) for i in range(22)}
        B = {q: self.dma_B(q) for q in range(23)}
        T = {s: [] for s in range(-1, 46)}
        def add(s, *items): T[s] += list(items)
        add(-1, 'B0', 'A0', 'A1')
        add(0, 'B1', 'A2'); add(1, 'A3', 'A4'); add(2, 'B2', 'A5'); add(3, 'A6', 'B3a', 'A7'); add(4, 'B3b', 'A8', 'A9')
        add(5, 'B4a', 'A10'); add(6, 'B4b', 'A11'); add(7, 'B5a', 'A12'); add(8, 'B5b', 'A13', 'B6a')
        add(9, 'B6b', 'A14')
        if a.pace == 1:
            add(10, 'B7'); add(11, 'A15'); add(12, 'A16'); add(13, 'B8'); add(14, 'A17', 'A18'); add(15, 'B9', 'A19'); add(16, 'A20', 'B10a')
            add(17, 'B10b', 'A21', 'B11a'); add(18, 'B11b', 'B12'); add(19, 'B13')
        else:
            add(10, 'B7a', 'A15'); add(11, 'B7b', 'A16'); add(12, 'B8a', 'A17'); add(13, 'B8b', 'A18'); add(14, 'B9a', 'A19'); add(15, 'B9b', 'A20')
            add(16, 'B10', 'A21'); add(17, 'B11'); add(18, 'B12'); add(19, 'B13')
        for t in range(7, 16): add(VSLOT[t][1], f'B{7+t}')
        sched = {}
        for s_, items in T.items():
            out = []
            for it in items:
                k = it[0]; half = it[-1] if it[-1] in 'ab' else None
                idx = int(it[1:-1] if half else it[1:])
                if k == 'A':
                    assert idx < 6 or idx - 6 < s_, it
                    out += A[idx]
                else:
                    if idx < 7: assert idx < 3 or 2*(idx - 3) + 1 < s_, it
                    else: assert s_ >= VSLOT[idx - 7][1] - (0), (it, s_)
                    g = B[idx]
                    if not g: continue
                    out += g[:2] if half == 'a' else g[2:] if half == 'b' else g
            sched[s_] = out
        return sched

    def prologue(self, sched):
        p = self.p; a = self.a
        p.e('s_cmp_ge_u32 s2, 256')
        p.e('s_cbranch_scc1 L_end')
        p.e('s_load_dwordx16 s[8:23], s[0:1], 0')
        p.e('s_load_dwordx4 s[24:27], s[0:1], 64')
        p.e('s_load_dwordx4 s[28:31], s[0:1], 80')
        p.e('s_load_dwordx2 s[32:33], s[0:1], 96')
        if a.stamps:
            p.e('v_mov_b32 v255, 0')
            p.e('v_mov_b32 v253, 0')
            p.e('s_memtime s[94:95]')
            p.e('s_memrealtime s[14:15]') if False else None
        if a.dbgclk:
            p.e('s_memtime s[94:95]')
            p.e('s_memrealtime s[92:93]')
        p.e(f'''
        v_lshrrev_b32 v1, 6, v0
        v_and_b32 v2, 63, v0
        s_and_b32 {sX4}, s2, 3
        s_bfe_u32 {sBr}, s2, 0x10002
        s_lshr_b32 {sSlot}, s2, 3
        v_readfirstlane_b32 {sW}, v1
        s_and_b32 s3, {sSlot}, 3
        s_lshl_b32 {sH}, {sX4}, 2
        s_add_u32 {sH}, {sH}, s3
        s_lshr_b32 {sRg}, {sSlot}, 2
        ''')
        if a.rot1 == 7:
            p.e(f'''
            s_lshl_b32 s3, s3, 1
            s_add_u32 s3, s3, {sRg}
            s_cmp_ge_u32 s3, 7
            s_cselect_b32 s7, 7, 0
            s_sub_u32 s3, s3, s7
            s_cmp_ge_u32 s3, 7
            s_cselect_b32 s7, 7, 0
            s_sub_u32 {sPA}, s3, s7
            s_mov_b32 {sPB}, {sPA}
            ''')
        elif a.rot1 in (2, 4):
            mul = {2: 3, 4: 2}[a.rot1]
            p.e(f'''
            s_add_u32 s3, s3, {sRg}
            s_and_b32 s3, s3, {a.rot1-1}
            s_mul_i32 {sPA}, s3, {mul}
            s_mov_b32 {sPB}, {sPA}
            ''')
        else:
            p.e(f's_mov_b32 {sPA}, 0\ns_mov_b32 {sPB}, 0')
        p.e('''
        v_lshrrev_b32 v5, 4, v2
        v_lshrrev_b32 v9, 3, v2
        v_and_b32 v10, 7, v2
        v_lshrrev_b32 v7, 5, v2
        v_and_b32 v8, 31, v2
        ''')
        p.e(f'''
        v_xor_b32 v11, v10, v5
        v_lshlrev_b32 v11, 4, v11
        v_xor_b32 v3, 64, v11
        s_lshl_b32 s3, {sW}, 5
        v_add_u32 v12, s3, v9
        v_mul_u32_u24 v12, 896, v12
        v_add_u32 v{vX[0]}, v11, v12
        v_add_u32 v13, v3, v12
        v_add_u32 v{vX[1]}, {8*896-1024}, v13
        v_add_u32 v{vX[2]}, {16*896-2048}, v{vX[0]}
        v_add_u32 v{vX[3]}, {24*896-3072}, v13
        ''')
        p.e(f'''
        s_lshl_b32 s3, {sW}, 3
        v_lshlrev_b32 v13, 2, v7
        v_xor_b32 v13, v8, v13
        v_lshlrev_b32 v13, 4, v13
        v_add_u32 v12, s3, v7
        v_lshl_add_u32 v{vWq[0]}, v12, 13, v13
        v_xor_b32 v13, 128, v13
        v_lshl_add_u32 v14, v12, 13, v13
        v_add_u32 v{vWq[1]}, {2*8192-1024}, v14
        v_add_u32 v{vWq[2]}, {4*8192-2048}, v{vWq[0]}
        v_add_u32 v{vWq[3]}, {6*8192-3072}, v14
        s_lshl_b32 {sM0}, {sW}, 12
        ''')
        p.wait_lgkm0()
        if a.stamps:
            p.e('s_memrealtime s[92:93]'); p.e('s_waitcnt lgkmcnt(0)'); p.e('v_writelane_b32 v253, s92, 62')
        p.add(self.pstamp(50))
        p.e(f's_cmp_eq_u32 {sBr}, 0')
        for (dst, pa, pb) in ((SRD_X, 8, 18), (SRD_WQ, 14, 24)):
            p.e(f's_cselect_b32 s{dst}, s{pa}, s{pb}')
            p.e(f's_cselect_b32 s{dst+1}, s{pa+1}, s{pb+1}')
        p.e(f'''
        s_mul_i32 s3, {sRg}, 114688
        s_add_u32 s{SRD_X}, s{SRD_X}, s3
        s_addc_u32 s{SRD_X+1}, s{SRD_X+1}, 0
        s_sub_u32 s{SRD_X+2}, 917504, s3
        s_mov_b32 s{SRD_X+3}, 0x20000
        s_lshl_b32 s3, {sH}, 9
        s_add_u32 s{SRD_WQ}, s{SRD_WQ}, s3
        s_addc_u32 s{SRD_WQ+1}, s{SRD_WQ+1}, 0
        s_sub_u32 s{SRD_WQ+2}, 3670016, s3
        s_mov_b32 s{SRD_WQ+3}, 0x20000
        ''')
        groups = list(sched[-1])
        S = Prog()
        q = S
        q.e(f's_cmp_eq_u32 {sBr}, 0')
        for (dst, pa, pb) in ((SRD_K, 10, 20), (SRD_V, 12, 22), (SRD_WO, 16, 26)):
            q.e(f's_cselect_b32 s{dst}, s{pa}, s{pb}')
            q.e(f's_cselect_b32 s{dst+1}, s{pa+1}, s{pb+1}')
        q.e(f'''
        s_and_b32 {sDh}, {sW}, 1
        s_lshr_b32 {sBp}, {sW}, 1
        ''')
        q.e(f'''
        v_lshrrev_b32 v12, 1, v8
        v_and_b32 v12, 7, v12
        v_xor_b32 v12, v12, v7
        v_lshlrev_b32 v12, 4, v12
        v_lshl_add_u32 v12, v8, 7, v12
        s_lshl_b32 s3, {sBp}, 13
        s_lshl_b32 s7, {sDh}, 12
        s_add_u32 s7, s7, s3
        s_add_u32 s7, s7, {BB}
        v_add_u32 v{vBx[0][0][0]}, s7, v12
        s_xor_b32 s7, s7, 4096
        v_add_u32 v{vBx[1][0][0]}, s7, v12
        ''')
        for b in range(2):
            q.e(f'''
            v_xor_b32 v{vBx[b][0][1]}, 32, v{vBx[b][0][0]}
            v_xor_b32 v{vBx[b][1][0]}, 64, v{vBx[b][0][0]}
            v_xor_b32 v{vBx[b][1][1]}, 96, v{vBx[b][0][0]}
            ''')
        q.e('''
        v_lshrrev_b32 v13, 2, v2
        v_and_b32 v13, 3, v13
        v_and_b32 v14, 1, v5
        v_and_b32 v15, 1, v2
        v_lshl_add_u32 v15, v14, 1, v15
        v_lshrrev_b32 v16, 1, v2
        v_and_b32 v16, 1, v16
        v_lshlrev_b32 v16, 3, v16
        v_lshl_add_u32 v16, v15, 4, v16
        v_lshl_add_u32 v17, v7, 3, v13
        ''')
        q.e(f'''
        s_lshl_b32 s3, {sDh}, 8
        v_lshl_add_u32 v18, v17, 9, v16
        v_add_u32 v18, s3, v18
        ''')
        for t in range(4):
            q.e(f'''
            v_xor_b32 v19, {t}, v13
            v_lshl_add_u32 v{vAw[t]}, v19, 6, v18
            ''')
        setup1 = S.ins; S = Prog(); q = S
        q.e(f'''
        s_add_u32 s3, {sM0}, {EXB}
        v_add_u32 v{vKr[0][0]}, s3, v12
        v_xor_b32 v{vKr[0][1]}, 32, v{vKr[0][0]}
        v_xor_b32 v{vKr[1][0]}, 64, v{vKr[0][0]}
        v_xor_b32 v{vKr[1][1]}, 96, v{vKr[0][0]}
        v_add_u32 v{vAv[0][0]}, {sM0}, v12
        v_xor_b32 v{vAv[0][1]}, 32, v{vAv[0][0]}
        v_xor_b32 v{vAv[1][0]}, 64, v{vAv[0][0]}
        v_xor_b32 v{vAv[1][1]}, 96, v{vAv[0][0]}
        ''')
        q.e(f'''
        s_lshl_b32 s3, {sBp}, 13
        v_lshl_add_u32 v18, v17, 7, v16
        v_add_u32 v18, s3, v18
        v_lshrrev_b32 v19, 1, v13
        v_xor_b32 v19, {sBp}, v19
        v_lshl_add_u32 v{vBo[0]}, v19, 6, v18
        v_xor_b32 v{vBo[1]}, 64, v{vBo[0]}
        ''')
        q.e(f'''
        v_lshlrev_b32 v12, 9, v9
        v_add_u32 v{vKd[0]}, v11, v12
        v_add_u32 v13, v3, v12
        v_add_u32 v{vKd[1]}, {8*512-1024}, v13
        v_add_u32 v{vKd[2]}, {16*512-2048}, v{vKd[0]}
        v_add_u32 v{vKd[3]}, {24*512-3072}, v13
        s_lshl_b32 s3, {sRg}, 5
        s_lshr_b32 s7, {sH}, 1
        s_add_u32 s3, s3, s7
        s_lshl_b32 s3, s3, 14
        s_add_u32 s{SRD_K}, s{SRD_K}, s3
        s_addc_u32 s{SRD_K+1}, s{SRD_K+1}, 0
        s_sub_u32 s{SRD_K+2}, 4194304, s3
        s_mov_b32 s{SRD_K+3}, 0x20000
        s_lshl_b32 s3, {sBp}, 1
        s_add_u32 s7, s3, {sDh}
        s_lshl_b32 {sKb[0]}, s7, 17
        s_xor_b32 s7, s7, 1
        s_lshl_b32 {sKb[1]}, s7, 17
        s_lshl_b32 s3, {sDh}, 8
        s_add_u32 {sKb[0]}, {sKb[0]}, s3
        s_add_u32 {sKb[1]}, {sKb[1]}, s3
        ''')
        q.e(f'''
        s_mov_b32 s{SRD_P}, s32
        s_mov_b32 s{SRD_P+1}, s33
        s_mov_b32 s{SRD_P+2}, {32 << 20}
        s_mov_b32 s{SRD_P+3}, 0x20000
        v_lshlrev_b32 v{vP}, 4, v2
        v_mov_b32 v{vZero}, 0
        v_mov_b32 v{vt[0]}, 0
        v_mov_b32 v{vt[1]}, 0
        v_mov_b32 v{vt[2]}, 0
        v_mov_b32 v{vt[3]}, 0
        s_lshl_b32 {sF1}, s2, 7
        s_add_u32 {sF1}, {sF1}, {WS_FLG1}
        s_lshl_b32 s3, s2, 2
        s_add_u32 s3, s3, {sW}
        s_lshl_b32 s3, s3, 7
        s_add_u32 s3, s3, {WS_FLG2}
        s_mov_b64 exec, 1
        buffer_store_dwordx4 v[{vt[0]}:{vt[3]}], v{vZero}, {srd(SRD_P)}, s3 offen sc1
        buffer_store_dword v{vZero}, v{vZero}, {srd(SRD_P)}, {sF1} offen sc1
        s_mov_b64 exec, -1
        ''')
        setup2 = S.ins; S = Prog(); q = S
        q.e(f'''
        s_and_b32 {sR4}, {sSlot}, 3
        s_lshr_b32 {sCt}, {sSlot}, 2
        s_cmp_ge_u32 {sSlot}, 28
        s_cselect_b32 {sIdle}, 1, 0
        s_cselect_b32 {sCt}, 0, {sCt}
        ''')
        if a.rot2:
            q.e(f's_add_u32 {sC0}, {sR4}, {sCt}\ns_and_b32 {sC0}, {sC0}, 3')
        else:
            q.e(f's_mov_b32 {sC0}, 0')
        if a.rotp:
            q.e(f'''
            s_mul_i32 s3, {sCt}, 11
            s_lshr_b32 s3, s3, 5
            s_mul_i32 s3, s3, 3
            s_sub_u32 s3, {sCt}, s3
            ''')
            for pos in range(3):
                q.e(f's_add_u32 s7, s3, {pos}\ns_cmp_ge_u32 s7, 3\ns_cselect_b32 {sOwn[pos]}, 3, 0\ns_sub_u32 s7, s7, {sOwn[pos]}\n'
                    f's_add_u32 s7, s7, {sX4}\ns_add_u32 s7, s7, 1\ns_and_b32 {sOwn[pos]}, s7, 3')
            q.e(f's_mov_b32 {sOwn[3]}, {sX4}')
        else:
            for pos in range(4):
                q.e(f's_add_u32 {sOwn[pos]}, {sX4}, {pos + 1}\ns_and_b32 {sOwn[pos]}, {sOwn[pos]}, 3')
        q.e(f'''
        s_lshl_b32 s3, {sR4}, 20
        s_add_u32 s{SRD_V}, s{SRD_V}, s3
        s_addc_u32 s{SRD_V+1}, s{SRD_V+1}, 0
        s_sub_u32 s{SRD_V+2}, 4194304, s3
        s_mov_b32 s{SRD_V+3}, 0x20000
        s_lshl_b32 s3, {sX4}, 1
        s_add_u32 s3, s3, {sBp}
        s_lshl_b32 s3, s3, 14
        s_lshl_b32 s7, {sDh}, 17
        s_add_u32 {sVb}, s3, s7
        s_lshl_b32 s3, {sCt}, 7
        s_add_u32 s{SRD_WO}, s{SRD_WO}, s3
        s_addc_u32 s{SRD_WO+1}, s{SRD_WO+1}, 0
        s_sub_u32 s{SRD_WO+2}, 3670016, s3
        s_mov_b32 s{SRD_WO+3}, 0x20000
        s_cmp_eq_u32 {sIdle}, 1
        s_cselect_b32 s{SRD_V+2}, 0, s{SRD_V+2}
        s_cselect_b32 s{SRD_WO+2}, 0, s{SRD_WO+2}
        ''')
        q.e(f'''
        s_lshl_b32 s3, {sX4}, 2
        s_add_u32 s3, s3, {sW}
        s_lshl_b32 s3, s3, 8
        v_add_u32 v12, s3, v9
        v_mul_u32_u24 v12, 896, v12
        v_lshlrev_b32 v13, 2, v14
        v_xor_b32 v13, v10, v13
        v_lshl_add_u32 v{vO[0]}, v13, 4, v12
        v_add_u32 v{vO[1]}, {7168-1024}, v{vO[0]}
        v_add_u32 v{vO[2]}, {2*(7168-1024)}, v{vO[0]}
        v_add_u32 v{vO[3]}, {3*(7168-1024)}, v{vO[0]}
        ''')
        q.e(f'''
        s_lshl_b32 s3, {sRg}, 2
        s_add_u32 s3, s3, {sW}
        s_lshl_b32 s3, s3, 4
        s_add_u32 s3, s3, {sH}
        s_lshl_b32 {sPst}, s3, 11
        s_lshl_b32 s3, {sBr}, 20
        s_add_u32 {sPst}, {sPst}, s3
        s_lshl_b32 s7, {sR4}, 3
        s_add_u32 s7, s7, {sDh}
        s_lshl_b32 s7, s7, 3
        s_lshl_b32 {sPld}, {sX4}, 1
        s_add_u32 {sPld}, {sPld}, {sBp}
        s_add_u32 {sPld}, {sPld}, s7
        s_lshl_b32 {sPld}, {sPld}, 12
        s_add_u32 {sPld}, {sPld}, s3
        ''')
        q.e(f'''
        s_lshl_b32 s3, {sR4}, 2
        s_add_u32 s3, s3, {sX4}
        s_mul_i32 s3, s3, {64*1792}
        s_mul_i32 s7, {sBr}, 896
        s_add_u32 s3, s3, s7
        s_lshl_b32 s7, {sCt}, 7
        s_add_u32 s3, s3, s7
        s_add_u32 s{SRD_OUT}, s28, s3
        s_addc_u32 s{SRD_OUT+1}, s29, 0
        s_sub_u32 s{SRD_OUT+2}, {1024*1792}, s3
        s_mov_b32 s{SRD_OUT+3}, 0x20000
        s_lshl_b32 s3, {sDh}, 5
        v_add_u32 v12, s3, v8
        v_mul_u32_u24 v12, 1792, v12
        s_lshl_b32 s3, {sBp}, 6
        v_lshl_add_u32 v13, v7, 4, s3
        v_add_u32 v{vOut}, v12, v13
        s_add_u32 s3, {sM0}, {EXB}
        v_add_u32 v{vExW}, s3, v{vP}
        v_xor_b32 v{vExR1}, 4096, v{vExW}
        v_xor_b32 v{vExR2}, 8192, v{vExW}
        s_mov_b32 s{SRD_DBG}, s30
        s_mov_b32 s{SRD_DBG+1}, s31
        s_mov_b32 s{SRD_DBG+2}, 256
        s_mov_b32 s{SRD_DBG+3}, 0x20000
        s_lshr_b32 s3, s2, 4
        s_lshl_b32 s3, s3, 4
        v_mov_b32 v{vFlag}, s3
        v_mov_b32 v{vOne}, 1
        s_mov_b32 s12, 0
        s_mov_b32 s13, 0
        s_mov_b32 s14, 0
        ''')
        q.e(f'''
        s_lshl_b32 s3, {sR4}, 3
        v_add_u32 v12, s3, v10
        v_lshlrev_b32 v12, 3, v12
        s_and_b32 s3, s2, 7
        v_add_u32 v12, s3, v12
        v_lshlrev_b32 v12, 7, v12
        v_add_u32 v{vF1}, {WS_FLG1}, v12
        ''')
        setup3 = S.ins
        pf = []
        if a.codepf:
            pf = [f's_getpc_b64 s[{SRD_CODE}:{SRD_CODE+1}]', f's_mov_b32 s{SRD_CODE+2}, {a.codepf}', f's_mov_b32 s{SRD_CODE+3}, 0x20000',
                  f's_lshl_b32 s3, {sSlot}, 2', f's_add_u32 s3, s3, {sW}', f's_lshl_b32 s3, s3, 1', f'v_add_u32 v20, s3, v7',
                  f'v_lshlrev_b32 v20, 7, v20', f'buffer_load_dword v{vDummy}, v20, {srd(SRD_CODE)}, 0 offen']
        p.add(self.pstamp(51))
        p.add(groups[:8])
        p.add(self.pstamp(52))
        p.add(setup1)
        p.add(self.pstamp(53))
        p.add(groups[8:])
        p.add(self.pstamp(54))
        p.add(pf)
        p.add(setup2)
        if a.kiss[0] < 0: p.add(self.dma_k(0))
        p.add(self.pstamp(55))
        p.add(setup3)

    def one_lane(self, label, instr):
        p = self.p
        p.e(f's_cmp_lg_u32 {sW}, 0')
        p.e(f's_cbranch_scc1 {label}')
        p.e('s_mov_b64 exec, 1')
        x = I(instr); x.kind = 'fake'; p.ins.append(x)
        p.e('s_mov_b64 exec, -1')
        p.e(f'{label}:')

    def body(self, sched):
        p = self.p; a = self.a
        KISSUE = {st: k for k, st in enumerate(a.kiss) if st >= 0}
        KREAD = {st: k for k, st in enumerate(a.kread)}
        for c in range(14):
            self.top(c)
            if c == a.initsig:
                self.one_lane('L_ni', f'buffer_atomic_add v{vOne}, v{vFlag}, {srd(SRD_DBG)}, 0 offen')
            dm = sched[c]
            kiss = self.dma_k(KISSUE[c]) if c in KISSUE else []
            alld = kiss + dm
            if c == a.initld:
                alld = [[f'v_and_b32 v{vt[4]}, 0xf0, v{vP}'.replace('0xf0', '240'),
                         I(f'buffer_load_dword v{vFlag}, v{vt[4]}, {srd(SRD_DBG)}, 0 offen sc1', ('init', 0))]] + alld
            h = (len(alld) + 1) // 2 if c > 0 else 0
            segA_m = self.mf_g(c - 1, 1, 1) if c > 0 else []
            p.add(spread(segA_m, self.reads_g(c, 0, 0), alld[:h]))
            tail = []
            if c in KREAD:
                w = I('s_waitcnt vmcnt(0)'); w.note = ('vm', ('k', KREAD[c]))
                tail = [w] + self.read_k(KREAD[c])
            rl = self.roll(vAw, c + 1) if c + 1 < 14 else []
            if c == 13: rl = self.setva(0)
            p.add(spread(self.mf_g(c, 0, 0), self.reads_g(c, 1, 1), alld[h:], tail + rl))
        self.top(14)
        last = self.mf_g(13, 1, 1)
        rd0 = self.reads_w(0, 0)
        dm = sched[14]
        seq = [last[0]] + rd0[:3] + [last[1]] + rd0[3:6] + [last[2]] + rd0[6:] + [last[3]] + dm[:2]
        for t in range(4):
            seq += [last[4 + t]] + self.cvt_tile(QA(1, t), QA(1, t))
        if 14 in KREAD:
            w = I('s_waitcnt vmcnt(0)'); w.note = ('vm', ('k', KREAD[14]))
            seq += [w] + self.read_k(KREAD[14])
        qk = {}
        for beta in (1, 0):
            qk[beta] = []
            for t in range(4):
                for u in range(2):
                    d = vr(SS(beta), 16)
                    cin = '0' if (t == 0 and u == 0) else d
                    qk[beta].append(f'v_mfma_f32_32x32x16_bf16 {d}, {ar(KF(beta,t,u),4)}, {vr(QA(beta,t)+4*u,4)}, {cin}')
        cv0 = [x for t in range(4) for x in self.cvt_tile(QA(0, t), QA(0, t))]
        seq += spread(qk[1], [], cv0)
        swr = [f'ds_write_b128 v{vExW}, {vr(SS(1)+4*k,4)} offset:{1024*k}' for k in range(4)]
        seq += spread(qk[0][:4], [], dm[2:]) + swr + qk[0][4:]
        p.add(seq)
        p.add(spread(self.mf_w(0, 0), self.reads_w(0, 1), [], self.roll(vBo, 15)))
        for n in range(1, 32):
            i = 14 + n; pos, cc = n >> 3, n & 7
            self.top(i, bar=(n <= 8))
            if n == a.initck:
                p.add([f'v_cmp_eq_u32 vcc, 16, v{vFlag}', 's_cmp_eq_u64 vcc, -1', 's_cbranch_scc0 L_slow0', 'L_back0:'])
            if n == a.sig:
                self.one_lane('L_nosig', f'buffer_store_dword v{vOne}, v{vZero}, {srd(SRD_P)}, {sF1} offen sc1')
                p.e(f's_cmp_eq_u32 {sIdle}, 1')
                p.e('s_cbranch_scc1 L_idle')
            rd0 = self.reads_w(n, 0)
            rd1 = self.reads_w(n, 1)
            dm = list(sched[i])
            segA = self.mf_w(n - 1, 1)
            segB = self.mf_w(n, 0)
            rl = self.roll(vBo, i + 1) if n < 7 else []
            if n % 2 == 1 and n < 31: rl = rl + self.setva((n + 1) >> 1)
            if n == 1:
                part = [f'ds_read_b128 {vr(TMP+4*k,4)}, v{vExR1} offset:{1024*k}' for k in range(4)]
                sm = self.softmax()
                st = [I(f'buffer_store_dwordx4 {vr(SS(0)+4*u,4)}, v{vP}, {srd(SRD_P)}, {sPst} offen offset:{1024*u} sc1', ('pst', 0)) for u in range(2)]
                p.add(spread(segA, part + rd0, []))
                p.add(spread(segB, rd1, sm, st + dm + rl))
                continue
            extra = []
            if n == a.flagld:
                extra.append(I(f'buffer_load_dword v{vFlag}, v{vF1}, {srd(SRD_P)}, 0 offen sc1', ('flag', 0)))
            if n == a.flagck:
                p.add([f'v_cmp_eq_u32 vcc, 1, v{vFlag}', 's_cmp_eq_u64 vcc, -1', 's_cbranch_scc0 L_slow1', 'L_back1:'])
            for (st, ps) in a.pld:
                if n == st: extra += self.pload(ps)
            for r in range(3):
                if n == a.red[r] + a.sigdelay[r]: extra = self.part_signal(r) + extra
            if n == a.finld:
                extra += [[f's_lshl_b32 s3, s2, 2', f's_add_u32 s3, s3, {sW}', 's_lshl_b32 s3, s3, 7', f's_add_u32 s3, s3, {WS_FLG2}',
                           I(f'buffer_load_dwordx4 v[{vt[0]}:{vt[3]}], v{vZero}, {srd(SRD_P)}, s3 offen sc1', ('fin', 0))]]
            if n == a.f01ld:
                extra += [[f's_lshl_b32 s3, s2, 2', f's_add_u32 s3, s3, {sW}', 's_lshl_b32 s3, s3, 7', f's_add_u32 s3, s3, {WS_FLG2}',
                           I(f'buffer_load_dwordx4 v[{vt[0]}:{vt[3]}], v{vZero}, {srd(SRD_P)}, s3 offen sc1', ('f01', 0))]]
            if n == a.f01ck:
                p.add(self.pstamp(46))
                p.add([f'v_and_b32 v{vt[4]}, v{vt[0]}, v{vt[1]}', f'v_readfirstlane_b32 s3, v{vt[4]}', 's_cmp_eq_u32 s3, 1', 's_cbranch_scc0 L_slow3', 'L_back3:'])
                p.add(self.pstamp(47))
                if not self.a.nobar: p.e('s_barrier')
                p.add(self.pstamp(48))
                extra += self.part_loads((0, 1))
            earlyA, fillB, lateB = [], [], []
            for r in range(3):
                if n == a.red[r]:
                    p.wait_lgkm0(); p.e('s_barrier')
                    earlyA = self.exr_list(r)
                    fillB = [f'v_add_f32 v{OT(0)+k}, v{OT(0)+k}, v{TMP+k}' for k in range(16)]
                    lateB = self.part_store(r)
                if n == a.red[r] - 1: lateB = lateB + self.exw_list(r)
            h = (len(dm) + 1) // 2
            if cc == 0:
                pj = pos - 1
                seq = [segA[0]] + rd0[:3] + [segA[1]] + rd0[3:6] + earlyA + [segA[2]] + rd0[6:] + [segA[3]] + dm[:h]
                k = 0
                for hp in range(2):
                    for g in range(2):
                        seq += self.cvt_tile(VW(hp, g), VWB(pj, hp, g)) + [segB[k]]; k += 1
                        if k == 1: seq += rd1
                p.add(seq)
                p.add(extra + dm[h:] + rl + fillB)
                if n in a.pv: p.add(self.pvw(a.pv[n], order='g1first'))
                p.add(lateB)
            else:
                ex = self.pvw(a.pv[n], order='g1first') if n in a.pv else []
                p.add(spread(segA, rd0 + earlyA, dm[:h]))
                p.add(spread(segB + ex, rd1, extra + fillB + dm[h:], rl + lateB))
        p.add(self.mf_w(31, 1))
        order = [(0, 1), (1, 1), (0, 0), (1, 0)]
        cv = {k: self.cvt_tile(VW(*k), VWB(3, *k)) for k in order}
        pv = self.pvw(3, order='g1first')
        p.add(cv[(0, 1)] + cv[(1, 1)])
        p.add(spread(pv[:4], [], cv[(0, 0)] + cv[(1, 0)]))
        p.add(pv[4:6])
        p.add([f'ds_write_b128 v{vExW}, {vr(OT(1)+4*k,4)} offset:{1024*k - EXB + EX1 + 0 if False else 1024*k}' for k in range(0)])
        self.exw(3)
        p.add(pv[6:])
        p.add(self.pstamp(56))
        p.add([f'v_and_b32 v{vt[4]}, v{vt[0]}, v{vt[1]}', f'v_and_b32 v{vt[4]}, v{vt[4]}, v{vt[2]}', f'v_readfirstlane_b32 s3, v{vt[4]}',
               's_cmp_eq_u32 s3, 1', 's_cbranch_scc0 L_slow2', 'L_back2:'])
        p.add(self.pstamp(57))
        p.wait_lgkm0()
        p.e('s_barrier')
        p.add(self.pstamp(58))
        self.exr(3)
        p.add(self.part_loads((2,)))
        p.add([f'v_add_f32 v{OT(0)+k}, v{OT(0)+k}, v{TMP+k}' for k in range(16)])
        for k in range(3):
            p.add([f'v_add_f32 v{OT(0)+e}, v{OT(0)+e}, v{self.PR(k)+e}' for e in range(16)])
        p.add(self.pstamp(59))
        p.add(self.cvt_tile(OT(0), OT(0)))
        for u in range(2):
            p.e(f'buffer_store_dwordx4 {vr(OT(0)+4*u,4)}, v{vOut}, {srd(SRD_OUT)}, 0 offen offset:{32*u}')

    def PR(self, k): return (64, 80, 0)[k]

    def part_loads(self, ks):
        out = []
        for k in ks:
            g = ['s_mul_i32 s91, s2, 12', f's_add_u32 s91, s91, {sW}', 's_lshl_b32 s91, s91, 12', f's_add_u32 s91, s91, {WS_PART + 16384*k}']
            for u in range(4):
                g.append(I(f'buffer_load_dwordx4 {vr(self.PR(k)+4*u,4)}, v{vP}, {srd(SRD_P)}, s91 offen offset:{1024*u} sc1'))
                out.append(g); g = []
        return out

    def exw_list(self, r):
        if r & 1:
            return [f'v_subrev_u32 v{vt[5]}, {EXB - EX1}, v{vExW}'] + [f'ds_write_b128 v{vt[5]}, {vr(OT(1)+4*k,4)} offset:{1024*k}' for k in range(4)]
        return [f'ds_write_b128 v{vExW}, {vr(OT(1)+4*k,4)} offset:{1024*k}' for k in range(4)]

    def exr_list(self, r):
        if r & 1:
            return [f'v_subrev_u32 v{vt[5]}, {EXB - EX1}, v{vExR2}'] + [f'ds_read_b128 {vr(TMP+4*k,4)}, v{vt[5]} offset:{1024*k}' for k in range(4)]
        return [f'ds_read_b128 {vr(TMP+4*k,4)}, v{vExR2} offset:{1024*k}' for k in range(4)]

    def exw(self, r): self.p.add(self.exw_list(r))
    def exr(self, r): self.p.add(self.exr_list(r))

    def part_store(self, r):
        o = ['s_and_b32 s3, s2, 0xfffffffc', f's_or_b32 s3, s3, {sOwn[r]}', 's_mul_i32 s3, s3, 12', f's_add_u32 s3, s3, {4*r}', f's_add_u32 s3, s3, {sW}',
             's_lshl_b32 s3, s3, 12', f's_add_u32 s91, s3, {WS_PART}']
        return o + [I(f'buffer_store_dwordx4 {vr(OT(0)+4*u,4)}, v{vP}, {srd(SRD_P)}, s91 offen offset:{1024*u} sc1', ('part', r)) for u in range(4)]

    def part_signal(self, r):
        w = I('s_waitcnt vmcnt(0)'); w.note = ('vm', ('part', r))
        x = I(f'buffer_store_dword v{vOne}, v{vZero}, {srd(SRD_P)}, s3 offen sc1')
        return [[w, 's_and_b32 s3, s2, 0xfffffffc', f's_or_b32 s3, s3, {sOwn[r]}', 's_lshl_b32 s3, s3, 2', f's_add_u32 s3, s3, {sW}',
                 's_lshl_b32 s3, s3, 7', f's_add_u32 s3, s3, {WS_FLG2 + 4*r}', 's_mov_b64 exec, 1', x, 's_mov_b64 exec, -1']]

    def pload(self, pos):
        out = [[f's_lshl_b32 s91, {sOwn[pos]}, 16', f's_add_u32 s91, s91, {sPld}',
                I(f'buffer_load_dwordx4 {vr(PFV(pos,0,0),4)}, v{vP}, {srd(SRD_P)}, s91 offen sc1')]]
        for k in range(1, 4):
            hp, u = k >> 1, k & 1
            out.append([I(f'buffer_load_dwordx4 {vr(PFV(pos,hp,u),4)}, v{vP}, {srd(SRD_P)}, s91 offen offset:{hp*2048 + u*1024} sc1')])
        return out

    def pvw(self, pos, order=None):
        m = []
        if order == 'g1first':
            for g in (1, 0):
                first = True
                for hp in range(2):
                    for u in range(2):
                        d = vr(OT(g), 16)
                        m.append(f'v_mfma_f32_32x32x16_bf16 {d}, {vr(VWB(pos,hp,g)+4*u,4)}, {vr(PFV(pos,hp,u),4)}, {"0" if first else d}')
                        first = False
            return m
        for hp in range(2):
            for u in range(2):
                for g in range(2):
                    d = vr(OT(g), 16)
                    cin = '0' if (hp == 0 and u == 0) else d
                    m.append(f'v_mfma_f32_32x32x16_bf16 {d}, {vr(VWB(pos,hp,g)+4*u,4)}, {vr(PFV(pos,hp,u),4)}, {cin}')
        return m

    def softmax(self):
        S = SS(0); t0, t1, t2 = vt[1], vt[2], vt[3]
        o = []
        o += [f'v_add_f32 v{S+k}, v{S+k}, v{TMP+k}' for k in range(16)]
        o.append(f'v_max3_f32 v{t0}, v{S}, v{S+1}, v{S+2}')
        for k in range(3, 15, 2):
            o.append(f'v_max3_f32 v{t0}, v{t0}, v{S+k}, v{S+k+1}')
        o.append(f'v_max_f32 v{t0}, v{t0}, v{S+15}')
        o += [f'v_mov_b32 v{t1}, v{t0}', f'v_permlane32_swap_b32 v{t0}, v{t1}', f'v_max_f32 v{t0}, v{t0}, v{t1}',
              's_mov_b32 s3, 0x3db8aa3b', f'v_mul_f32 v{t0}, s3, v{t0}']
        for k in range(16): o.append(f'v_fma_f32 v{S+k}, v{S+k}, s3, -v{t0}')
        for k in range(16): o.append(f'v_exp_f32 v{S+k}, v{S+k}')
        o.append(f'v_add_f32 v{t1}, v{S}, v{S+1}')
        o.append(f'v_add_f32 v{t2}, v{S+2}, v{S+3}')
        for k in range(4, 16, 2):
            o.append(f'v_add_f32 v{t1}, v{t1}, v{S+k}')
            o.append(f'v_add_f32 v{t2}, v{t2}, v{S+k+1}')
        o += [f'v_add_f32 v{t1}, v{t1}, v{t2}', f'v_mov_b32 v{t2}, v{t1}', f'v_permlane32_swap_b32 v{t1}, v{t2}',
              f'v_add_f32 v{t1}, v{t1}, v{t2}', f'v_rcp_f32 v{t1}, v{t1}']
        for k in range(16): o.append(f'v_mul_f32 v{S+k}, v{S+k}, v{t1}')
        o += self.cvt_tile(S, S)
        return o

    def slowpath(self):
        def spin(tag, load, test, back):
            return f'''
L_slow{tag}:
    s_mov_b32 {sCnt}, 0
L_spin{tag}:
    s_add_u32 s{12+min(tag,2)}, s{12+min(tag,2)}, {1 if tag < 3 else 64}
    {load}
    s_waitcnt vmcnt(0)
{test}
    s_cbranch_scc1 {back}
    s_add_u32 {sCnt}, {sCnt}, 1
    s_cmp_lt_u32 {sCnt}, 0x40000
    s_cbranch_scc1 L_spin{tag}
    s_branch {back}
'''
        s0 = spin(0, f'buffer_load_dword v{vFlag}, v{vt[4]}, {srd(SRD_DBG)}, 0 offen sc1',
                  f'    v_cmp_eq_u32 vcc, 16, v{vFlag}\n    s_nop 4\n    s_cmp_eq_u64 vcc, -1', 'L_back0')
        s1 = spin(1, f'buffer_load_dword v{vFlag}, v{vF1}, {srd(SRD_P)}, 0 offen sc1',
                  f'    v_cmp_eq_u32 vcc, 1, v{vFlag}\n    s_nop 4\n    s_cmp_eq_u64 vcc, -1', 'L_back1')
        pre2 = (f's_lshl_b32 s3, s2, 2\n    s_add_u32 s3, s3, {sW}\n    s_lshl_b32 s3, s3, 7\n    s_add_u32 s3, s3, {WS_FLG2}\n    '
                f'buffer_load_dwordx4 v[{vt[0]}:{vt[3]}], v{vZero}, {srd(SRD_P)}, s3 offen sc1')
        s2 = spin(2, pre2,
                  f'    v_and_b32 v{vt[4]}, v{vt[0]}, v{vt[1]}\n    v_and_b32 v{vt[4]}, v{vt[4]}, v{vt[2]}\n    s_nop 1\n'
                  f'    v_readfirstlane_b32 s3, v{vt[4]}\n    s_nop 4\n    s_cmp_eq_u32 s3, 1', 'L_back2')
        s3 = spin(3, pre2,
                  f'    v_and_b32 v{vt[4]}, v{vt[0]}, v{vt[1]}\n    s_nop 1\n'
                  f'    v_readfirstlane_b32 s3, v{vt[4]}\n    s_nop 4\n    s_cmp_eq_u32 s3, 1', 'L_back3')
        return s0 + s1 + s2 + s3

    def stamps_out(self):
        if self.a.dbgclk:
            return f'''
    s_memtime s[8:9]
    s_memrealtime s[10:11]
    s_waitcnt lgkmcnt(0)
    s_sub_u32 s8, s8, s94
    s_sub_u32 s10, s10, s92
    s_and_b32 s3, s2, 63
    s_cmp_eq_u32 s3, 0
    s_cbranch_scc0 L_nodbg
    s_cmp_eq_u32 {sW}, 0
    s_cbranch_scc0 L_nodbg
    s_lshr_b32 s3, s2, 6
    s_lshl_b32 s3, s3, 4
    s_add_u32 s3, s3, 4
    v_mov_b32 v0, s3
    v_mov_b32 v2, s8
    v_mov_b32 v3, s10
    s_mov_b64 exec, 1
    buffer_store_dwordx2 v[2:3], v0, {srd(SRD_DBG)}, 0 offen
L_nodbg:
'''
        if not self.a.stamps: return ''
        return f'''
    s_memrealtime s[92:93]
    s_waitcnt lgkmcnt(0)
    v_writelane_b32 v253, s92, 63
    s_memtime s[92:93]
    s_waitcnt lgkmcnt(0)
    v_writelane_b32 v255, s92, 62
    s_lshl_b32 s13, s13, 8
    s_lshl_b32 s14, s14, 16
    s_or_b32 s12, s12, s13
    s_or_b32 s12, s12, s14
    v_writelane_b32 v255, s12, 61
    v_writelane_b32 v255, s94, 63
    s_lshl_b32 s3, s2, 2
    s_add_u32 s3, s3, {sW}
    s_lshl_b32 s3, s3, 8
    s_add_u32 s3, s3, 0x400000
    s_add_u32 s8, s32, s3
    s_addc_u32 s9, s33, 0
    s_mov_b32 s10, 256
    s_mov_b32 s11, 0x20000
    v_mbcnt_lo_u32_b32 v254, -1, 0
    v_mbcnt_hi_u32_b32 v254, -1, v254
    v_lshlrev_b32 v254, 2, v254
    buffer_store_dword v255, v254, s[8:11], 0 offen
    s_add_u32 s8, s8, 0x100000
    s_addc_u32 s9, s9, 0
    buffer_store_dword v253, v254, s[8:11], 0 offen
'''

    def build(self):
        sched = self.make_schedule()
        if self.a.verbose:
            for s in range(-1, 46):
                toks = []
                for g in sched[s]:
                    for x in g:
                        if isinstance(x, I) and x.tok: toks.append(x.tok)
                print(s, toks, file=sys.stderr)
        self.prologue(sched)
        self.body(sched)
        ins = self.p.finalize()
        owner = None; fresh = False
        for x in ins:
            if x.kind == 'salu' and ('m0', 0) in x.wr: fresh = True
            if x.kind == 'dma':
                if fresh: owner = x.tok; fresh = False
                assert owner == x.tok, (owner, x.tok, x.t)
        txt = render(ins)
        s = open(self.a.header).read()
        s += f'; @launch grid=(256,1,1) block=(256,1,1) lds={LDS_BYTES}\n'
        s += '.amdgcn_target "amdgcn-amd-amdhsa--gfx950"\n.text\n'
        s += f'.globl {NAME}\n.p2align 8\n.type {NAME},@function\n{NAME}:\n'
        s += txt
        s += 'L_fin:\n' + self.stamps_out() + '    s_endpgm\n'
        s += self.slowpath()
        s += 'L_idle:\n'
        if self.a.idlepf:
            s += f'''    s_lshl_b32 s3, {sR4}, 20
    s_sub_u32 s{SRD_V+2}, 4194304, s3
    s_lshl_b32 s3, {sX4}, 18
    s_add_u32 s3, s3, {sVb}
    v_lshlrev_b32 v0, 3, v{vP}
    buffer_load_dword v1, v0, {srd(SRD_V)}, s3 offen
    s_add_u32 s3, s3, 8192
    buffer_load_dword v2, v0, {srd(SRD_V)}, s3 offen
'''
        s += 'L_end:\n'
        if self.a.stamps: s += '    s_cmp_ge_u32 s2, 256\n    s_cbranch_scc0 L_fin\n'
        s += '    s_endpgm\n'
        s += f'''.section .rodata,"a"
.p2align 6
.amdhsa_kernel {NAME}
  .amdhsa_next_free_vgpr 512
  .amdhsa_next_free_sgpr 102
  .amdhsa_accum_offset 256
  .amdhsa_group_segment_fixed_size 0
  .amdhsa_kernarg_size 104
  .amdhsa_user_sgpr_count 2
  .amdhsa_user_sgpr_kernarg_segment_ptr 1
  .amdhsa_system_sgpr_workgroup_id_x 1
.end_amdhsa_kernel
'''
        return s, ins

def main():
    ap = argparse.ArgumentParser()
    ap.add_argument('-o', default='concat_heads__gqa_block_cached__gqa_block_cached__near_ridge.s')
    ap.add_argument('--header', default='header.txt')
    ap.add_argument('--stamps', action='store_true')
    ap.add_argument('--dbgclk', action='store_true')
    ap.add_argument('--rt', action='store_true')
    ap.add_argument('--post', action='store_true')
    ap.add_argument('--codepf', type=int, default=32768)
    ap.add_argument('--sig', type=int, default=6)
    ap.add_argument('--flagld', type=int, default=11)
    ap.add_argument('--flagck', type=int, default=13)
    ap.add_argument('--initsig', type=int, default=3)
    ap.add_argument('--initld', type=int, default=12)
    ap.add_argument('--initck', type=int, default=3)
    ap.add_argument('--finld', type=int, default=30)
    ap.add_argument('--sd2', type=int, default=3)
    ap.add_argument('--pace', type=int, default=1)
    ap.add_argument('--rotp', type=int, default=1)
    ap.add_argument('--idlepf', type=int, default=1)
    ap.add_argument('--f01ld', type=int, default=26)
    ap.add_argument('--f01ck', type=int, default=29)
    ap.add_argument('--kiss', default='3,6,9,12')
    ap.add_argument('--kread', default='5,8,11,14')
    ap.add_argument('--pv0', type=int, default=17)
    ap.add_argument('--nt', default='qkvo')
    ap.add_argument('--rot1', type=int, default=4)
    ap.add_argument('--rot2', type=int, default=1)
    ap.add_argument('--catch', type=int, default=10)
    ap.add_argument('--catch_steps', type=int, default=4)
    ap.add_argument('--nodma', action='store_true')
    ap.add_argument('--nobar', action='store_true')
    ap.add_argument('--noreads', action='store_true')
    ap.add_argument('--verbose', action='store_true')
    a = ap.parse_args()
    a.pld = [(a.flagck, 0), (a.flagck, 1), (a.pv0 + 1, 2), (a.pv0 + 3, 3)]
    a.pv = {a.pv0: 0, a.pv0 + 2: 1, 24: 2}
    a.red = [a.pv0 + 1, a.pv0 + 3, 25]
    a.kiss = [int(x) for x in a.kiss.split(',')]
    a.kread = [int(x) for x in a.kread.split(',')]
    a.sigdelay = [3, 3, a.sd2]
    g = Gen(a)
    s, ins = g.build()
    open(a.o, 'w').write(s)
    from collections import Counter
    print(Counter(x.kind for x in ins), file=sys.stderr)

if __name__ == '__main__':
    main()
```

```python
import sys, argparse
from ir import *

NAME = 'concat_heads__gqa_block_cached__gqa_block_cached__near_ridge_kernel'
SA = 16384
BB = 98304
EXB = 147456
LDS_BYTES = 163840

sW = 's4'
SRD_X, SRD_WQ, SRD_K, SRD_V, SRD_WO, SRD_P, SRD_OUT, SRD_DBG, SRD_CODE = 36, 40, 44, 48, 52, 56, 60, 64, 68
def srd(b): return f's[{b}:{b+3}]'
sM0 = 's72'
sPA, sPB = 's73', 's74'
sTa, sTb = ['s75', 's76'], ['s77', 's78']
sKb = ['s79', 's80']
sIdle, sPst, sPld, sF1 = 's81', 's82', 's83', 's84'
sBr, sSlot, sH, sRg, sR4, sCt, sX4 = 's34', 's35', 's85', 's86', 's87', 's88', 's89'
sCnt = 's90'
sC0, sVb = 's96', 's97'
sDh, sBp = 's5', 's6'
sOwn = ['s98', 's99', 's100', 's101']
WS_FLG1, WS_FLG2, WS_PART = 6 << 20, (6 << 20) + (64 << 10), 8 << 20

def QA(beta, t): return 64*beta + 16*t
def SS(beta): return 128 + 16*beta
def OT(g): return 160 + 16*g
TMP = 192
vBx = [[[160, 161], [162, 163]], [[164, 165], [166, 167]]]
vAw = [168, 169, 170, 171]
vX = [172, 173, 174, 175]; vWq = [176, 177, 178, 179]
vKr = [[180, 181], [182, 183]]
def FV(s): return 208 + 4*s
vKd = [216, 217, 218, 219]
vAv = [[220, 221], [222, 223]]
vAt = [[224, 225], [226, 227]]
vBo = [228, 229]
vO = [230, 231, 232, 233]
vP, vOut, vExW, vExR1, vExR2, vDummy, vFlag, vOne, vZero, vF1 = 234, 235, 236, 237, 238, 239, 240, 241, 242, 243
vt = [244, 245, 246, 247, 248, 249]
def VW(hp, g): return 32*hp + 16*g
def VWB(pos, hp, g): return 64 + 32*(pos & 1) + 16*hp + 8*g
def PFV(pos, hp, u): return 128 + 16*(pos & 1) + 8*hp + 4*u
def FA(f, t): return 24*f + 4*t
def FB(f, b): return 24*f + 16 + 4*b
def KF(beta, t, u): return 48 + 32*beta + 8*t + 4*u
def WF(n, s, hp, g): return (112 + 32*n + 16*s + 8*hp + 4*g) % 256
def vr(b, n=1): return f'v{b}' if n == 1 else f'v[{b}:{b+n-1}]'
def ar(b, n=1): return f'a{b}' if n == 1 else f'a[{b}:{b+n-1}]'
VSLOT = {0: (BB+SA, 10), 1: (BB+2*SA, 12), 2: (BB, 14), 3: (BB+SA, 16), 4: (4*SA, 17), 5: (5*SA, 18), 6: (0, 19), 7: (SA, 20),
         8: (BB+2*SA, 21), 9: (2*SA, 22), 10: (BB, 23), 11: (BB+SA, 24), 12: (4*SA, 25), 13: (5*SA, 26), 14: (0, 28), 15: (SA, 30)}
EX1 = 3*SA

def spread(mf, early, even, late=(), per=3):
    n = len(mf)
    if n == 0: return list(early) + list(even) + list(late)
    gaps = [[] for _ in range(n)]
    idx = 0
    g = 0
    while idx < len(early):
        for _ in range(per):
            if idx < len(early): gaps[min(g, n-1)].append(early[idx]); idx += 1
        g += 1
    first = min(g, n-1) if len(even) <= n - g or g >= n else max(0, n - len(even))
    if g >= n: first = 0
    k = len(even); m = n - first
    for j, x in enumerate(even):
        gaps[first + min(m-1, int(j * m / k))].append(x)
    out = []
    for mm, gp in zip(mf, gaps):
        out.append(mm); out += gp
    return out + list(late)

class Gen:
    def __init__(self, a):
        self.a = a
        self.p = Prog()
        self.nstamp = 0
        self.pol = {k: (' nt' if k in a.nt else '') for k in 'xqkvo'}

    def dma_A(self, i):
        slot = (i % 6) * SA
        t = sTa[i & 1]
        if self.a.nodma and i >= 6: return []
        if i < 14:
            par = i & 1
            pre = [f's_lshl_b32 {t}, {sPA}, 19']
            if par: pre += [f's_add_u32 {t}, {t}, 262144'] + self.adv7(sPA)
            regs, sr, pol = vWq, SRD_WQ, self.pol['q']
        else:
            n = i - 14; tt, par = n >> 1, n & 1
            pre = [f's_add_u32 {t}, {sC0}, {tt}', f's_and_b32 {t}, {t}, 3', f's_mul_i32 {t}, {t}, 57344']
            if par: pre += [f's_add_u32 {t}, {t}, 28672']
            regs, sr, pol = vO, SRD_WO, self.pol['o']
        f = [[f's_add_u32 m0, {sM0}, {slot}'] + pre]
        f[0].append(I(f'buffer_load_dwordx4 v{regs[0]}, {srd(sr)}, {t} offen{pol} lds', ('A', i)))
        for k in range(1, 4):
            f.append([I(f'buffer_load_dwordx4 v{regs[k]}, {srd(sr)}, {t} offen offset:{1024*k}{pol} lds', ('A', i))])
        return f

    def adv7(self, r):
        return [f's_add_u32 {r}, {r}, 1', f's_cmp_eq_u32 {r}, 7', f's_cselect_b32 {r}, 0, {r}']

    def dma_B(self, pi):
        t = sTb[pi & 1]
        if self.a.nodma and pi >= 3: return []
        if pi < 7:
            slot = BB + (pi % 3) * SA
            pre = [f's_lshl_b32 {t}, {sPB}, 7'] + self.adv7(sPB)
            regs, sr, pol = vX, SRD_X, self.pol['x']
        else:
            tt = pi - 7; pos = tt >> 2
            slot = VSLOT[tt][0]
            pre = [f's_add_u32 {t}, {sC0}, {tt & 3}', f's_and_b32 {t}, {t}, 3', f's_lshl_b32 {t}, {t}, 7', f's_add_u32 {t}, {t}, {sVb}',
                   f's_lshl_b32 s91, {sOwn[pos]}, 18', f's_add_u32 {t}, {t}, s91']
            regs, sr, pol = vKd, SRD_V, self.pol['v']
        g0 = [f's_add_u32 m0, {sM0}, {slot}'] + pre
        f = [g0 + [I(f'buffer_load_dwordx4 v{regs[0]}, {srd(sr)}, {t} offen{pol} lds', ('B', pi))]]
        for k in range(1, 4):
            pre2 = [f's_add_u32 m0, {sM0}, {slot}', 's_nop 0'] if k == 2 else []
            f.append(pre2 + [I(f'buffer_load_dwordx4 v{regs[k]}, {srd(sr)}, {t} offen offset:{1024*k}{pol} lds', ('B', pi))])
        return f

    def dma_k(self, a):
        beta, dq = 1 - (a >> 1), a & 1
        pol = self.pol['k']
        f = [[f's_add_u32 m0, {sM0}, {EXB}', f's_add_u32 s91, {sKb[beta]}, {dq*128}',
              I(f'buffer_load_dwordx4 v{vKd[0]}, {srd(SRD_K)}, s91 offen{pol} lds', ('k', a))]]
        for k in range(1, 4):
            f.append([I(f'buffer_load_dwordx4 v{vKd[k]}, {srd(SRD_K)}, s91 offen offset:{1024*k}{pol} lds', ('k', a))])
        return f

    def read_k(self, a):
        beta, dq = 1 - (a >> 1), a & 1
        return [f'ds_read_b128 {ar(KF(beta, 2*dq+tp, u), 4)}, v{vKr[tp][u]}' for tp in range(2) for u in range(2)]

    def reads_g(self, c, s, f):
        so = (c % 3) * SA
        bo = ((c >> 1) % 3) * SA
        par = c & 1
        rdA = lambda t: [f'ds_read_b64_tr_b16 {ar(FA(f,t)+2*m, 2)}, v{vAw[t]} offset:{so + s*8192 + m*2048}' for m in range(2)]
        rdB = lambda b: [f'ds_read_b128 {ar(FB(f,b), 4)}, v{vBx[b][par][s]} offset:{bo}']
        if self.a.noreads and c > 0: return []
        return rdB(1) + rdA(0) + rdA(1) + rdA(2) + rdA(3) + rdB(0)

    def mf_g(self, c, s, f):
        m = []
        for beta in (1, 0):
            for t in range(4):
                d = vr(QA(beta, t), 16)
                cin = '0' if (c == 0 and s == 0) else d
                m.append(f'v_mfma_f32_32x32x16_bf16 {d}, {ar(FA(f,t),4)}, {ar(FB(f,beta),4)}, {cin}')
        return m

    def setva(self, tt):
        base = VSLOT[tt][0]
        return [f'v_add_u32 v{vAt[par][s]}, {base}, v{vAv[par][s]}' for par in range(2) for s in range(2)]

    def reads_w(self, n, s):
        i = 14 + n
        so = (i % 3) * SA
        par = n & 1
        if self.a.noreads: return []
        r = [f'ds_read_b128 {vr(FV(s),4)}, v{vAt[par][s]}']
        if n < 8:
            for hp in range(2):
                for g in range(2):
                    r += [f'ds_read_b64_tr_b16 {ar(WF(n,s,hp,g)+2*m, 2)}, v{vBo[g]} offset:{so + hp*4096 + s*2048 + m*512}' for m in range(2)]
        return r

    def mf_w(self, n, s):
        m = []
        for hp in range(2):
            for g in range(2):
                d = vr(VW(hp, g), 16)
                cin = '0' if ((n & 7) == 0 and s == 0) else d
                m.append(f'v_mfma_f32_32x32x16_bf16 {d}, {vr(FV(s),4)}, {ar(WF(n & 7,s,hp,g),4)}, {cin}')
        return m

    def roll(self, regs, i):
        if i % 3 != 0 or i == 0: return []
        if (i % 6) == 3: return [f'v_add_u32 v{r}, {3*SA}, v{r}' for r in regs]
        return [f'v_subrev_u32 v{r}, {3*SA}, v{r}' for r in regs]

    def top(self, i, bar=True):
        p = self.p
        if self.a.stamps: p.e('s_memtime s[92:93]')
        if self.a.stamps and self.a.rt: p.e('s_memrealtime s[30:31]')
        if not (self.a.nodma and i >= 6):
            if i <= 21: p.wait_vm(('A', i))
            if i % 2 == 0: p.wait_vm(('B', i >> 1))
        if bar or self.a.stamps: p.wait_lgkm0()
        if self.a.stamps:
            k = self.nstamp; self.nstamp += 1
            if k < (32 if self.a.post else 46): p.e(f'v_writelane_b32 v255, s92, {k}')
            if k < 50 and self.a.rt: p.e(f'v_writelane_b32 v253, s30, {k}')
        if bar and not self.a.nobar: p.e('s_barrier')
        if self.a.stamps and self.a.post and i < 12:
            p.add(self.pstamp(32 + i))

    def pstamp(self, lane):
        if not self.a.stamps: return []
        return ['s_memtime s[92:93]', 's_waitcnt lgkmcnt(0)', f'v_writelane_b32 v255, s92, {lane}']

    def cvt_tile(self, src, dst):
        return [f'v_cvt_pk_bf16_f32 v{dst+k}, v{src+2*k}, v{src+2*k+1}' for k in range(8)]

    def make_schedule(self):
        a = self.a
        A = {i: self.dma_A(i) for i in range(22)}
        B = {q: self.dma_B(q) for q in range(23)}
        T = {s: [] for s in range(-1, 46)}
        def add(s, *items): T[s] += list(items)
        add(-1, 'B0', 'A0', 'A1')
        add(0, 'B1', 'A2'); add(1, 'A3', 'A4'); add(2, 'B2', 'A5'); add(3, 'A6', 'B3a', 'A7'); add(4, 'B3b', 'A8', 'A9')
        add(5, 'B4a', 'A10'); add(6, 'B4b', 'A11'); add(7, 'B5a', 'A12'); add(8, 'B5b', 'A13', 'B6a')
        add(9, 'B6b', 'A14')
        if a.pace == 1:
            add(10, 'B7'); add(11, 'A15'); add(12, 'A16'); add(13, 'B8'); add(14, 'A17', 'A18'); add(15, 'B9', 'A19'); add(16, 'A20', 'B10a')
            add(17, 'B10b', 'A21', 'B11a'); add(18, 'B11b', 'B12'); add(19, 'B13')
        else:
            add(10, 'B7a', 'A15'); add(11, 'B7b', 'A16'); add(12, 'B8a', 'A17'); add(13, 'B8b', 'A18'); add(14, 'B9a', 'A19'); add(15, 'B9b', 'A20')
            add(16, 'B10', 'A21'); add(17, 'B11'); add(18, 'B12'); add(19, 'B13')
        for t in range(7, 16): add(VSLOT[t][1], f'B{7+t}')
        sched = {}
        for s_, items in T.items():
            out = []
            for it in items:
                k = it[0]; half = it[-1] if it[-1] in 'ab' else None
                idx = int(it[1:-1] if half else it[1:])
                if k == 'A':
                    assert idx < 6 or idx - 6 < s_, it
                    out += A[idx]
                else:
                    if idx < 7: assert idx < 3 or 2*(idx - 3) + 1 < s_, it
                    else: assert s_ >= VSLOT[idx - 7][1] - (0), (it, s_)
                    g = B[idx]
                    if not g: continue
                    out += g[:2] if half == 'a' else g[2:] if half == 'b' else g
            sched[s_] = out
        return sched

    def prologue(self, sched):
        p = self.p; a = self.a
        p.e('s_cmp_ge_u32 s2, 256')
        p.e('s_cbranch_scc1 L_end')
        p.e('s_load_dwordx16 s[8:23], s[0:1], 0')
        p.e('s_load_dwordx4 s[24:27], s[0:1], 64')
        p.e('s_load_dwordx4 s[28:31], s[0:1], 80')
        p.e('s_load_dwordx2 s[32:33], s[0:1], 96')
        if a.stamps:
            p.e('v_mov_b32 v255, 0')
            p.e('v_mov_b32 v253, 0')
            p.e('s_memtime s[94:95]')
            p.e('s_memrealtime s[14:15]') if False else None
        if a.dbgclk:
            p.e('s_memtime s[94:95]')
            p.e('s_memrealtime s[92:93]')
        p.e(f'''
        v_lshrrev_b32 v1, 6, v0
        v_and_b32 v2, 63, v0
        s_and_b32 {sX4}, s2, 3
        s_bfe_u32 {sBr}, s2, 0x10002
        s_lshr_b32 {sSlot}, s2, 3
        v_readfirstlane_b32 {sW}, v1
        s_and_b32 s3, {sSlot}, 3
        s_lshl_b32 {sH}, {sX4}, 2
        s_add_u32 {sH}, {sH}, s3
        s_lshr_b32 {sRg}, {sSlot}, 2
        ''')
        if a.rot1 == 7:
            p.e(f'''
            s_lshl_b32 s3, s3, 1
            s_add_u32 s3, s3, {sRg}
            s_cmp_ge_u32 s3, 7
            s_cselect_b32 s7, 7, 0
            s_sub_u32 s3, s3, s7
            s_cmp_ge_u32 s3, 7
            s_cselect_b32 s7, 7, 0
            s_sub_u32 {sPA}, s3, s7
            s_mov_b32 {sPB}, {sPA}
            ''')
        elif a.rot1 in (2, 4):
            mul = {2: 3, 4: 2}[a.rot1]
            p.e(f'''
            s_add_u32 s3, s3, {sRg}
            s_and_b32 s3, s3, {a.rot1-1}
            s_mul_i32 {sPA}, s3, {mul}
            s_mov_b32 {sPB}, {sPA}
            ''')
        else:
            p.e(f's_mov_b32 {sPA}, 0\ns_mov_b32 {sPB}, 0')
        p.e('''
        v_lshrrev_b32 v5, 4, v2
        v_lshrrev_b32 v9, 3, v2
        v_and_b32 v10, 7, v2
        v_lshrrev_b32 v7, 5, v2
        v_and_b32 v8, 31, v2
        ''')
        p.e(f'''
        v_xor_b32 v11, v10, v5
        v_lshlrev_b32 v11, 4, v11
        v_xor_b32 v3, 64, v11
        s_lshl_b32 s3, {sW}, 5
        v_add_u32 v12, s3, v9
        v_mul_u32_u24 v12, 896, v12
        v_add_u32 v{vX[0]}, v11, v12
        v_add_u32 v13, v3, v12
        v_add_u32 v{vX[1]}, {8*896-1024}, v13
        v_add_u32 v{vX[2]}, {16*896-2048}, v{vX[0]}
        v_add_u32 v{vX[3]}, {24*896-3072}, v13
        ''')
        p.e(f'''
        s_lshl_b32 s3, {sW}, 3
        v_lshlrev_b32 v13, 2, v7
        v_xor_b32 v13, v8, v13
        v_lshlrev_b32 v13, 4, v13
        v_add_u32 v12, s3, v7
        v_lshl_add_u32 v{vWq[0]}, v12, 13, v13
        v_xor_b32 v13, 128, v13
        v_lshl_add_u32 v14, v12, 13, v13
        v_add_u32 v{vWq[1]}, {2*8192-1024}, v14
        v_add_u32 v{vWq[2]}, {4*8192-2048}, v{vWq[0]}
        v_add_u32 v{vWq[3]}, {6*8192-3072}, v14
        s_lshl_b32 {sM0}, {sW}, 12
        ''')
        p.wait_lgkm0()
        if a.stamps:
            p.e('s_memrealtime s[92:93]'); p.e('s_waitcnt lgkmcnt(0)'); p.e('v_writelane_b32 v253, s92, 62')
        p.add(self.pstamp(50))
        p.e(f's_cmp_eq_u32 {sBr}, 0')
        for (dst, pa, pb) in ((SRD_X, 8, 18), (SRD_WQ, 14, 24)):
            p.e(f's_cselect_b32 s{dst}, s{pa}, s{pb}')
            p.e(f's_cselect_b32 s{dst+1}, s{pa+1}, s{pb+1}')
        p.e(f'''
        s_mul_i32 s3, {sRg}, 114688
        s_add_u32 s{SRD_X}, s{SRD_X}, s3
        s_addc_u32 s{SRD_X+1}, s{SRD_X+1}, 0
        s_sub_u32 s{SRD_X+2}, 917504, s3
        s_mov_b32 s{SRD_X+3}, 0x20000
        s_lshl_b32 s3, {sH}, 9
        s_add_u32 s{SRD_WQ}, s{SRD_WQ}, s3
        s_addc_u32 s{SRD_WQ+1}, s{SRD_WQ+1}, 0
        s_sub_u32 s{SRD_WQ+2}, 3670016, s3
        s_mov_b32 s{SRD_WQ+3}, 0x20000
        ''')
        groups = list(sched[-1])
        S = Prog()
        q = S
        q.e(f's_cmp_eq_u32 {sBr}, 0')
        for (dst, pa, pb) in ((SRD_K, 10, 20), (SRD_V, 12, 22), (SRD_WO, 16, 26)):
            q.e(f's_cselect_b32 s{dst}, s{pa}, s{pb}')
            q.e(f's_cselect_b32 s{dst+1}, s{pa+1}, s{pb+1}')
        q.e(f'''
        s_and_b32 {sDh}, {sW}, 1
        s_lshr_b32 {sBp}, {sW}, 1
        ''')
        q.e(f'''
        v_lshrrev_b32 v12, 1, v8
        v_and_b32 v12, 7, v12
        v_xor_b32 v12, v12, v7
        v_lshlrev_b32 v12, 4, v12
        v_lshl_add_u32 v12, v8, 7, v12
        s_lshl_b32 s3, {sBp}, 13
        s_lshl_b32 s7, {sDh}, 12
        s_add_u32 s7, s7, s3
        s_add_u32 s7, s7, {BB}
        v_add_u32 v{vBx[0][0][0]}, s7, v12
        s_xor_b32 s7, s7, 4096
        v_add_u32 v{vBx[1][0][0]}, s7, v12
        ''')
        for b in range(2):
            q.e(f'''
            v_xor_b32 v{vBx[b][0][1]}, 32, v{vBx[b][0][0]}
            v_xor_b32 v{vBx[b][1][0]}, 64, v{vBx[b][0][0]}
            v_xor_b32 v{vBx[b][1][1]}, 96, v{vBx[b][0][0]}
            ''')
        q.e('''
        v_lshrrev_b32 v13, 2, v2
        v_and_b32 v13, 3, v13
        v_and_b32 v14, 1, v5
        v_and_b32 v15, 1, v2
        v_lshl_add_u32 v15, v14, 1, v15
        v_lshrrev_b32 v16, 1, v2
        v_and_b32 v16, 1, v16
        v_lshlrev_b32 v16, 3, v16
        v_lshl_add_u32 v16, v15, 4, v16
        v_lshl_add_u32 v17, v7, 3, v13
        ''')
        q.e(f'''
        s_lshl_b32 s3, {sDh}, 8
        v_lshl_add_u32 v18, v17, 9, v16
        v_add_u32 v18, s3, v18
        ''')
        for t in range(4):
            q.e(f'''
            v_xor_b32 v19, {t}, v13
            v_lshl_add_u32 v{vAw[t]}, v19, 6, v18
            ''')
        setup1 = S.ins; S = Prog(); q = S
        q.e(f'''
        s_add_u32 s3, {sM0}, {EXB}
        v_add_u32 v{vKr[0][0]}, s3, v12
        v_xor_b32 v{vKr[0][1]}, 32, v{vKr[0][0]}
        v_xor_b32 v{vKr[1][0]}, 64, v{vKr[0][0]}
        v_xor_b32 v{vKr[1][1]}, 96, v{vKr[0][0]}
        v_add_u32 v{vAv[0][0]}, {sM0}, v12
        v_xor_b32 v{vAv[0][1]}, 32, v{vAv[0][0]}
        v_xor_b32 v{vAv[1][0]}, 64, v{vAv[0][0]}
        v_xor_b32 v{vAv[1][1]}, 96, v{vAv[0][0]}
        ''')
        q.e(f'''
        s_lshl_b32 s3, {sBp}, 13
        v_lshl_add_u32 v18, v17, 7, v16
        v_add_u32 v18, s3, v18
        v_lshrrev_b32 v19, 1, v13
        v_xor_b32 v19, {sBp}, v19
        v_lshl_add_u32 v{vBo[0]}, v19, 6, v18
        v_xor_b32 v{vBo[1]}, 64, v{vBo[0]}
        ''')
        q.e(f'''
        v_lshlrev_b32 v12, 9, v9
        v_add_u32 v{vKd[0]}, v11, v12
        v_add_u32 v13, v3, v12
        v_add_u32 v{vKd[1]}, {8*512-1024}, v13
        v_add_u32 v{vKd[2]}, {16*512-2048}, v{vKd[0]}
        v_add_u32 v{vKd[3]}, {24*512-3072}, v13
        s_lshl_b32 s3, {sRg}, 5
        s_lshr_b32 s7, {sH}, 1
        s_add_u32 s3, s3, s7
        s_lshl_b32 s3, s3, 14
        s_add_u32 s{SRD_K}, s{SRD_K}, s3
        s_addc_u32 s{SRD_K+1}, s{SRD_K+1}, 0
        s_sub_u32 s{SRD_K+2}, 4194304, s3
        s_mov_b32 s{SRD_K+3}, 0x20000
        s_lshl_b32 s3, {sBp}, 1
        s_add_u32 s7, s3, {sDh}
        s_lshl_b32 {sKb[0]}, s7, 17
        s_xor_b32 s7, s7, 1
        s_lshl_b32 {sKb[1]}, s7, 17
        s_lshl_b32 s3, {sDh}, 8
        s_add_u32 {sKb[0]}, {sKb[0]}, s3
        s_add_u32 {sKb[1]}, {sKb[1]}, s3
        ''')
        q.e(f'''
        s_mov_b32 s{SRD_P}, s32
        s_mov_b32 s{SRD_P+1}, s33
        s_mov_b32 s{SRD_P+2}, {32 << 20}
        s_mov_b32 s{SRD_P+3}, 0x20000
        v_lshlrev_b32 v{vP}, 4, v2
        v_mov_b32 v{vZero}, 0
        v_mov_b32 v{vt[0]}, 0
        v_mov_b32 v{vt[1]}, 0
        v_mov_b32 v{vt[2]}, 0
        v_mov_b32 v{vt[3]}, 0
        s_lshl_b32 {sF1}, s2, 7
        s_add_u32 {sF1}, {sF1}, {WS_FLG1}
        s_lshl_b32 s3, s2, 2
        s_add_u32 s3, s3, {sW}
        s_lshl_b32 s3, s3, 7
        s_add_u32 s3, s3, {WS_FLG2}
        s_mov_b64 exec, 1
        buffer_store_dwordx4 v[{vt[0]}:{vt[3]}], v{vZero}, {srd(SRD_P)}, s3 offen sc1
        buffer_store_dword v{vZero}, v{vZero}, {srd(SRD_P)}, {sF1} offen sc1
        s_mov_b64 exec, -1
        ''')
        setup2 = S.ins; S = Prog(); q = S
        q.e(f'''
        s_and_b32 {sR4}, {sSlot}, 3
        s_lshr_b32 {sCt}, {sSlot}, 2
        s_cmp_ge_u32 {sSlot}, 28
        s_cselect_b32 {sIdle}, 1, 0
        s_cselect_b32 {sCt}, 0, {sCt}
        ''')
        if a.rot2:
            q.e(f's_add_u32 {sC0}, {sR4}, {sCt}\ns_and_b32 {sC0}, {sC0}, 3')
        else:
            q.e(f's_mov_b32 {sC0}, 0')
        if a.rotp:
            q.e(f'''
            s_mul_i32 s3, {sCt}, 11
            s_lshr_b32 s3, s3, 5
            s_mul_i32 s3, s3, 3
            s_sub_u32 s3, {sCt}, s3
            ''')
            for pos in range(3):
                q.e(f's_add_u32 s7, s3, {pos}\ns_cmp_ge_u32 s7, 3\ns_cselect_b32 {sOwn[pos]}, 3, 0\ns_sub_u32 s7, s7, {sOwn[pos]}\n'
                    f's_add_u32 s7, s7, {sX4}\ns_add_u32 s7, s7, 1\ns_and_b32 {sOwn[pos]}, s7, 3')
            q.e(f's_mov_b32 {sOwn[3]}, {sX4}')
        else:
            for pos in range(4):
                q.e(f's_add_u32 {sOwn[pos]}, {sX4}, {pos + 1}\ns_and_b32 {sOwn[pos]}, {sOwn[pos]}, 3')
        q.e(f'''
        s_lshl_b32 s3, {sR4}, 20
        s_add_u32 s{SRD_V}, s{SRD_V}, s3
        s_addc_u32 s{SRD_V+1}, s{SRD_V+1}, 0
        s_sub_u32 s{SRD_V+2}, 4194304, s3
        s_mov_b32 s{SRD_V+3}, 0x20000
        s_lshl_b32 s3, {sX4}, 1
        s_add_u32 s3, s3, {sBp}
        s_lshl_b32 s3, s3, 14
        s_lshl_b32 s7, {sDh}, 17
        s_add_u32 {sVb}, s3, s7
        s_lshl_b32 s3, {sCt}, 7
        s_add_u32 s{SRD_WO}, s{SRD_WO}, s3
        s_addc_u32 s{SRD_WO+1}, s{SRD_WO+1}, 0
        s_sub_u32 s{SRD_WO+2}, 3670016, s3
        s_mov_b32 s{SRD_WO+3}, 0x20000
        s_cmp_eq_u32 {sIdle}, 1
        s_cselect_b32 s{SRD_V+2}, 0, s{SRD_V+2}
        s_cselect_b32 s{SRD_WO+2}, 0, s{SRD_WO+2}
        ''')
        q.e(f'''
        s_lshl_b32 s3, {sX4}, 2
        s_add_u32 s3, s3, {sW}
        s_lshl_b32 s3, s3, 8
        v_add_u32 v12, s3, v9
        v_mul_u32_u24 v12, 896, v12
        v_lshlrev_b32 v13, 2, v14
        v_xor_b32 v13, v10, v13
        v_lshl_add_u32 v{vO[0]}, v13, 4, v12
        v_add_u32 v{vO[1]}, {7168-1024}, v{vO[0]}
        v_add_u32 v{vO[2]}, {2*(7168-1024)}, v{vO[0]}
        v_add_u32 v{vO[3]}, {3*(7168-1024)}, v{vO[0]}
        ''')
        q.e(f'''
        s_lshl_b32 s3, {sRg}, 2
        s_add_u32 s3, s3, {sW}
        s_lshl_b32 s3, s3, 4
        s_add_u32 s3, s3, {sH}
        s_lshl_b32 {sPst}, s3, 11
        s_lshl_b32 s3, {sBr}, 20
        s_add_u32 {sPst}, {sPst}, s3
        s_lshl_b32 s7, {sR4}, 3
        s_add_u32 s7, s7, {sDh}
        s_lshl_b32 s7, s7, 3
        s_lshl_b32 {sPld}, {sX4}, 1
        s_add_u32 {sPld}, {sPld}, {sBp}
        s_add_u32 {sPld}, {sPld}, s7
        s_lshl_b32 {sPld}, {sPld}, 12
        s_add_u32 {sPld}, {sPld}, s3
        ''')
        q.e(f'''
        s_lshl_b32 s3, {sR4}, 2
        s_add_u32 s3, s3, {sX4}
        s_mul_i32 s3, s3, {64*1792}
        s_mul_i32 s7, {sBr}, 896
        s_add_u32 s3, s3, s7
        s_lshl_b32 s7, {sCt}, 7
        s_add_u32 s3, s3, s7
        s_add_u32 s{SRD_OUT}, s28, s3
        s_addc_u32 s{SRD_OUT+1}, s29, 0
        s_sub_u32 s{SRD_OUT+2}, {1024*1792}, s3
        s_mov_b32 s{SRD_OUT+3}, 0x20000
        s_lshl_b32 s3, {sDh}, 5
        v_add_u32 v12, s3, v8
        v_mul_u32_u24 v12, 1792, v12
        s_lshl_b32 s3, {sBp}, 6
        v_lshl_add_u32 v13, v7, 4, s3
        v_add_u32 v{vOut}, v12, v13
        s_add_u32 s3, {sM0}, {EXB}
        v_add_u32 v{vExW}, s3, v{vP}
        v_xor_b32 v{vExR1}, 4096, v{vExW}
        v_xor_b32 v{vExR2}, 8192, v{vExW}
        s_mov_b32 s{SRD_DBG}, s30
        s_mov_b32 s{SRD_DBG+1}, s31
        s_mov_b32 s{SRD_DBG+2}, 256
        s_mov_b32 s{SRD_DBG+3}, 0x20000
        s_lshr_b32 s3, s2, 4
        s_lshl_b32 s3, s3, 4
        v_mov_b32 v{vFlag}, s3
        v_mov_b32 v{vOne}, 1
        s_mov_b32 s12, 0
        s_mov_b32 s13, 0
        s_mov_b32 s14, 0
        ''')
        q.e(f'''
        s_lshl_b32 s3, {sR4}, 3
        v_add_u32 v12, s3, v10
        v_lshlrev_b32 v12, 3, v12
        s_and_b32 s3, s2, 7
        v_add_u32 v12, s3, v12
        v_lshlrev_b32 v12, 7, v12
        v_add_u32 v{vF1}, {WS_FLG1}, v12
        ''')
        if a.touch:
            q.e(f'''
            v_and_b32 v12, 15, v2
            v_lshlrev_b32 v12, 21, v12
            buffer_load_dword v{TMP}, v12, {srd(SRD_P)}, 0 offen
            buffer_load_dword v{TMP+1}, v12, {srd(SRD_V)}, 0 offen
            buffer_load_dword v{TMP+2}, v12, {srd(SRD_WO)}, 0 offen
            buffer_load_dword v{TMP+3}, v12, {srd(SRD_OUT)}, 0 offen
            ''')
        setup3 = S.ins
        pf = []
        if a.codepf:
            pf = [f's_getpc_b64 s[{SRD_CODE}:{SRD_CODE+1}]', f's_mov_b32 s{SRD_CODE+2}, {a.codepf}', f's_mov_b32 s{SRD_CODE+3}, 0x20000',
                  f's_lshl_b32 s3, {sSlot}, 2', f's_add_u32 s3, s3, {sW}', f's_lshl_b32 s3, s3, 1', f'v_add_u32 v20, s3, v7',
                  f'v_lshlrev_b32 v20, 7, v20', f'buffer_load_dword v{vDummy}, v20, {srd(SRD_CODE)}, 0 offen']
        p.add(self.pstamp(51))
        p.add(groups[:8])
        p.add(self.pstamp(52))
        p.add(setup1)
        p.add(self.pstamp(53))
        p.add(groups[8:])
        p.add(self.pstamp(54))
        p.add(pf)
        p.add(setup2)
        if a.kiss[0] < 0: p.add(self.dma_k(0))
        p.add(self.pstamp(55))
        p.add(setup3)

    def one_lane(self, label, instr):
        p = self.p
        p.e(f's_cmp_lg_u32 {sW}, 0')
        p.e(f's_cbranch_scc1 {label}')
        p.e('s_mov_b64 exec, 1')
        x = I(instr); x.kind = 'fake'; p.ins.append(x)
        p.e('s_mov_b64 exec, -1')
        p.e(f'{label}:')

    def body(self, sched):
        p = self.p; a = self.a
        KISSUE = {st: k for k, st in enumerate(a.kiss) if st >= 0}
        KREAD = {st: k for k, st in enumerate(a.kread)}
        for c in range(14):
            self.top(c)
            if c == a.initsig:
                self.one_lane('L_ni', f'buffer_atomic_add v{vOne}, v{vFlag}, {srd(SRD_DBG)}, 0 offen')
            dm = sched[c]
            kiss = self.dma_k(KISSUE[c]) if c in KISSUE else []
            alld = kiss + dm
            if c == a.initld:
                alld = [[f'v_and_b32 v{vt[4]}, 0xf0, v{vP}'.replace('0xf0', '240'),
                         I(f'buffer_load_dword v{vFlag}, v{vt[4]}, {srd(SRD_DBG)}, 0 offen sc1', ('init', 0))]] + alld
            h = (len(alld) + 1) // 2 if c > 0 else 0
            segA_m = self.mf_g(c - 1, 1, 1) if c > 0 else []
            p.add(spread(segA_m, self.reads_g(c, 0, 0), alld[:h]))
            tail = []
            if c in KREAD:
                w = I('s_waitcnt vmcnt(0)'); w.note = ('vm', ('k', KREAD[c]))
                tail = [w] + self.read_k(KREAD[c])
            rl = self.roll(vAw, c + 1) if c + 1 < 14 else []
            if c == 13: rl = self.setva(0)
            p.add(spread(self.mf_g(c, 0, 0), self.reads_g(c, 1, 1), alld[h:], tail + rl))
        self.top(14)
        last = self.mf_g(13, 1, 1)
        rd0 = self.reads_w(0, 0)
        dm = sched[14]
        seq = [last[0]] + rd0[:3] + [last[1]] + rd0[3:6] + [last[2]] + rd0[6:] + [last[3]] + dm[:2]
        for t in range(4):
            seq += [last[4 + t]] + self.cvt_tile(QA(1, t), QA(1, t))
        if 14 in KREAD:
            w = I('s_waitcnt vmcnt(0)'); w.note = ('vm', ('k', KREAD[14]))
            seq += [w] + self.read_k(KREAD[14])
        qk = {}
        for beta in (1, 0):
            qk[beta] = []
            for t in range(4):
                for u in range(2):
                    d = vr(SS(beta), 16)
                    cin = '0' if (t == 0 and u == 0) else d
                    qk[beta].append(f'v_mfma_f32_32x32x16_bf16 {d}, {ar(KF(beta,t,u),4)}, {vr(QA(beta,t)+4*u,4)}, {cin}')
        cv0 = [x for t in range(4) for x in self.cvt_tile(QA(0, t), QA(0, t))]
        seq += spread(qk[1], [], cv0)
        swr = [f'ds_write_b128 v{vExW}, {vr(SS(1)+4*k,4)} offset:{1024*k}' for k in range(4)]
        seq += spread(qk[0][:4], [], dm[2:]) + swr + qk[0][4:]
        p.add(seq)
        p.add(spread(self.mf_w(0, 0), self.reads_w(0, 1), [], self.roll(vBo, 15)))
        for n in range(1, 32):
            i = 14 + n; pos, cc = n >> 3, n & 7
            self.top(i, bar=(n <= 8))
            if n == a.initck:
                p.add([f'v_cmp_eq_u32 vcc, 16, v{vFlag}', 's_cmp_eq_u64 vcc, -1', 's_cbranch_scc0 L_slow0', 'L_back0:'])
            if n == a.sig:
                self.one_lane('L_nosig', f'buffer_store_dword v{vOne}, v{vZero}, {srd(SRD_P)}, {sF1} offen sc1')
                p.e(f's_cmp_eq_u32 {sIdle}, 1')
                p.e('s_cbranch_scc1 L_idle')
            rd0 = self.reads_w(n, 0)
            rd1 = self.reads_w(n, 1)
            dm = list(sched[i])
            segA = self.mf_w(n - 1, 1)
            segB = self.mf_w(n, 0)
            rl = self.roll(vBo, i + 1) if n < 7 else []
            if n % 2 == 1 and n < 31: rl = rl + self.setva((n + 1) >> 1)
            if n == 1:
                part = [f'ds_read_b128 {vr(TMP+4*k,4)}, v{vExR1} offset:{1024*k}' for k in range(4)]
                sm = self.softmax()
                st = [I(f'buffer_store_dwordx4 {vr(SS(0)+4*u,4)}, v{vP}, {srd(SRD_P)}, {sPst} offen offset:{1024*u} sc1', ('pst', 0)) for u in range(2)]
                p.add(spread(segA, part + rd0, []))
                p.add(spread(segB, rd1, sm, st + dm + rl))
                continue
            extra = []
            if n == a.flagld:
                extra.append(I(f'buffer_load_dword v{vFlag}, v{vF1}, {srd(SRD_P)}, 0 offen sc1', ('flag', 0)))
            if n == a.flagck:
                p.add([f'v_cmp_eq_u32 vcc, 1, v{vFlag}', 's_cmp_eq_u64 vcc, -1', 's_cbranch_scc0 L_slow1', 'L_back1:'])
            for (st, ps) in a.pld:
                if n == st: extra += self.pload(ps)
            for r in range(3):
                if n == a.red[r] + a.sigdelay[r]: extra = self.part_signal(r) + extra
            if n == a.finld:
                extra += [[f's_lshl_b32 s3, s2, 2', f's_add_u32 s3, s3, {sW}', 's_lshl_b32 s3, s3, 7', f's_add_u32 s3, s3, {WS_FLG2}',
                           I(f'buffer_load_dwordx4 v[{vt[0]}:{vt[3]}], v{vZero}, {srd(SRD_P)}, s3 offen sc1', ('fin', 0))]]
            if n == a.f01ld:
                extra += [[f's_lshl_b32 s3, s2, 2', f's_add_u32 s3, s3, {sW}', 's_lshl_b32 s3, s3, 7', f's_add_u32 s3, s3, {WS_FLG2}',
                           I(f'buffer_load_dwordx4 v[{vt[0]}:{vt[3]}], v{vZero}, {srd(SRD_P)}, s3 offen sc1', ('f01', 0))]]
            if n == a.f01ck:
                p.add(self.pstamp(46))
                p.add([f'v_and_b32 v{vt[4]}, v{vt[0]}, v{vt[1]}', f'v_readfirstlane_b32 s3, v{vt[4]}', 's_cmp_eq_u32 s3, 1', 's_cbranch_scc0 L_slow3', 'L_back3:'])
                p.add(self.pstamp(47))
                if not self.a.nobar: p.e('s_barrier')
                p.add(self.pstamp(48))
                extra += self.part_loads((0, 1))
            earlyA, fillB, lateB = [], [], []
            for r in range(3):
                if n == a.red[r]:
                    p.wait_lgkm0(); p.e('s_barrier')
                    earlyA = self.exr_list(r)
                    fillB = [f'v_add_f32 v{OT(0)+k}, v{OT(0)+k}, v{TMP+k}' for k in range(16)]
                    lateB = self.part_store(r)
                if n == a.red[r] - 1: lateB = lateB + self.exw_list(r)
            h = (len(dm) + 1) // 2
            if cc == 0:
                pj = pos - 1
                seq = [segA[0]] + rd0[:3] + [segA[1]] + rd0[3:6] + earlyA + [segA[2]] + rd0[6:] + [segA[3]] + dm[:h]
                k = 0
                for hp in range(2):
                    for g in range(2):
                        seq += self.cvt_tile(VW(hp, g), VWB(pj, hp, g)) + [segB[k]]; k += 1
                        if k == 1: seq += rd1
                p.add(seq)
                p.add(extra + dm[h:] + rl + fillB)
                if n in a.pv: p.add(self.pvw(a.pv[n], order='g1first'))
                p.add(lateB)
            else:
                ex = self.pvw(a.pv[n], order='g1first') if n in a.pv else []
                p.add(spread(segA, rd0 + earlyA, dm[:h]))
                p.add(spread(segB + ex, rd1, extra + fillB + dm[h:], rl + lateB))
        p.add(self.mf_w(31, 1))
        order = [(0, 1), (1, 1), (0, 0), (1, 0)]
        cv = {k: self.cvt_tile(VW(*k), VWB(3, *k)) for k in order}
        pv = self.pvw(3, order='g1first')
        p.add(cv[(0, 1)] + cv[(1, 1)])
        p.add(spread(pv[:4], [], cv[(0, 0)] + cv[(1, 0)]))
        p.add(pv[4:6])
        p.add([f'ds_write_b128 v{vExW}, {vr(OT(1)+4*k,4)} offset:{1024*k - EXB + EX1 + 0 if False else 1024*k}' for k in range(0)])
        self.exw(3)
        p.add(pv[6:])
        p.add(self.pstamp(56))
        p.add([f'v_and_b32 v{vt[4]}, v{vt[0]}, v{vt[1]}', f'v_and_b32 v{vt[4]}, v{vt[4]}, v{vt[2]}', f'v_readfirstlane_b32 s3, v{vt[4]}',
               's_cmp_eq_u32 s3, 1', 's_cbranch_scc0 L_slow2', 'L_back2:'])
        p.add(self.pstamp(57))
        p.wait_lgkm0()
        p.e('s_barrier')
        p.add(self.pstamp(58))
        self.exr(3)
        p.add(self.part_loads((2,)))
        p.add([f'v_add_f32 v{OT(0)+k}, v{OT(0)+k}, v{TMP+k}' for k in range(16)])
        for k in range(3):
            p.add([f'v_add_f32 v{OT(0)+e}, v{OT(0)+e}, v{self.PR(k)+e}' for e in range(16)])
        p.add(self.pstamp(59))
        p.add(self.cvt_tile(OT(0), OT(0)))
        for u in range(2):
            p.e(f'buffer_store_dwordx4 {vr(OT(0)+4*u,4)}, v{vOut}, {srd(SRD_OUT)}, 0 offen offset:{32*u}')

    def PR(self, k): return (64, 80, 0)[k]

    def part_loads(self, ks):
        out = []
        for k in ks:
            g = ['s_mul_i32 s91, s2, 12', f's_add_u32 s91, s91, {sW}', 's_lshl_b32 s91, s91, 12', f's_add_u32 s91, s91, {WS_PART + 16384*k}']
            for u in range(4):
                g.append(I(f'buffer_load_dwordx4 {vr(self.PR(k)+4*u,4)}, v{vP}, {srd(SRD_P)}, s91 offen offset:{1024*u} sc1'))
                out.append(g); g = []
        return out

    def exw_list(self, r):
        if r & 1:
            return [f'v_subrev_u32 v{vt[5]}, {EXB - EX1}, v{vExW}'] + [f'ds_write_b128 v{vt[5]}, {vr(OT(1)+4*k,4)} offset:{1024*k}' for k in range(4)]
        return [f'ds_write_b128 v{vExW}, {vr(OT(1)+4*k,4)} offset:{1024*k}' for k in range(4)]

    def exr_list(self, r):
        if r & 1:
            return [f'v_subrev_u32 v{vt[5]}, {EXB - EX1}, v{vExR2}'] + [f'ds_read_b128 {vr(TMP+4*k,4)}, v{vt[5]} offset:{1024*k}' for k in range(4)]
        return [f'ds_read_b128 {vr(TMP+4*k,4)}, v{vExR2} offset:{1024*k}' for k in range(4)]

    def exw(self, r): self.p.add(self.exw_list(r))
    def exr(self, r): self.p.add(self.exr_list(r))

    def part_store(self, r):
        o = ['s_and_b32 s3, s2, 0xfffffffc', f's_or_b32 s3, s3, {sOwn[r]}', 's_mul_i32 s3, s3, 12', f's_add_u32 s3, s3, {4*r}', f's_add_u32 s3, s3, {sW}',
             's_lshl_b32 s3, s3, 12', f's_add_u32 s91, s3, {WS_PART}']
        return o + [I(f'buffer_store_dwordx4 {vr(OT(0)+4*u,4)}, v{vP}, {srd(SRD_P)}, s91 offen offset:{1024*u} sc1', ('part', r)) for u in range(4)]

    def part_signal(self, r):
        w = I('s_waitcnt vmcnt(0)'); w.note = ('vm', ('part', r))
        x = I(f'buffer_store_dword v{vOne}, v{vZero}, {srd(SRD_P)}, s3 offen sc1')
        return [[w, 's_and_b32 s3, s2, 0xfffffffc', f's_or_b32 s3, s3, {sOwn[r]}', 's_lshl_b32 s3, s3, 2', f's_add_u32 s3, s3, {sW}',
                 's_lshl_b32 s3, s3, 7', f's_add_u32 s3, s3, {WS_FLG2 + 4*r}', 's_mov_b64 exec, 1', x, 's_mov_b64 exec, -1']]

    def pload(self, pos):
        out = [[f's_lshl_b32 s91, {sOwn[pos]}, 16', f's_add_u32 s91, s91, {sPld}',
                I(f'buffer_load_dwordx4 {vr(PFV(pos,0,0),4)}, v{vP}, {srd(SRD_P)}, s91 offen sc1')]]
        for k in range(1, 4):
            hp, u = k >> 1, k & 1
            out.append([I(f'buffer_load_dwordx4 {vr(PFV(pos,hp,u),4)}, v{vP}, {srd(SRD_P)}, s91 offen offset:{hp*2048 + u*1024} sc1')])
        return out

    def pvw(self, pos, order=None):
        m = []
        if order == 'g1first':
            for g in (1, 0):
                first = True
                for hp in range(2):
                    for u in range(2):
                        d = vr(OT(g), 16)
                        m.append(f'v_mfma_f32_32x32x16_bf16 {d}, {vr(VWB(pos,hp,g)+4*u,4)}, {vr(PFV(pos,hp,u),4)}, {"0" if first else d}')
                        first = False
            return m
        for hp in range(2):
            for u in range(2):
                for g in range(2):
                    d = vr(OT(g), 16)
                    cin = '0' if (hp == 0 and u == 0) else d
                    m.append(f'v_mfma_f32_32x32x16_bf16 {d}, {vr(VWB(pos,hp,g)+4*u,4)}, {vr(PFV(pos,hp,u),4)}, {cin}')
        return m

    def softmax(self):
        S = SS(0); t0, t1, t2 = vt[1], vt[2], vt[3]
        o = []
        o += [f'v_add_f32 v{S+k}, v{S+k}, v{TMP+k}' for k in range(16)]
        o.append(f'v_max3_f32 v{t0}, v{S}, v{S+1}, v{S+2}')
        for k in range(3, 15, 2):
            o.append(f'v_max3_f32 v{t0}, v{t0}, v{S+k}, v{S+k+1}')
        o.append(f'v_max_f32 v{t0}, v{t0}, v{S+15}')
        o += [f'v_mov_b32 v{t1}, v{t0}', f'v_permlane32_swap_b32 v{t0}, v{t1}', f'v_max_f32 v{t0}, v{t0}, v{t1}',
              's_mov_b32 s3, 0x3db8aa3b', f'v_mul_f32 v{t0}, s3, v{t0}']
        for k in range(16): o.append(f'v_fma_f32 v{S+k}, v{S+k}, s3, -v{t0}')
        for k in range(16): o.append(f'v_exp_f32 v{S+k}, v{S+k}')
        o.append(f'v_add_f32 v{t1}, v{S}, v{S+1}')
        o.append(f'v_add_f32 v{t2}, v{S+2}, v{S+3}')
        for k in range(4, 16, 2):
            o.append(f'v_add_f32 v{t1}, v{t1}, v{S+k}')
            o.append(f'v_add_f32 v{t2}, v{t2}, v{S+k+1}')
        o += [f'v_add_f32 v{t1}, v{t1}, v{t2}', f'v_mov_b32 v{t2}, v{t1}', f'v_permlane32_swap_b32 v{t1}, v{t2}',
              f'v_add_f32 v{t1}, v{t1}, v{t2}', f'v_rcp_f32 v{t1}, v{t1}']
        for k in range(16): o.append(f'v_mul_f32 v{S+k}, v{S+k}, v{t1}')
        o += self.cvt_tile(S, S)
        return o

    def slowpath(self):
        def spin(tag, load, test, back):
            return f'''
L_slow{tag}:
    s_mov_b32 {sCnt}, 0
L_spin{tag}:
    s_add_u32 s{12+min(tag,2)}, s{12+min(tag,2)}, {1 if tag < 3 else 64}
    {load}
    s_waitcnt vmcnt(0)
{test}
    s_cbranch_scc1 {back}
    s_add_u32 {sCnt}, {sCnt}, 1
    s_cmp_lt_u32 {sCnt}, 0x40000
    s_cbranch_scc1 L_spin{tag}
    s_branch {back}
'''
        s0 = spin(0, f'buffer_load_dword v{vFlag}, v{vt[4]}, {srd(SRD_DBG)}, 0 offen sc1',
                  f'    v_cmp_eq_u32 vcc, 16, v{vFlag}\n    s_nop 4\n    s_cmp_eq_u64 vcc, -1', 'L_back0')
        s1 = spin(1, f'buffer_load_dword v{vFlag}, v{vF1}, {srd(SRD_P)}, 0 offen sc1',
                  f'    v_cmp_eq_u32 vcc, 1, v{vFlag}\n    s_nop 4\n    s_cmp_eq_u64 vcc, -1', 'L_back1')
        pre2 = (f's_lshl_b32 s3, s2, 2\n    s_add_u32 s3, s3, {sW}\n    s_lshl_b32 s3, s3, 7\n    s_add_u32 s3, s3, {WS_FLG2}\n    '
                f'buffer_load_dwordx4 v[{vt[0]}:{vt[3]}], v{vZero}, {srd(SRD_P)}, s3 offen sc1')
        s2 = spin(2, pre2,
                  f'    v_and_b32 v{vt[4]}, v{vt[0]}, v{vt[1]}\n    v_and_b32 v{vt[4]}, v{vt[4]}, v{vt[2]}\n    s_nop 1\n'
                  f'    v_readfirstlane_b32 s3, v{vt[4]}\n    s_nop 4\n    s_cmp_eq_u32 s3, 1', 'L_back2')
        s3 = spin(3, pre2,
                  f'    v_and_b32 v{vt[4]}, v{vt[0]}, v{vt[1]}\n    s_nop 1\n'
                  f'    v_readfirstlane_b32 s3, v{vt[4]}\n    s_nop 4\n    s_cmp_eq_u32 s3, 1', 'L_back3')
        return s0 + s1 + s2 + s3

    def stamps_out(self):
        if self.a.dbgclk:
            return f'''
    s_memtime s[8:9]
    s_memrealtime s[10:11]
    s_waitcnt lgkmcnt(0)
    s_sub_u32 s8, s8, s94
    s_sub_u32 s10, s10, s92
    s_and_b32 s3, s2, 63
    s_cmp_eq_u32 s3, 0
    s_cbranch_scc0 L_nodbg
    s_cmp_eq_u32 {sW}, 0
    s_cbranch_scc0 L_nodbg
    s_lshr_b32 s3, s2, 6
    s_lshl_b32 s3, s3, 4
    s_add_u32 s3, s3, 4
    v_mov_b32 v0, s3
    v_mov_b32 v2, s8
    v_mov_b32 v3, s10
    s_mov_b64 exec, 1
    buffer_store_dwordx2 v[2:3], v0, {srd(SRD_DBG)}, 0 offen
L_nodbg:
'''
        if not self.a.stamps: return ''
        return f'''
    s_memrealtime s[92:93]
    s_waitcnt lgkmcnt(0)
    v_writelane_b32 v253, s92, 63
    s_memtime s[92:93]
    s_waitcnt lgkmcnt(0)
    v_writelane_b32 v255, s92, 62
    s_lshl_b32 s13, s13, 8
    s_lshl_b32 s14, s14, 16
    s_or_b32 s12, s12, s13
    s_or_b32 s12, s12, s14
    v_writelane_b32 v255, s12, 61
    v_writelane_b32 v255, s94, 63
    s_lshl_b32 s3, s2, 2
    s_add_u32 s3, s3, {sW}
    s_lshl_b32 s3, s3, 8
    s_add_u32 s3, s3, 0x400000
    s_add_u32 s8, s32, s3
    s_addc_u32 s9, s33, 0
    s_mov_b32 s10, 256
    s_mov_b32 s11, 0x20000
    v_mbcnt_lo_u32_b32 v254, -1, 0
    v_mbcnt_hi_u32_b32 v254, -1, v254
    v_lshlrev_b32 v254, 2, v254
    buffer_store_dword v255, v254, s[8:11], 0 offen
    s_add_u32 s8, s8, 0x100000
    s_addc_u32 s9, s9, 0
    buffer_store_dword v253, v254, s[8:11], 0 offen
'''

    def build(self):
        sched = self.make_schedule()
        if self.a.verbose:
            for s in range(-1, 46):
                toks = []
                for g in sched[s]:
                    for x in g:
                        if isinstance(x, I) and x.tok: toks.append(x.tok)
                print(s, toks, file=sys.stderr)
        self.prologue(sched)
        self.body(sched)
        ins = self.p.finalize()
        owner = None; fresh = False
        for x in ins:
            if x.kind == 'salu' and ('m0', 0) in x.wr: fresh = True
            if x.kind == 'dma':
                if fresh: owner = x.tok; fresh = False
                assert owner == x.tok, (owner, x.tok, x.t)
        txt = render(ins)
        s = open(self.a.header).read()
        s += f'; @launch grid=(256,1,1) block=(256,1,1) lds={LDS_BYTES}\n'
        s += '.amdgcn_target "amdgcn-amd-amdhsa--gfx950"\n.text\n'
        s += f'.globl {NAME}\n.p2align 8\n.type {NAME},@function\n{NAME}:\n'
        s += txt
        s += 'L_fin:\n' + self.stamps_out() + '    s_endpgm\n'
        s += self.slowpath()
        s += 'L_idle:\n'
        if self.a.idlepf:
            s += f'''    s_lshl_b32 s3, {sR4}, 20
    s_sub_u32 s{SRD_V+2}, 4194304, s3
    s_lshl_b32 s3, {sX4}, 18
    s_add_u32 s3, s3, {sVb}
    v_lshlrev_b32 v0, 3, v{vP}
    buffer_load_dword v1, v0, {srd(SRD_V)}, s3 offen
    s_add_u32 s3, s3, 8192
    buffer_load_dword v2, v0, {srd(SRD_V)}, s3 offen
'''
        s += 'L_end:\n'
        if self.a.stamps: s += '    s_cmp_ge_u32 s2, 256\n    s_cbranch_scc0 L_fin\n'
        s += '    s_endpgm\n'
        s += f'''.section .rodata,"a"
.p2align 6
.amdhsa_kernel {NAME}
  .amdhsa_next_free_vgpr 512
  .amdhsa_next_free_sgpr 102
  .amdhsa_accum_offset 256
  .amdhsa_group_segment_fixed_size 0
  .amdhsa_kernarg_size 104
  .amdhsa_user_sgpr_count 2
  .amdhsa_user_sgpr_kernarg_segment_ptr 1
  .amdhsa_system_sgpr_workgroup_id_x 1
.end_amdhsa_kernel
'''
        return s, ins

def main():
    ap = argparse.ArgumentParser()
    ap.add_argument('-o', default='concat_heads__gqa_block_cached__gqa_block_cached__near_ridge.s')
    ap.add_argument('--header', default='header.txt')
    ap.add_argument('--stamps', action='store_true')
    ap.add_argument('--dbgclk', action='store_true')
    ap.add_argument('--rt', action='store_true')
    ap.add_argument('--post', action='store_true')
    ap.add_argument('--codepf', type=int, default=32768)
    ap.add_argument('--sig', type=int, default=6)
    ap.add_argument('--flagld', type=int, default=11)
    ap.add_argument('--flagck', type=int, default=13)
    ap.add_argument('--initsig', type=int, default=3)
    ap.add_argument('--initld', type=int, default=12)
    ap.add_argument('--initck', type=int, default=3)
    ap.add_argument('--finld', type=int, default=30)
    ap.add_argument('--sd2', type=int, default=3)
    ap.add_argument('--pace', type=int, default=1)
    ap.add_argument('--rotp', type=int, default=1)
    ap.add_argument('--touch', type=int, default=0)
    ap.add_argument('--idlepf', type=int, default=1)
    ap.add_argument('--f01ld', type=int, default=26)
    ap.add_argument('--f01ck', type=int, default=29)
    ap.add_argument('--kiss', default='3,6,9,12')
    ap.add_argument('--kread', default='5,8,11,14')
    ap.add_argument('--pv0', type=int, default=17)
    ap.add_argument('--nt', default='')
    ap.add_argument('--rot1', type=int, default=4)
    ap.add_argument('--rot2', type=int, default=1)
    ap.add_argument('--catch', type=int, default=10)
    ap.add_argument('--catch_steps', type=int, default=4)
    ap.add_argument('--nodma', action='store_true')
    ap.add_argument('--nobar', action='store_true')
    ap.add_argument('--noreads', action='store_true')
    ap.add_argument('--verbose', action='store_true')
    a = ap.parse_args()
    a.pld = [(a.flagck, 0), (a.flagck, 1), (a.pv0 + 1, 2), (a.pv0 + 3, 3)]
    a.pv = {a.pv0: 0, a.pv0 + 2: 1, 24: 2}
    a.red = [a.pv0 + 1, a.pv0 + 3, 25]
    a.kiss = [int(x) for x in a.kiss.split(',')]
    a.kread = [int(x) for x in a.kread.split(',')]
    a.sigdelay = [3, 3, a.sd2]
    g = Gen(a)
    s, ins = g.build()
    open(a.o, 'w').write(s)
    from collections import Counter
    print(Counter(x.kind for x in ins), file=sys.stderr)

if __name__ == '__main__':
    main()
```

```python
import sys, argparse
from ir import *

NAME = 'concat_heads__gqa_block_cached__gqa_block_cached__near_ridge_kernel'
SA = 16384
BB = 98304
EXB = 147456
LDS_BYTES = 163840

sW = 's4'
SRD_X, SRD_WQ, SRD_K, SRD_V, SRD_WO, SRD_P, SRD_OUT, SRD_DBG, SRD_CODE = 36, 40, 44, 48, 52, 56, 60, 64, 68
def srd(b): return f's[{b}:{b+3}]'
sM0 = 's72'
sPA, sPB = 's73', 's74'
sTa, sTb = ['s75', 's76'], ['s77', 's78']
sKb = ['s79', 's80']
sIdle, sPst, sPld, sF1 = 's81', 's82', 's83', 's84'
sBr, sSlot, sH, sRg, sR4, sCt, sX4 = 's34', 's35', 's85', 's86', 's87', 's88', 's89'
sCnt = 's90'
sC0, sVb = 's96', 's97'
sDh, sBp = 's5', 's6'
sInb, sF2 = 's16', 's17'
sOwn = ['s98', 's99', 's100', 's101']
WS_FLG1, WS_FLG2, WS_PART = 6 << 20, (6 << 20) + (64 << 10), 8 << 20

def QA(beta, t): return 64*beta + 16*t
def SS(beta): return 128 + 16*beta
def OT(g): return 160 + 16*g
TMP = 192
vBx = [[[160, 161], [162, 163]], [[164, 165], [166, 167]]]
vAw = [168, 169, 170, 171]
vX = [172, 173, 174, 175]; vWq = [176, 177, 178, 179]
vKr = [[180, 181], [182, 183]]
def FV(s): return 208 + 4*s
vKd = [216, 217, 218, 219]
vAv = [[220, 221], [222, 223]]
vAt = [[224, 225], [226, 227]]
vBo = [228, 229]
vO = [230, 231, 232, 233]
vP, vOut, vExW, vExR1, vExR2, vDummy, vFlag, vOne, vZero, vF1 = 234, 235, 236, 237, 238, 239, 240, 241, 242, 243
vt = [244, 245, 246, 247, 248, 249]
IDF = [216, 228]
def VW(hp, g): return 32*hp + 16*g
def VWB(pos, hp, g): return 64 + 32*(pos & 1) + 16*hp + 8*g
def PFV(pos, hp, u): return 128 + 16*(pos & 1) + 8*hp + 4*u
def FA(f, t): return 24*f + 4*t
def FB(f, b): return 24*f + 16 + 4*b
def KF(beta, t, u): return 48 + 32*beta + 8*t + 4*u
def WF(n, s, hp, g): return (112 + 32*n + 16*s + 8*hp + 4*g) % 256
def vr(b, n=1): return f'v{b}' if n == 1 else f'v[{b}:{b+n-1}]'
def ar(b, n=1): return f'a{b}' if n == 1 else f'a[{b}:{b+n-1}]'
VSLOT = {0: (BB+SA, 10), 1: (BB+2*SA, 12), 2: (BB, 14), 3: (BB+SA, 16), 4: (4*SA, 17), 5: (5*SA, 18), 6: (0, 19), 7: (SA, 20),
         8: (BB+2*SA, 21), 9: (2*SA, 22), 10: (BB, 23), 11: (BB+SA, 24), 12: (4*SA, 25), 13: (5*SA, 26), 14: (0, 28), 15: (SA, 30)}
EX1 = 3*SA

def spread(mf, early, even, late=(), per=3):
    n = len(mf)
    if n == 0: return list(early) + list(even) + list(late)
    gaps = [[] for _ in range(n)]
    idx = 0
    g = 0
    while idx < len(early):
        for _ in range(per):
            if idx < len(early): gaps[min(g, n-1)].append(early[idx]); idx += 1
        g += 1
    first = min(g, n-1) if len(even) <= n - g or g >= n else max(0, n - len(even))
    if g >= n: first = 0
    k = len(even); m = n - first
    for j, x in enumerate(even):
        gaps[first + min(m-1, int(j * m / k))].append(x)
    out = []
    for mm, gp in zip(mf, gaps):
        out.append(mm); out += gp
    return out + list(late)

class Gen:
    def __init__(self, a):
        self.a = a
        self.p = Prog()
        self.nstamp = 0
        self.pol = {k: (' nt' if k in a.nt else '') for k in 'xqkvo'}

    def dma_A(self, i):
        slot = (i % 6) * SA
        t = sTa[i & 1]
        if self.a.nodma and i >= 6: return []
        if i < 14:
            par = i & 1
            pre = [f's_lshl_b32 {t}, {sPA}, 19']
            if par: pre += [f's_add_u32 {t}, {t}, 262144'] + self.adv7(sPA)
            regs, sr, pol = vWq, SRD_WQ, self.pol['q']
        else:
            n = i - 14; tt, par = n >> 1, n & 1
            pre = [f's_add_u32 {t}, {sC0}, {tt}', f's_and_b32 {t}, {t}, 3', f's_mul_i32 {t}, {t}, 57344']
            if par: pre += [f's_add_u32 {t}, {t}, 28672']
            regs, sr, pol = vO, SRD_WO, self.pol['o']
        f = [[f's_add_u32 m0, {sM0}, {slot}'] + pre]
        f[0].append(I(f'buffer_load_dwordx4 v{regs[0]}, {srd(sr)}, {t} offen{pol} lds', ('A', i)))
        for k in range(1, 4):
            f.append([I(f'buffer_load_dwordx4 v{regs[k]}, {srd(sr)}, {t} offen offset:{1024*k}{pol} lds', ('A', i))])
        return f

    def adv7(self, r):
        return [f's_add_u32 {r}, {r}, 1', f's_cmp_eq_u32 {r}, 7', f's_cselect_b32 {r}, 0, {r}']

    def dma_B(self, pi):
        t = sTb[pi & 1]
        if self.a.nodma and pi >= 3: return []
        if pi < 7:
            slot = BB + (pi % 3) * SA
            pre = [f's_lshl_b32 {t}, {sPB}, 7'] + self.adv7(sPB)
            regs, sr, pol = vX, SRD_X, self.pol['x']
        else:
            tt = pi - 7; pos = tt >> 2
            slot = VSLOT[tt][0]
            pre = [f's_add_u32 {t}, {sC0}, {tt & 3}', f's_and_b32 {t}, {t}, 3', f's_lshl_b32 {t}, {t}, 7', f's_add_u32 {t}, {t}, {sVb}',
                   f's_lshl_b32 s91, {sOwn[pos]}, 18', f's_add_u32 {t}, {t}, s91']
            regs, sr, pol = vKd, SRD_V, self.pol['v']
        g0 = [f's_add_u32 m0, {sM0}, {slot}'] + pre
        f = [g0 + [I(f'buffer_load_dwordx4 v{regs[0]}, {srd(sr)}, {t} offen{pol} lds', ('B', pi))]]
        for k in range(1, 4):
            pre2 = [f's_add_u32 m0, {sM0}, {slot}', 's_nop 0'] if k == 2 else []
            f.append(pre2 + [I(f'buffer_load_dwordx4 v{regs[k]}, {srd(sr)}, {t} offen offset:{1024*k}{pol} lds', ('B', pi))])
        return f

    def dma_k(self, a):
        beta, dq = 1 - (a >> 1), a & 1
        pol = self.pol['k']
        f = [[f's_add_u32 m0, {sM0}, {EXB}', f's_add_u32 s91, {sKb[beta]}, {dq*128}',
              I(f'buffer_load_dwordx4 v{vKd[0]}, {srd(SRD_K)}, s91 offen{pol} lds', ('k', a))]]
        for k in range(1, 4):
            f.append([I(f'buffer_load_dwordx4 v{vKd[k]}, {srd(SRD_K)}, s91 offen offset:{1024*k}{pol} lds', ('k', a))])
        return f

    def read_k(self, a):
        beta, dq = 1 - (a >> 1), a & 1
        return [f'ds_read_b128 {ar(KF(beta, 2*dq+tp, u), 4)}, v{vKr[tp][u]}' for tp in range(2) for u in range(2)]

    def reads_g(self, c, s, f):
        so = (c % 3) * SA
        bo = ((c >> 1) % 3) * SA
        par = c & 1
        rdA = lambda t: [f'ds_read_b64_tr_b16 {ar(FA(f,t)+2*m, 2)}, v{vAw[t]} offset:{so + s*8192 + m*2048}' for m in range(2)]
        rdB = lambda b: [f'ds_read_b128 {ar(FB(f,b), 4)}, v{vBx[b][par][s]} offset:{bo}']
        if self.a.noreads and c > 0: return []
        return rdB(1) + rdA(0) + rdA(1) + rdA(2) + rdA(3) + rdB(0)

    def mf_g(self, c, s, f):
        m = []
        for beta in (1, 0):
            for t in range(4):
                d = vr(QA(beta, t), 16)
                cin = '0' if (c == 0 and s == 0) else d
                m.append(f'v_mfma_f32_32x32x16_bf16 {d}, {ar(FA(f,t),4)}, {ar(FB(f,beta),4)}, {cin}')
        return m

    def setva(self, tt):
        base = VSLOT[tt][0]
        return [f'v_add_u32 v{vAt[par][s]}, {base}, v{vAv[par][s]}' for par in range(2) for s in range(2)]

    def reads_w(self, n, s):
        i = 14 + n
        so = (i % 3) * SA
        par = n & 1
        if self.a.noreads: return []
        r = [f'ds_read_b128 {vr(FV(s),4)}, v{vAt[par][s]}']
        if n < 8:
            for hp in range(2):
                for g in range(2):
                    r += [f'ds_read_b64_tr_b16 {ar(WF(n,s,hp,g)+2*m, 2)}, v{vBo[g]} offset:{so + hp*4096 + s*2048 + m*512}' for m in range(2)]
        return r

    def mf_w(self, n, s):
        m = []
        for hp in range(2):
            for g in range(2):
                d = vr(VW(hp, g), 16)
                cin = '0' if ((n & 7) == 0 and s == 0) else d
                m.append(f'v_mfma_f32_32x32x16_bf16 {d}, {vr(FV(s),4)}, {ar(WF(n & 7,s,hp,g),4)}, {cin}')
        return m

    def roll(self, regs, i):
        if i % 3 != 0 or i == 0: return []
        if (i % 6) == 3: return [f'v_add_u32 v{r}, {3*SA}, v{r}' for r in regs]
        return [f'v_subrev_u32 v{r}, {3*SA}, v{r}' for r in regs]

    def top(self, i, bar=True, extra_wait=None):
        p = self.p
        if self.a.stamps: p.e('s_memtime s[92:93]')
        if self.a.stamps and self.a.rt: p.e('s_memrealtime s[30:31]')
        if not (self.a.nodma and i >= 6):
            if i <= 21: p.wait_vm(('A', i))
            if i % 2 == 0: p.wait_vm(('B', i >> 1))
        if extra_wait: p.wait_vm(extra_wait)
        if bar or self.a.stamps: p.wait_lgkm0()
        if self.a.stamps:
            k = self.nstamp; self.nstamp += 1
            if k < 46: p.e(f'v_writelane_b32 v255, s92, {k}')
            if k < 50 and self.a.rt: p.e(f'v_writelane_b32 v253, s30, {k}')
        if bar and not self.a.nobar: p.e('s_barrier')
        if self.a.stamps and self.a.post:
            p.add(['s_memtime s[92:93]', 's_waitcnt lgkmcnt(0)', f'v_writelane_b32 v253, s92, {i}'])

    def pstamp(self, lane):
        if not self.a.stamps: return []
        return ['s_memtime s[92:93]', 's_waitcnt lgkmcnt(0)', f'v_writelane_b32 v255, s92, {lane}']

    def cvt_tile(self, src, dst):
        return [f'v_cvt_pk_bf16_f32 v{dst+k}, v{src+2*k}, v{src+2*k+1}' for k in range(8)]

    def make_schedule(self):
        a = self.a
        A = {i: self.dma_A(i) for i in range(22)}
        B = {q: self.dma_B(q) for q in range(23)}
        T = {s: [] for s in range(-1, 46)}
        def add(s, *items): T[s] += list(items)
        add(-1, 'B0', 'A0', 'A1')
        add(0, 'B1', 'A2'); add(1, 'A3', 'A4'); add(2, 'B2', 'A5'); add(3, 'A6', 'B3a', 'A7'); add(4, 'B3b', 'A8', 'A9')
        add(5, 'B4a', 'A10'); add(6, 'B4b', 'A11'); add(7, 'B5a', 'A12'); add(8, 'B5b', 'A13', 'B6a')
        add(9, 'B6b', 'A14')
        if a.pace == 1:
            add(10, 'B7'); add(11, 'A15'); add(12, 'A16'); add(13, 'B8'); add(14, 'A17', 'A18'); add(15, 'B9', 'A19'); add(16, 'A20', 'B10a')
            add(17, 'B10b', 'A21', 'B11a'); add(18, 'B11b', 'B12'); add(19, 'B13')
        elif a.pace == 2:
            add(10, 'B7'); add(11, 'A15'); add(12, 'A16'); add(13, 'B8'); add(15, 'A17', 'B9'); add(16, 'A18', 'A19'); add(17, 'A20', 'B10')
            add(18, 'A21', 'B11'); add(19, 'B12', 'B13')
        elif a.pace == 3:
            add(10, 'B7'); add(11, 'A15'); add(12, 'A16'); add(13, 'B8', 'A17'); add(15, 'A18', 'B9'); add(16, 'A19', 'A20a'.replace('a','')); add(17, 'B10', 'A21')
            add(18, 'B11', 'B12'); add(19, 'B13')
        else:
            add(10, 'B7a', 'A15'); add(11, 'B7b', 'A16'); add(12, 'B8a', 'A17'); add(13, 'B8b', 'A18'); add(14, 'B9a', 'A19'); add(15, 'B9b', 'A20')
            add(16, 'B10', 'A21'); add(17, 'B11'); add(18, 'B12'); add(19, 'B13')
        for t in range(7, 16): add(VSLOT[t][1], f'B{7+t}')
        sched = {}
        for s_, items in T.items():
            out = []
            for it in items:
                k = it[0]; half = it[-1] if it[-1] in 'ab' else None
                idx = int(it[1:-1] if half else it[1:])
                if k == 'A':
                    assert idx < 6 or idx - 6 < s_, it
                    out += A[idx]
                else:
                    if idx < 7: assert idx < 3 or 2*(idx - 3) + 1 < s_, it
                    else: assert s_ >= VSLOT[idx - 7][1] - (0), (it, s_)
                    g = B[idx]
                    if not g: continue
                    out += g[:2] if half == 'a' else g[2:] if half == 'b' else g
            sched[s_] = out
        return sched

    def prologue(self, sched):
        p = self.p; a = self.a
        p.e('s_cmp_ge_u32 s2, 256')
        p.e('s_cbranch_scc1 L_end')
        p.e('s_load_dwordx16 s[8:23], s[0:1], 0')
        p.e('s_load_dwordx4 s[24:27], s[0:1], 64')
        p.e('s_load_dwordx4 s[28:31], s[0:1], 80')
        p.e('s_load_dwordx2 s[32:33], s[0:1], 96')
        if a.stamps:
            p.e('v_mov_b32 v255, 0')
            p.e('v_mov_b32 v253, 0')
            p.e('s_memtime s[94:95]')
            p.e('s_memrealtime s[14:15]') if False else None
        if a.dbgclk:
            p.e('s_memtime s[94:95]')
            p.e('s_memrealtime s[92:93]')
        p.e(f'''
        v_lshrrev_b32 v1, 6, v0
        v_and_b32 v2, 63, v0
        s_and_b32 {sX4}, s2, 3
        s_bfe_u32 {sBr}, s2, 0x10002
        s_lshr_b32 {sSlot}, s2, 3
        v_readfirstlane_b32 {sW}, v1
        s_and_b32 s3, {sSlot}, 3
        s_lshl_b32 {sH}, {sX4}, 2
        s_add_u32 {sH}, {sH}, s3
        s_lshr_b32 {sRg}, {sSlot}, 2
        ''')
        if a.rot1 == 7:
            p.e(f'''
            s_lshl_b32 s3, s3, 1
            s_add_u32 s3, s3, {sRg}
            s_cmp_ge_u32 s3, 7
            s_cselect_b32 s7, 7, 0
            s_sub_u32 s3, s3, s7
            s_cmp_ge_u32 s3, 7
            s_cselect_b32 s7, 7, 0
            s_sub_u32 {sPA}, s3, s7
            s_mov_b32 {sPB}, {sPA}
            ''')
        elif a.rot1 in (2, 4):
            mul = {2: 3, 4: 2}[a.rot1]
            p.e(f'''
            s_add_u32 s3, s3, {sRg}
            s_and_b32 s3, s3, {a.rot1-1}
            s_mul_i32 {sPA}, s3, {mul}
            s_mov_b32 {sPB}, {sPA}
            ''')
        else:
            p.e(f's_mov_b32 {sPA}, 0\ns_mov_b32 {sPB}, 0')
        p.e('''
        v_lshrrev_b32 v5, 4, v2
        v_lshrrev_b32 v9, 3, v2
        v_and_b32 v10, 7, v2
        v_lshrrev_b32 v7, 5, v2
        v_and_b32 v8, 31, v2
        ''')
        p.e(f'''
        v_xor_b32 v11, v10, v5
        v_lshlrev_b32 v11, 4, v11
        v_xor_b32 v3, 64, v11
        s_lshl_b32 s3, {sW}, 5
        v_add_u32 v12, s3, v9
        v_mul_u32_u24 v12, 896, v12
        v_add_u32 v{vX[0]}, v11, v12
        v_add_u32 v13, v3, v12
        v_add_u32 v{vX[1]}, {8*896-1024}, v13
        v_add_u32 v{vX[2]}, {16*896-2048}, v{vX[0]}
        v_add_u32 v{vX[3]}, {24*896-3072}, v13
        ''')
        p.e(f'''
        s_lshl_b32 s3, {sW}, 3
        v_lshlrev_b32 v13, 2, v7
        v_xor_b32 v13, v8, v13
        v_lshlrev_b32 v13, 4, v13
        v_add_u32 v12, s3, v7
        v_lshl_add_u32 v{vWq[0]}, v12, 13, v13
        v_xor_b32 v13, 128, v13
        v_lshl_add_u32 v14, v12, 13, v13
        v_add_u32 v{vWq[1]}, {2*8192-1024}, v14
        v_add_u32 v{vWq[2]}, {4*8192-2048}, v{vWq[0]}
        v_add_u32 v{vWq[3]}, {6*8192-3072}, v14
        s_lshl_b32 {sM0}, {sW}, 12
        ''')
        p.wait_lgkm0()
        if a.stamps:
            p.e('s_memrealtime s[92:93]'); p.e('s_waitcnt lgkmcnt(0)'); p.e('v_writelane_b32 v253, s92, 62')
        p.add(self.pstamp(50))
        p.e(f's_cmp_eq_u32 {sBr}, 0')
        for (dst, pa, pb) in ((SRD_X, 8, 18), (SRD_WQ, 14, 24)):
            p.e(f's_cselect_b32 s{dst}, s{pa}, s{pb}')
            p.e(f's_cselect_b32 s{dst+1}, s{pa+1}, s{pb+1}')
        p.e(f'''
        s_mul_i32 s3, {sRg}, 114688
        s_add_u32 s{SRD_X}, s{SRD_X}, s3
        s_addc_u32 s{SRD_X+1}, s{SRD_X+1}, 0
        s_sub_u32 s{SRD_X+2}, 917504, s3
        s_mov_b32 s{SRD_X+3}, 0x20000
        s_lshl_b32 s3, {sH}, 9
        s_add_u32 s{SRD_WQ}, s{SRD_WQ}, s3
        s_addc_u32 s{SRD_WQ+1}, s{SRD_WQ+1}, 0
        s_sub_u32 s{SRD_WQ+2}, 3670016, s3
        s_mov_b32 s{SRD_WQ+3}, 0x20000
        ''')
        groups = list(sched[-1])
        S = Prog()
        q = S
        q.e(f's_cmp_eq_u32 {sBr}, 0')
        for (dst, pa, pb) in ((SRD_K, 10, 20), (SRD_V, 12, 22), (SRD_WO, 16, 26)):
            q.e(f's_cselect_b32 s{dst}, s{pa}, s{pb}')
            q.e(f's_cselect_b32 s{dst+1}, s{pa+1}, s{pb+1}')
        q.e(f'''
        s_and_b32 {sDh}, {sW}, 1
        s_lshr_b32 {sBp}, {sW}, 1
        ''')
        q.e(f'''
        v_lshrrev_b32 v12, 1, v8
        v_and_b32 v12, 7, v12
        v_xor_b32 v12, v12, v7
        v_lshlrev_b32 v12, 4, v12
        v_lshl_add_u32 v12, v8, 7, v12
        s_lshl_b32 s3, {sBp}, 13
        s_lshl_b32 s7, {sDh}, 12
        s_add_u32 s7, s7, s3
        s_add_u32 s7, s7, {BB}
        v_add_u32 v{vBx[0][0][0]}, s7, v12
        s_xor_b32 s7, s7, 4096
        v_add_u32 v{vBx[1][0][0]}, s7, v12
        ''')
        for b in range(2):
            q.e(f'''
            v_xor_b32 v{vBx[b][0][1]}, 32, v{vBx[b][0][0]}
            v_xor_b32 v{vBx[b][1][0]}, 64, v{vBx[b][0][0]}
            v_xor_b32 v{vBx[b][1][1]}, 96, v{vBx[b][0][0]}
            ''')
        q.e('''
        v_lshrrev_b32 v13, 2, v2
        v_and_b32 v13, 3, v13
        v_and_b32 v14, 1, v5
        v_and_b32 v15, 1, v2
        v_lshl_add_u32 v15, v14, 1, v15
        v_lshrrev_b32 v16, 1, v2
        v_and_b32 v16, 1, v16
        v_lshlrev_b32 v16, 3, v16
        v_lshl_add_u32 v16, v15, 4, v16
        v_lshl_add_u32 v17, v7, 3, v13
        ''')
        q.e(f'''
        s_lshl_b32 s3, {sDh}, 8
        v_lshl_add_u32 v18, v17, 9, v16
        v_add_u32 v18, s3, v18
        ''')
        for t in range(4):
            q.e(f'''
            v_xor_b32 v19, {t}, v13
            v_lshl_add_u32 v{vAw[t]}, v19, 6, v18
            ''')
        setup1 = S.ins; S = Prog(); q = S
        q.e(f'''
        s_add_u32 s3, {sM0}, {EXB}
        v_add_u32 v{vKr[0][0]}, s3, v12
        v_xor_b32 v{vKr[0][1]}, 32, v{vKr[0][0]}
        v_xor_b32 v{vKr[1][0]}, 64, v{vKr[0][0]}
        v_xor_b32 v{vKr[1][1]}, 96, v{vKr[0][0]}
        v_add_u32 v{vAv[0][0]}, {sM0}, v12
        v_xor_b32 v{vAv[0][1]}, 32, v{vAv[0][0]}
        v_xor_b32 v{vAv[1][0]}, 64, v{vAv[0][0]}
        v_xor_b32 v{vAv[1][1]}, 96, v{vAv[0][0]}
        ''')
        q.e(f'''
        s_lshl_b32 s3, {sBp}, 13
        v_lshl_add_u32 v18, v17, 7, v16
        v_add_u32 v18, s3, v18
        v_lshrrev_b32 v19, 1, v13
        v_xor_b32 v19, {sBp}, v19
        v_lshl_add_u32 v{vBo[0]}, v19, 6, v18
        v_xor_b32 v{vBo[1]}, 64, v{vBo[0]}
        ''')
        q.e(f'''
        v_lshlrev_b32 v12, 9, v9
        v_add_u32 v{vKd[0]}, v11, v12
        v_add_u32 v13, v3, v12
        v_add_u32 v{vKd[1]}, {8*512-1024}, v13
        v_add_u32 v{vKd[2]}, {16*512-2048}, v{vKd[0]}
        v_add_u32 v{vKd[3]}, {24*512-3072}, v13
        s_lshl_b32 s3, {sRg}, 5
        s_lshr_b32 s7, {sH}, 1
        s_add_u32 s3, s3, s7
        s_lshl_b32 s3, s3, 14
        s_add_u32 s{SRD_K}, s{SRD_K}, s3
        s_addc_u32 s{SRD_K+1}, s{SRD_K+1}, 0
        s_sub_u32 s{SRD_K+2}, 4194304, s3
        s_mov_b32 s{SRD_K+3}, 0x20000
        s_lshl_b32 s3, {sBp}, 1
        s_add_u32 s7, s3, {sDh}
        s_lshl_b32 {sKb[0]}, s7, 17
        s_xor_b32 s7, s7, 1
        s_lshl_b32 {sKb[1]}, s7, 17
        s_lshl_b32 s3, {sDh}, 8
        s_add_u32 {sKb[0]}, {sKb[0]}, s3
        s_add_u32 {sKb[1]}, {sKb[1]}, s3
        ''')
        q.e(f'''
        s_mov_b32 s{SRD_P}, s32
        s_mov_b32 s{SRD_P+1}, s33
        s_mov_b32 s{SRD_P+2}, {32 << 20}
        s_mov_b32 s{SRD_P+3}, 0x20000
        v_lshlrev_b32 v{vP}, 4, v2
        v_mov_b32 v{vZero}, 0
        v_mov_b32 v{vt[0]}, 0
        v_mov_b32 v{vt[1]}, 0
        v_mov_b32 v{vt[2]}, 0
        v_mov_b32 v{vt[3]}, 0
        s_mul_i32 {sInb}, s2, 12
        s_add_u32 {sInb}, {sInb}, {sW}
        s_lshl_b32 {sInb}, {sInb}, 11
        s_add_u32 {sInb}, {sInb}, {WS_PART}
        s_lshl_b32 {sF1}, s2, 7
        s_add_u32 {sF1}, {sF1}, {WS_FLG1}
        s_lshl_b32 {sF2}, s2, 2
        s_add_u32 {sF2}, {sF2}, {sW}
        s_lshl_b32 {sF2}, {sF2}, 7
        s_add_u32 {sF2}, {sF2}, {WS_FLG2}
        s_mov_b64 exec, 1
        buffer_store_dwordx4 v[{vt[0]}:{vt[3]}], v{vZero}, {srd(SRD_P)}, {sF2} offen sc1
        buffer_store_dword v{vZero}, v{vZero}, {srd(SRD_P)}, {sF1} offen sc1
        s_mov_b64 exec, -1
        v_mov_b32 v{TMP+8}, -1
        v_mov_b32 v{TMP+9}, -1
        v_mov_b32 v{TMP+10}, -1
        v_mov_b32 v{TMP+11}, -1
        ''')
        setup2 = S.ins; S = Prog(); q = S
        q.e(f'''
        s_and_b32 {sR4}, {sSlot}, 3
        s_lshr_b32 {sCt}, {sSlot}, 2
        s_cmp_ge_u32 {sSlot}, 28
        s_cselect_b32 {sIdle}, 1, 0
        s_cselect_b32 {sCt}, 0, {sCt}
        ''')
        if a.rot2:
            q.e(f's_add_u32 {sC0}, {sR4}, {sCt}\ns_and_b32 {sC0}, {sC0}, 3')
        else:
            q.e(f's_mov_b32 {sC0}, 0')
        if a.rotp:
            q.e(f'''
            s_mul_i32 s3, {sCt}, 11
            s_lshr_b32 s3, s3, 5
            s_mul_i32 s3, s3, 3
            s_sub_u32 s3, {sCt}, s3
            ''')
            for pos in range(3):
                q.e(f's_add_u32 s7, s3, {pos}\ns_cmp_ge_u32 s7, 3\ns_cselect_b32 {sOwn[pos]}, 3, 0\ns_sub_u32 s7, s7, {sOwn[pos]}\n'
                    f's_add_u32 s7, s7, {sX4}\ns_add_u32 s7, s7, 1\ns_and_b32 {sOwn[pos]}, s7, 3')
            q.e(f's_mov_b32 {sOwn[3]}, {sX4}')
        else:
            for pos in range(4):
                q.e(f's_add_u32 {sOwn[pos]}, {sX4}, {pos + 1}\ns_and_b32 {sOwn[pos]}, {sOwn[pos]}, 3')
        q.e(f'''
        s_lshl_b32 s3, {sR4}, 20
        s_add_u32 s{SRD_V}, s{SRD_V}, s3
        s_addc_u32 s{SRD_V+1}, s{SRD_V+1}, 0
        s_sub_u32 s{SRD_V+2}, 4194304, s3
        s_mov_b32 s{SRD_V+3}, 0x20000
        s_lshl_b32 s3, {sX4}, 1
        s_add_u32 s3, s3, {sBp}
        s_lshl_b32 s3, s3, 14
        s_lshl_b32 s7, {sDh}, 17
        s_add_u32 {sVb}, s3, s7
        s_lshl_b32 s3, {sCt}, 7
        s_add_u32 s{SRD_WO}, s{SRD_WO}, s3
        s_addc_u32 s{SRD_WO+1}, s{SRD_WO+1}, 0
        s_sub_u32 s{SRD_WO+2}, 3670016, s3
        s_mov_b32 s{SRD_WO+3}, 0x20000
        s_cmp_eq_u32 {sIdle}, 1
        s_cselect_b32 s{SRD_V+2}, 0, s{SRD_V+2}
        s_cselect_b32 s{SRD_WO+2}, 0, s{SRD_WO+2}
        ''')
        q.e(f'''
        s_lshl_b32 s3, {sX4}, 2
        s_add_u32 s3, s3, {sW}
        s_lshl_b32 s3, s3, 8
        v_add_u32 v12, s3, v9
        v_mul_u32_u24 v12, 896, v12
        v_lshlrev_b32 v13, 2, v14
        v_xor_b32 v13, v10, v13
        v_lshl_add_u32 v{vO[0]}, v13, 4, v12
        v_add_u32 v{vO[1]}, {7168-1024}, v{vO[0]}
        v_add_u32 v{vO[2]}, {2*(7168-1024)}, v{vO[0]}
        v_add_u32 v{vO[3]}, {3*(7168-1024)}, v{vO[0]}
        ''')
        q.e(f'''
        s_lshl_b32 s3, {sRg}, 2
        s_add_u32 s3, s3, {sW}
        s_lshl_b32 s3, s3, 4
        s_add_u32 s3, s3, {sH}
        s_lshl_b32 {sPst}, s3, 11
        s_lshl_b32 s3, {sBr}, 20
        s_add_u32 {sPst}, {sPst}, s3
        s_lshl_b32 s7, {sR4}, 3
        s_add_u32 s7, s7, {sDh}
        s_lshl_b32 s7, s7, 3
        s_lshl_b32 {sPld}, {sX4}, 1
        s_add_u32 {sPld}, {sPld}, {sBp}
        s_add_u32 {sPld}, {sPld}, s7
        s_lshl_b32 {sPld}, {sPld}, 12
        s_add_u32 {sPld}, {sPld}, s3
        ''')
        q.e(f'''
        s_lshl_b32 s3, {sR4}, 2
        s_add_u32 s3, s3, {sX4}
        s_mul_i32 s3, s3, {64*1792}
        s_mul_i32 s7, {sBr}, 896
        s_add_u32 s3, s3, s7
        s_lshl_b32 s7, {sCt}, 7
        s_add_u32 s3, s3, s7
        s_add_u32 s{SRD_OUT}, s28, s3
        s_addc_u32 s{SRD_OUT+1}, s29, 0
        s_sub_u32 s{SRD_OUT+2}, {1024*1792}, s3
        s_mov_b32 s{SRD_OUT+3}, 0x20000
        s_lshl_b32 s3, {sDh}, 5
        v_add_u32 v12, s3, v8
        v_mul_u32_u24 v12, 1792, v12
        s_lshl_b32 s3, {sBp}, 6
        v_lshl_add_u32 v13, v7, 4, s3
        v_add_u32 v{vOut}, v12, v13
        s_add_u32 s3, {sM0}, {EXB}
        v_add_u32 v{vExW}, s3, v{vP}
        v_xor_b32 v{vExR1}, 4096, v{vExW}
        v_xor_b32 v{vExR2}, 8192, v{vExW}
        s_mov_b32 s{SRD_DBG}, s30
        s_mov_b32 s{SRD_DBG+1}, s31
        s_mov_b32 s{SRD_DBG+2}, 256
        s_mov_b32 s{SRD_DBG+3}, 0x20000
        s_lshr_b32 s3, s2, 4
        s_lshl_b32 s3, s3, 4
        v_mov_b32 v{vFlag}, s3
        v_mov_b32 v{vOne}, 1
        s_mov_b32 s12, 0
        s_mov_b32 s13, 0
        s_mov_b32 s14, 0
        ''')
        q.e(f'''
        s_lshl_b32 s3, {sR4}, 3
        v_add_u32 v12, s3, v10
        v_lshlrev_b32 v12, 3, v12
        s_and_b32 s3, s2, 7
        v_add_u32 v12, s3, v12
        v_lshlrev_b32 v12, 7, v12
        v_add_u32 v{vF1}, {WS_FLG1}, v12
        ''')
        if a.touch:
            q.e(f'''
            v_and_b32 v12, 15, v2
            v_lshlrev_b32 v12, 21, v12
            buffer_load_dword v{TMP}, v12, {srd(SRD_P)}, 0 offen
            buffer_load_dword v{TMP+1}, v12, {srd(SRD_V)}, 0 offen
            buffer_load_dword v{TMP+2}, v12, {srd(SRD_WO)}, 0 offen
            buffer_load_dword v{TMP+3}, v12, {srd(SRD_OUT)}, 0 offen
            ''')
        setup3 = S.ins
        pf = []
        if a.codepf:
            pf = [f's_getpc_b64 s[{SRD_CODE}:{SRD_CODE+1}]', f's_mov_b32 s{SRD_CODE+2}, {a.codepf}', f's_mov_b32 s{SRD_CODE+3}, 0x20000',
                  f's_lshl_b32 s3, {sSlot}, 2', f's_add_u32 s3, s3, {sW}', f's_lshl_b32 s3, s3, 1', f'v_add_u32 v20, s3, v7',
                  f'v_lshlrev_b32 v20, 7, v20', f'buffer_load_dword v{vDummy}, v20, {srd(SRD_CODE)}, 0 offen']
        p.add(self.pstamp(51))
        p.add(groups[:8])
        p.add(self.pstamp(52))
        p.add(setup1)
        p.add(self.pstamp(53))
        p.add(groups[8:])
        p.add(self.pstamp(54))
        p.add(pf)
        p.add(setup2)
        if a.kiss[0] < 0: p.add(self.dma_k(0))
        p.add(self.pstamp(55))
        p.add(setup3)

    def one_lane(self, label, instr):
        p = self.p
        p.e(f's_cmp_lg_u32 {sW}, 0')
        p.e(f's_cbranch_scc1 {label}')
        p.e('s_mov_b64 exec, 1')
        x = I(instr); x.kind = 'fake'; p.ins.append(x)
        p.e('s_mov_b64 exec, -1')
        p.e(f'{label}:')

    def place(self, gaps, items, g0, g1):
        n = g1 - g0 + 1; k = len(items)
        for jx, x in enumerate(items):
            gaps[g0 + min(n - 1, jx * n // max(k, 1))].append(x)

    def emit(self, mf, gaps):
        for m, g in zip(mf, gaps):
            self.p.add([m]); self.p.add(g)

    def sentinel_init(self):
        o = []
        for k in self.a.sent:
            pre = [f's_add_u32 s91, {sInb}, {8192*k}']
            for u in range(2):
                o.append(pre + [I(f'buffer_store_dwordx4 v[{TMP+8}:{TMP+11}], v{vP}, {srd(SRD_P)}, s91 offen offset:{1024*u} sc1', ('ini', 0))]); pre = []
        return o

    def valid_check(self, regs, tag):
        t = vt[4]
        o = [f'v_max3_u32 v{t}, v{regs[0]}, v{regs[1]}, v{regs[2]}']
        for k in range(3, len(regs) - 1, 2): o.append(f'v_max3_u32 v{t}, v{t}, v{regs[k]}, v{regs[k+1]}')
        if len(regs) % 2 == 0: o.append(f'v_max_u32 v{t}, v{t}, v{regs[-1]}')
        o += [f'v_cmp_ne_u32 vcc, -1, v{t}', 's_cmp_eq_u64 vcc, -1', f's_cbranch_scc0 L_slow{tag}', f'L_back{tag}:']
        return o

    def idfrag(self):
        a_, b_, c_, d_ = vt[0], vt[1], vt[2], vt[3]
        o = [f'v_lshrrev_b32 v{a_}, 4, v{vP}',
             f'v_bfe_u32 v{b_}, v{a_}, 2, 1',
             f'v_lshrrev_b32 v{c_}, 5, v{a_}',
             f'v_cmp_eq_u32 vcc, v{b_}, v{c_}',
             f'v_and_b32 v{b_}, 1, v{a_}',
             f'v_lshlrev_b32 v{b_}, 4, v{b_}',
             f'v_mov_b32 v{c_}, 0x3f80',
             f'v_lshlrev_b32 v{c_}, v{b_}, v{c_}',
             f'v_cndmask_b32 v{c_}, 0, v{c_}, vcc',
             f'v_bfe_u32 v{b_}, v{a_}, 1, 1',
             f'v_bfe_u32 v{d_}, v{a_}, 3, 1',
             f'v_lshl_add_u32 v{b_}, v{d_}, 1, v{b_}',
             f'v_bfe_u32 v{d_}, v{a_}, 4, 1',
             f'v_lshl_add_u32 v{b_}, v{d_}, 2, v{b_}']
        for u in range(2):
            for k in range(4):
                o += [f'v_cmp_eq_u32 vcc, {4*u + k}, v{b_}', f'v_cndmask_b32 v{IDF[u]+k}, 0, v{c_}, vcc']
        return o

    def body(self, sched):
        p = self.p; a = self.a
        KISSUE = {st: k for k, st in enumerate(a.kiss) if st >= 0}
        KREAD = {st: k for k, st in enumerate(a.kread)}
        ini = self.sentinel_init()
        for c in range(14):
            self.top(c, extra_wait=(('ini', 0) if c == a.initsig else None))
            if c == a.initsig:
                self.one_lane('L_ni', f'buffer_atomic_add v{vOne}, v{vFlag}, {srd(SRD_DBG)}, 0 offen')
            dm = sched[c]
            kiss = self.dma_k(KISSUE[c]) if c in KISSUE else []
            alld = kiss + dm
            if c in a.inist:
                k = a.inist.index(c); per = -(-len(ini) // len(a.inist))
                alld = ini[k*per:(k+1)*per] + alld
            if c == a.initld:
                alld = [[f'v_and_b32 v{vt[5]}, 240, v{vP}',
                         I(f'buffer_load_dword v{vFlag}, v{vt[5]}, {srd(SRD_DBG)}, 0 offen sc1', ('init', 0))]] + alld
            h = (len(alld) + 1) // 2 if c > 0 else 0
            segA_m = self.mf_g(c - 1, 1, 1) if c > 0 else []
            p.add(spread(segA_m, self.reads_g(c, 0, 0), alld[:h]))
            tail = []
            if c in KREAD:
                w = I('s_waitcnt vmcnt(0)'); w.note = ('vm', ('k', KREAD[c]))
                tail = [w] + self.read_k(KREAD[c])
            rl = self.roll(vAw, c + 1) if c + 1 < 14 else []
            if c == 13: rl = self.setva(0)
            p.add(spread(self.mf_g(c, 0, 0), self.reads_g(c, 1, 1), alld[h:], tail + rl))
        self.top(14)
        last = self.mf_g(13, 1, 1)
        rd0 = self.reads_w(0, 0)
        dm = sched[14]
        qk = {}
        for beta in (1, 0):
            qk[beta] = []
            for t in range(4):
                for u in range(2):
                    d = vr(SS(beta), 16)
                    cin = '0' if (t == 0 and u == 0) else d
                    qk[beta].append(f'v_mfma_f32_32x32x16_bf16 {d}, {ar(KF(beta,t,u),4)}, {vr(QA(beta,t)+4*u,4)}, {cin}')
        mf = last + qk[1] + qk[0] + self.mf_w(0, 0)
        G = [[] for _ in mf]
        self.place(G, rd0, 0, 2)
        cv1 = [self.cvt_tile(QA(1, t), QA(1, t)) for t in range(4)]
        cv0 = [self.cvt_tile(QA(0, t), QA(0, t)) for t in range(4)]
        G[3] += cv1[0][:4]; G[4] += cv1[0][4:] + cv1[1][:2]; G[5] += cv1[1][2:]; G[6] += cv1[2][:6]; G[7] += cv1[2][6:] + cv1[3][:4]
        if 14 in KREAD:
            w = I('s_waitcnt vmcnt(0)'); w.note = ('vm', ('k', KREAD[14]))
            G[9] += [w] + self.read_k(KREAD[14])
        G[8] += cv1[3][4:]
        allcv0 = [x for t in range(4) for x in cv0[t]]
        self.place(G, allcv0, 10, 15)
        self.place(G, dm, 20, 27)
        swr = [f'ds_write_b128 v{vExW}, {vr(SS(1)+4*k,4)} offset:{1024*k}' for k in range(4)]
        self.place(G, swr, 18, 21)
        self.place(G, self.reads_w(0, 1), 24, 26)
        G[27] += self.roll(vBo, 15)
        if a.stamps and a.w0st:
            for k, g in enumerate((7, 15, 23)): G[g] = G[g] + self.pstamp(46 + k)
        self.emit(mf, G)
        sm_all = self.softmax()
        nsm = len(a.smsteps)
        cut = [0] + [int(len(sm_all) * x) for x in a.smcut] + [len(sm_all)]
        for n in range(1, 32):
            i = 14 + n; pos, cc = n >> 3, n & 7
            isred = [r for r in range(4) if r < 3 and n == a.red[r]]
            self.top(i, bar=(n <= 8 or bool(isred)), extra_wait=(('pst', 0) if n == a.sig else None))
            if n == a.sig:
                self.one_lane('L_nosig', f'buffer_store_dword v{vOne}, v{vZero}, {srd(SRD_P)}, {sF1} offen sc1')
            if n == a.flagck:
                p.add([f'v_cmp_eq_u32 vcc, 1, v{vFlag}', 's_cmp_eq_u64 vcc, -1', 's_cbranch_scc0 L_slow1', 'L_back1:'])
            if n == a.f01ck and a.flagged:
                p.add([self.flagand(), f'v_readfirstlane_b32 s3, v{vt[4]}', 's_cmp_eq_u32 s3, 1', 's_cbranch_scc0 L_slow2', 'L_back2:'])
                if not self.a.nobar: p.e('s_barrier')
            if n == a.initck:
                p.add([f'v_cmp_le_u32 vcc, 16, v{vFlag}', 's_cmp_eq_u64 vcc, -1', 's_cbranch_scc0 L_slow0', 'L_back0:'])
            if n == a.idlex:
                p.e(f's_cmp_eq_u32 {sIdle}, 1')
                p.e('s_cbranch_scc1 L_idle')
            rd0 = self.reads_w(n, 0); rd1 = self.reads_w(n, 1)
            dm = list(sched[i])
            segA = self.mf_w(n - 1, 1); segB = self.mf_w(n, 0)
            rl = self.roll(vBo, i + 1) if n < 7 else []
            if n % 2 == 1 and n < 31: rl = rl + self.setva((n + 1) >> 1)
            pvx = self.pvw(a.pv[n], order='g1first') if n in a.pv else []
            mf = segA + segB + pvx
            G = [[] for _ in mf]
            pre = []
            self.place(G, rd0, 0, 2)
            if cc == 0:
                pj = pos - 1; k = 0
                for hp in range(2):
                    for g in range(2):
                        G[3 + k] += self.cvt_tile(VW(hp, g), VWB(pj, hp, g)); k += 1
                G[4] = rd1 + G[4]
            else:
                self.place(G, rd1, 4, 6 if n < 8 else 4)
            vm = []
            if n in a.smsteps:
                k = a.smsteps.index(n)
                part = sm_all[cut[k]:cut[k+1]]
                if k == 0:
                    self.place(G, [f'ds_read_b128 {vr(TMP+4*q,4)}, v{vExR1} offset:{1024*q}' for q in range(4)], 0, 1)
                    self.place(G, part, 3, 7)
                else:
                    self.place(G, part, 0, 7)
                if k == nsm - 1:
                    G[7] += [I(f'buffer_store_dwordx4 {vr(SS(0)+4*u,4)}, v{vP}, {srd(SRD_P)}, {sPst} offen offset:{1024*u} sc1', ('pst', 0)) for u in range(2)]
            if i == a.initld:
                vm += [[f'v_and_b32 v{vt[5]}, 240, v{vP}', I(f'buffer_load_dword v{vFlag}, v{vt[5]}, {srd(SRD_DBG)}, 0 offen sc1', ('init', 0))]]
            for (st, ps) in a.pld:
                if n == st: vm += self.pload(ps)
            if n == a.flagld:
                vm = [[I(f'buffer_load_dword v{vFlag}, v{vF1}, {srd(SRD_P)}, 0 offen sc1', ('flag', 0))]] + vm
            if n == a.f01ld and a.flagged:
                vm = [[I(f'buffer_load_dwordx4 v[{vt[0]}:{vt[3]}], v{vZero}, {srd(SRD_P)}, {sF2} offen sc1', ('f01', 0))]] + vm
            for r in a.flagged:
                if n == a.red[r] + a.stdelay[r] + a.sigdelay: vm = self.part_signal(r) + vm
            if n == a.finld: vm += self.part_loads()
            for r in range(3):
                if n == a.red[r] - 1:
                    self.place(G, self.exw_list(r), len(mf) - 3, len(mf) - 1)
                if n == a.red[r]:
                    self.place(G, self.exr_list(r), 0, 1)
                    self.place(G, [f'v_add_f32 v{OT(0)+k}, v{OT(0)+k}, v{TMP+k}' for k in range(16)] + self.cvt_tile(OT(0), OT(0)), 3, 7)
                if n == a.red[r] + a.stdelay[r]:
                    if a.stdelay[r] == 0: G[7] += self.part_store(r)
                    else: vm = self.part_store(r) + vm
            if n == a.idstep: self.place(G, self.idfrag(), 0, 7)
            vm = dm + vm
            if vm:
                lo, hi = (3, 7) if (cc != 0) else (6, 7)
                if n in a.smsteps or n < 8: lo = 2
                self.place(G, vm, lo, hi)
            G[7] += rl
            p.add(pre)
            self.emit(mf, G)
        segA = self.mf_w(31, 1)
        order = [(0, 1), (1, 1), (0, 0), (1, 0)]
        cv = {k: self.cvt_tile(VW(*k), VWB(3, *k)) for k in order}
        pv = self.pvw(3, order='g1first')
        p.add(segA)
        p.add(cv[(0, 1)] + cv[(1, 1)])
        p.add(spread(pv[:4], [], cv[(0, 0)] + cv[(1, 0)]))
        G = [[] for _ in range(4)]
        mf = pv[4:]
        self.place(G, self.exw_list(3), 1, 3)
        self.emit(mf, G)
        p.add(self.pstamp(56))
        p.add(self.valid_check([self.PR(kk) + k for kk in a.sent for k in range(8)], 5))
        p.add(self.pstamp(57))
        p.wait_lgkm0()
        p.e('s_barrier')
        p.add(self.pstamp(58))
        self.exr(3)
        for k in range(3):
            for u in range(2):
                d = vr(OT(0), 16)
                p.e(f'v_mfma_f32_32x32x16_bf16 {d}, {vr(IDF[u],4)}, {vr(self.PR(k)+4*u,4)}, {d}')
        p.add([f'v_add_f32 v{OT(0)+k}, v{OT(0)+k}, v{TMP+k}' for k in range(16)])
        p.add(self.pstamp(59))
        p.add(self.cvt_tile(OT(0), OT(0)))
        for u in range(2):
            p.e(f'buffer_store_dwordx4 {vr(OT(0)+4*u,4)}, v{vOut}, {srd(SRD_OUT)}, 0 offen offset:{32*u}')

    def PR(self, k): return 64 + 8*k

    def part_loads(self, ks=(0, 1, 2)):
        out = []
        for k in ks:
            g = [f's_add_u32 s91, {sInb}, {8192*k}']
            for u in range(2):
                g.append(I(f'buffer_load_dwordx4 {vr(self.PR(k)+4*u,4)}, v{vP}, {srd(SRD_P)}, s91 offen offset:{1024*u} sc1'))
                out.append(g); g = []
        return out

    def exw_list(self, r):
        if r & 1:
            return [f'v_subrev_u32 v{vt[5]}, {EXB - EX1}, v{vExW}'] + [f'ds_write_b128 v{vt[5]}, {vr(OT(1)+4*k,4)} offset:{1024*k}' for k in range(4)]
        return [f'ds_write_b128 v{vExW}, {vr(OT(1)+4*k,4)} offset:{1024*k}' for k in range(4)]

    def exr_list(self, r):
        if r & 1:
            return [f'v_subrev_u32 v{vt[5]}, {EXB - EX1}, v{vExR2}'] + [f'ds_read_b128 {vr(TMP+4*k,4)}, v{vt[5]} offset:{1024*k}' for k in range(4)]
        return [f'ds_read_b128 {vr(TMP+4*k,4)}, v{vExR2} offset:{1024*k}' for k in range(4)]

    def exw(self, r): self.p.add(self.exw_list(r))
    def exr(self, r): self.p.add(self.exr_list(r))

    def part_store(self, r):
        o = ['s_and_b32 s3, s2, 0xfffffffc', f's_or_b32 s3, s3, {sOwn[r]}', 's_mul_i32 s3, s3, 12', f's_add_u32 s3, s3, {4*r}', f's_add_u32 s3, s3, {sW}',
             's_lshl_b32 s3, s3, 11', f's_add_u32 s3, s3, {WS_PART}']
        st = [I(f'buffer_store_dwordx4 {vr(OT(0)+4*u,4)}, v{vP}, {srd(SRD_P)}, s3 offen offset:{1024*u} sc1', ('part', r)) for u in range(2)]
        return [o + [st[0]], [st[1]]]

    def flagand(self):
        f = self.a.flagged
        if len(f) == 1: return f'v_mov_b32 v{vt[4]}, v{vt[f[0]]}'
        return f'v_and_b32 v{vt[4]}, v{vt[f[0]]}, v{vt[f[1]]}'

    def part_signal(self, r):
        w = I('s_waitcnt vmcnt(0)'); w.note = ('vm', ('part', r))
        x = I(f'buffer_store_dword v{vOne}, v{vZero}, {srd(SRD_P)}, s3 offen sc1')
        return [[w, 's_and_b32 s3, s2, 0xfffffffc', f's_or_b32 s3, s3, {sOwn[r]}', 's_lshl_b32 s3, s3, 2', f's_add_u32 s3, s3, {sW}',
                 's_lshl_b32 s3, s3, 7', f's_add_u32 s3, s3, {WS_FLG2 + 4*r}', 's_mov_b64 exec, 1', x, 's_mov_b64 exec, -1']]

    def pload(self, pos):
        out = [[f's_lshl_b32 s91, {sOwn[pos]}, 16', f's_add_u32 s91, s91, {sPld}',
                I(f'buffer_load_dwordx4 {vr(PFV(pos,0,0),4)}, v{vP}, {srd(SRD_P)}, s91 offen sc1')]]
        for k in range(1, 4):
            hp, u = k >> 1, k & 1
            out.append([I(f'buffer_load_dwordx4 {vr(PFV(pos,hp,u),4)}, v{vP}, {srd(SRD_P)}, s91 offen offset:{hp*2048 + u*1024} sc1')])
        return out

    def pvw(self, pos, order=None):
        m = []
        if order == 'g1first':
            for g in (1, 0):
                first = True
                for hp in range(2):
                    for u in range(2):
                        d = vr(OT(g), 16)
                        m.append(f'v_mfma_f32_32x32x16_bf16 {d}, {vr(VWB(pos,hp,g)+4*u,4)}, {vr(PFV(pos,hp,u),4)}, {"0" if first else d}')
                        first = False
            return m
        for hp in range(2):
            for u in range(2):
                for g in range(2):
                    d = vr(OT(g), 16)
                    cin = '0' if (hp == 0 and u == 0) else d
                    m.append(f'v_mfma_f32_32x32x16_bf16 {d}, {vr(VWB(pos,hp,g)+4*u,4)}, {vr(PFV(pos,hp,u),4)}, {cin}')
        return m

    def softmax(self):
        S = SS(0); t0, t1, t2 = vt[1], vt[2], vt[3]
        o = []
        o += [f'v_add_f32 v{S+k}, v{S+k}, v{TMP+k}' for k in range(16)]
        o.append(f'v_max3_f32 v{t0}, v{S}, v{S+1}, v{S+2}')
        for k in range(3, 15, 2):
            o.append(f'v_max3_f32 v{t0}, v{t0}, v{S+k}, v{S+k+1}')
        o.append(f'v_max_f32 v{t0}, v{t0}, v{S+15}')
        o += [f'v_mov_b32 v{t1}, v{t0}', f'v_permlane32_swap_b32 v{t0}, v{t1}', f'v_max_f32 v{t0}, v{t0}, v{t1}',
              's_mov_b32 s3, 0x3db8aa3b', f'v_mul_f32 v{t0}, s3, v{t0}']
        for k in range(16): o.append(f'v_fma_f32 v{S+k}, v{S+k}, s3, -v{t0}')
        for k in range(16): o.append(f'v_exp_f32 v{S+k}, v{S+k}')
        o.append(f'v_add_f32 v{t1}, v{S}, v{S+1}')
        o.append(f'v_add_f32 v{t2}, v{S+2}, v{S+3}')
        for k in range(4, 16, 2):
            o.append(f'v_add_f32 v{t1}, v{t1}, v{S+k}')
            o.append(f'v_add_f32 v{t2}, v{t2}, v{S+k+1}')
        o += [f'v_add_f32 v{t1}, v{t1}, v{t2}', f'v_mov_b32 v{t2}, v{t1}', f'v_permlane32_swap_b32 v{t1}, v{t2}',
              f'v_add_f32 v{t1}, v{t1}, v{t2}', f'v_rcp_f32 v{t1}, v{t1}']
        for k in range(16): o.append(f'v_mul_f32 v{S+k}, v{S+k}, v{t1}')
        o += self.cvt_tile(S, S)
        return o

    def slowpath(self):
        def spin(tag, load, test, back):
            return f'''
L_slow{tag}:
    s_mov_b32 {sCnt}, 0
L_spin{tag}:
    s_add_u32 s{12 if tag == 0 else 13 if tag < 2 else 14}, s{12 if tag == 0 else 13 if tag < 2 else 14}, {1 if tag != 2 else 64}
    {load}
    s_waitcnt vmcnt(0)
{test}
    s_cbranch_scc1 {back}
    s_add_u32 {sCnt}, {sCnt}, 1
    s_cmp_lt_u32 {sCnt}, 0x8000
    s_cbranch_scc1 L_spin{tag}
    s_branch {back}
'''
        s0 = spin(0, f'buffer_load_dword v{vFlag}, v{vt[5]}, {srd(SRD_DBG)}, 0 offen sc1',
                  f'    v_cmp_le_u32 vcc, 16, v{vFlag}\n    s_nop 4\n    s_cmp_eq_u64 vcc, -1', 'L_back0')
        out = s0
        def vchk(regs):
            t = vt[4]
            o = [f'v_max3_u32 v{t}, v{regs[0]}, v{regs[1]}, v{regs[2]}']
            for k in range(3, len(regs) - 1, 2): o.append(f'v_max3_u32 v{t}, v{t}, v{regs[k]}, v{regs[k+1]}')
            if len(regs) % 2 == 0: o.append(f'v_max_u32 v{t}, v{t}, v{regs[-1]}')
            o += [f'v_cmp_ne_u32 vcc, -1, v{t}', 's_nop 4', 's_cmp_eq_u64 vcc, -1']
            return '\n'.join('    ' + x for x in o)
        def flat(groups):
            return '\n    '.join((x.t if isinstance(x, I) else x) for g in groups for x in g)
        out += spin(1, f'buffer_load_dword v{vFlag}, v{vF1}, {srd(SRD_P)}, 0 offen sc1',
                    f'    v_cmp_eq_u32 vcc, 1, v{vFlag}\n    s_nop 4\n    s_cmp_eq_u64 vcc, -1', 'L_back1')
        out += spin(2, f'buffer_load_dwordx4 v[{vt[0]}:{vt[3]}], v{vZero}, {srd(SRD_P)}, {sF2} offen sc1',
                    f'    {self.flagand() if self.a.flagged else "s_nop 0"}\n    s_nop 1\n    v_readfirstlane_b32 s3, v{vt[4]}\n    s_nop 4\n    s_cmp_eq_u32 s3, 1', 'L_back2') if self.a.flagged else ''
        out += spin(5, flat(self.part_loads(tuple(self.a.sent))), vchk([self.PR(kk) + k for kk in self.a.sent for k in range(8)]), 'L_back5')
        return out

    def stamps_out(self):
        if self.a.dbgclk:
            return f'''
    s_memtime s[8:9]
    s_memrealtime s[10:11]
    s_waitcnt lgkmcnt(0)
    s_sub_u32 s8, s8, s94
    s_sub_u32 s10, s10, s92
    s_and_b32 s3, s2, 63
    s_cmp_eq_u32 s3, 0
    s_cbranch_scc0 L_nodbg
    s_cmp_eq_u32 {sW}, 0
    s_cbranch_scc0 L_nodbg
    s_lshr_b32 s3, s2, 6
    s_lshl_b32 s3, s3, 4
    s_add_u32 s3, s3, 4
    v_mov_b32 v0, s3
    v_mov_b32 v2, s8
    v_mov_b32 v3, s10
    s_mov_b64 exec, 1
    buffer_store_dwordx2 v[2:3], v0, {srd(SRD_DBG)}, 0 offen
L_nodbg:
'''
        if not self.a.stamps: return ''
        return f'''
    s_memrealtime s[92:93]
    s_waitcnt lgkmcnt(0)
    v_writelane_b32 v253, s92, 63
    s_memtime s[92:93]
    s_waitcnt lgkmcnt(0)
    v_writelane_b32 v255, s92, 62
    s_lshl_b32 s13, s13, 8
    s_lshl_b32 s14, s14, 16
    s_or_b32 s12, s12, s13
    s_or_b32 s12, s12, s14
    v_writelane_b32 v255, s12, 61
    v_writelane_b32 v255, s94, 63
    s_lshl_b32 s3, s2, 2
    s_add_u32 s3, s3, {sW}
    s_lshl_b32 s3, s3, 8
    s_add_u32 s3, s3, 0x400000
    s_add_u32 s8, s32, s3
    s_addc_u32 s9, s33, 0
    s_mov_b32 s10, 256
    s_mov_b32 s11, 0x20000
    v_mbcnt_lo_u32_b32 v254, -1, 0
    v_mbcnt_hi_u32_b32 v254, -1, v254
    v_lshlrev_b32 v254, 2, v254
    buffer_store_dword v255, v254, s[8:11], 0 offen
    s_add_u32 s8, s8, 0x100000
    s_addc_u32 s9, s9, 0
    buffer_store_dword v253, v254, s[8:11], 0 offen
'''

    def build(self):
        sched = self.make_schedule()
        if self.a.verbose:
            for s in range(-1, 46):
                toks = []
                for g in sched[s]:
                    for x in g:
                        if isinstance(x, I) and x.tok: toks.append(x.tok)
                print(s, toks, file=sys.stderr)
        self.prologue(sched)
        self.body(sched)
        ins = self.p.finalize()
        owner = None; fresh = False
        for x in ins:
            if x.kind == 'salu' and ('m0', 0) in x.wr: fresh = True
            if x.kind == 'dma':
                if fresh: owner = x.tok; fresh = False
                assert owner == x.tok, (owner, x.tok, x.t)
        txt = render(ins)
        s = open(self.a.header).read()
        s += f'; @launch grid=(256,1,1) block=(256,1,1) lds={LDS_BYTES}\n'
        s += '.amdgcn_target "amdgcn-amd-amdhsa--gfx950"\n.text\n'
        s += f'.globl {NAME}\n.p2align 8\n.type {NAME},@function\n{NAME}:\n'
        s += txt
        s += 'L_fin:\n' + self.stamps_out() + '    s_endpgm\n'
        s += self.slowpath()
        s += 'L_idle:\n'
        if self.a.idlepf:
            s += f'''    s_lshl_b32 s3, {sR4}, 20
    s_sub_u32 s{SRD_V+2}, 4194304, s3
    s_lshl_b32 s3, {sX4}, 18
    s_add_u32 s3, s3, {sVb}
    v_lshlrev_b32 v0, 3, v{vP}
    buffer_load_dword v1, v0, {srd(SRD_V)}, s3 offen
    s_add_u32 s3, s3, 8192
    buffer_load_dword v2, v0, {srd(SRD_V)}, s3 offen
'''
        s += 'L_end:\n'
        if self.a.stamps: s += '    s_cmp_ge_u32 s2, 256\n    s_cbranch_scc0 L_fin\n'
        s += '    s_endpgm\n'
        s += f'''.section .rodata,"a"
.p2align 6
.amdhsa_kernel {NAME}
  .amdhsa_next_free_vgpr 512
  .amdhsa_next_free_sgpr 102
  .amdhsa_accum_offset 256
  .amdhsa_group_segment_fixed_size 0
  .amdhsa_kernarg_size 104
  .amdhsa_user_sgpr_count 2
  .amdhsa_user_sgpr_kernarg_segment_ptr 1
  .amdhsa_system_sgpr_workgroup_id_x 1
.end_amdhsa_kernel
'''
        return s, ins

def main():
    ap = argparse.ArgumentParser()
    ap.add_argument('-o', default='concat_heads__gqa_block_cached__gqa_block_cached__near_ridge.s')
    ap.add_argument('--header', default='header.txt')
    ap.add_argument('--stamps', action='store_true')
    ap.add_argument('--dbgclk', action='store_true')
    ap.add_argument('--rt', action='store_true')
    ap.add_argument('--w0st', action='store_true')
    ap.add_argument('--post', action='store_true')
    ap.add_argument('--codepf', type=int, default=32768)
    ap.add_argument('--sig', type=int, default=6)
    ap.add_argument('--sigdelay', type=int, default=3)
    ap.add_argument('--flagld', type=int, default=10)
    ap.add_argument('--flagck', type=int, default=13)
    ap.add_argument('--initsig', type=int, default=8)
    ap.add_argument('--initld', type=int, default=16)
    ap.add_argument('--initck', type=int, default=6)
    ap.add_argument('--finld', type=int, default=31)
    ap.add_argument('--sd2', type=int, default=0)
    ap.add_argument('--pld0', type=int, default=12)
    ap.add_argument('--sm', default='1,2,3')
    ap.add_argument('--ini', default='5')
    ap.add_argument('--idlex', type=int, default=6)
    ap.add_argument('--sentk', default='2')
    ap.add_argument('--idstep', type=int, default=27)
    ap.add_argument('--pace', type=int, default=2)
    ap.add_argument('--rotp', type=int, default=1)
    ap.add_argument('--touch', type=int, default=1)
    ap.add_argument('--idlepf', type=int, default=1)
    ap.add_argument('--f01ld', type=int, default=29)
    ap.add_argument('--f01ck', type=int, default=31)
    ap.add_argument('--kiss', default='3,6,9,12')
    ap.add_argument('--kread', default='5,8,11,14')
    ap.add_argument('--pv0', type=int, default=17)
    ap.add_argument('--nt', default='')
    ap.add_argument('--rot1', type=int, default=4)
    ap.add_argument('--rot2', type=int, default=1)
    ap.add_argument('--catch', type=int, default=10)
    ap.add_argument('--catch_steps', type=int, default=4)
    ap.add_argument('--nodma', action='store_true')
    ap.add_argument('--nobar', action='store_true')
    ap.add_argument('--noreads', action='store_true')
    ap.add_argument('--verbose', action='store_true')
    a = ap.parse_args()
    a.pld = [(a.flagck, 0), (a.flagck + 1, 1), (a.pv0 + 1, 2), (a.pv0 + 4, 3)]
    a.pv = {a.pv0: 0, a.pv0 + 3: 1, 24: 2}
    a.red = [a.pv0 + 1, a.pv0 + 4, 25]
    a.stdelay = [1, 1, a.sd2]
    a.smsteps = [int(x) for x in a.sm.split(',')]
    a.smcut = {1: [], 2: [0.5], 3: [0.3, 0.62]}[len(a.smsteps)]
    a.inist = [int(x) for x in a.ini.split(',')]
    a.sent = [int(x) for x in a.sentk.split(',')]
    a.flagged = [r for r in range(3) if r not in a.sent]
    a.kiss = [int(x) for x in a.kiss.split(',')]
    a.kread = [int(x) for x in a.kread.split(',')]
    g = Gen(a)
    s, ins = g.build()
    open(a.o, 'w').write(s)
    from collections import Counter
    print(Counter(x.kind for x in ins), file=sys.stderr)

if __name__ == '__main__':
    main()
```

```python
import sys, argparse
from ir import *

NAME = 'concat_heads__gqa_block_cached__gqa_block_cached__near_ridge_kernel'
SA = 16384
BB = 98304
EXB = 147456
LDS_BYTES = 163840

sW = 's4'
SRD_X, SRD_WQ, SRD_K, SRD_V, SRD_WO, SRD_P, SRD_OUT, SRD_DBG, SRD_CODE = 36, 40, 44, 48, 52, 56, 60, 64, 68
def srd(b): return f's[{b}:{b+3}]'
sM0 = 's72'
sPA, sPB = 's73', 's74'
sTa, sTb = ['s75', 's76'], ['s77', 's78']
sKb = ['s79', 's80']
sIdle, sPst, sPld, sF1 = 's81', 's82', 's83', 's84'
sBr, sSlot, sH, sRg, sR4, sCt, sX4 = 's34', 's35', 's85', 's86', 's87', 's88', 's89'
sCnt = 's90'
sC0, sVb = 's96', 's97'
sDh, sBp = 's5', 's6'
sInb, sF2 = 's16', 's17'
sOwn = ['s98', 's99', 's100', 's101']
WS_FLG1, WS_FLG2, WS_PART = 6 << 20, (6 << 20) + (64 << 10), 8 << 20

def QA(beta, t): return 64*beta + 16*t
def SS(beta): return 128 + 16*beta
def OT(g): return 160 + 16*g
TMP = 192
vBx = [[[160, 161], [162, 163]], [[164, 165], [166, 167]]]
vAw = [168, 169, 170, 171]
vX = [172, 173, 174, 175]; vWq = [176, 177, 178, 179]
vKr = [[180, 181], [182, 183]]
def FV(s): return 208 + 4*s
vKd = [216, 217, 218, 219]
vAv = [[220, 221], [222, 223]]
vAt = [[224, 225], [226, 227]]
vBo = [228, 229]
vO = [230, 231, 232, 233]
vP, vOut, vExW, vExR1, vExR2, vDummy, vFlag, vOne, vZero, vF1 = 234, 235, 236, 237, 238, 239, 240, 241, 242, 243
vt = [244, 245, 246, 247, 248, 249]
IDF = [216, 228]
def VW(hp, g): return 32*hp + 16*g
def VWB(pos, hp, g): return 64 + 32*(pos & 1) + 16*hp + 8*g
def PFV(pos, hp, u): return 128 + 16*(pos & 1) + 8*hp + 4*u
def FA(f, t): return 24*f + 4*t
def FB(f, b): return 24*f + 16 + 4*b
def KF(beta, t, u): return 48 + 32*beta + 8*t + 4*u
def WF(n, s, hp, g): return (112 + 32*n + 16*s + 8*hp + 4*g) % 256
def vr(b, n=1): return f'v{b}' if n == 1 else f'v[{b}:{b+n-1}]'
def ar(b, n=1): return f'a{b}' if n == 1 else f'a[{b}:{b+n-1}]'
VSLOT = {0: (BB+SA, 10), 1: (BB+2*SA, 12), 2: (BB, 14), 3: (BB+SA, 16), 4: (4*SA, 17), 5: (5*SA, 18), 6: (0, 19), 7: (SA, 20),
         8: (BB+2*SA, 21), 9: (2*SA, 22), 10: (BB, 23), 11: (BB+SA, 24), 12: (4*SA, 25), 13: (5*SA, 26), 14: (0, 28), 15: (SA, 30)}
EX1 = 3*SA

def spread(mf, early, even, late=(), per=3):
    n = len(mf)
    if n == 0: return list(early) + list(even) + list(late)
    gaps = [[] for _ in range(n)]
    idx = 0
    g = 0
    while idx < len(early):
        for _ in range(per):
            if idx < len(early): gaps[min(g, n-1)].append(early[idx]); idx += 1
        g += 1
    first = min(g, n-1) if len(even) <= n - g or g >= n else max(0, n - len(even))
    if g >= n: first = 0
    k = len(even); m = n - first
    for j, x in enumerate(even):
        gaps[first + min(m-1, int(j * m / k))].append(x)
    out = []
    for mm, gp in zip(mf, gaps):
        out.append(mm); out += gp
    return out + list(late)

class Gen:
    def __init__(self, a):
        self.a = a
        self.p = Prog()
        self.nstamp = 0
        self.pol = {k: (' nt' if k in a.nt else '') for k in 'xqkvo'}

    def dma_A(self, i):
        slot = (i % 6) * SA
        t = sTa[i & 1]
        if self.a.nodma and i >= 6: return []
        if i < 14:
            par = i & 1
            pre = [f's_lshl_b32 {t}, {sPA}, 19']
            if par: pre += [f's_add_u32 {t}, {t}, 262144'] + self.adv7(sPA)
            regs, sr, pol = vWq, SRD_WQ, self.pol['q']
        else:
            n = i - 14; tt, par = n >> 1, n & 1
            pre = [f's_add_u32 {t}, {sC0}, {tt}', f's_and_b32 {t}, {t}, 3', f's_mul_i32 {t}, {t}, 57344']
            if par: pre += [f's_add_u32 {t}, {t}, 28672']
            regs, sr, pol = vO, SRD_WO, self.pol['o']
        f = [[f's_add_u32 m0, {sM0}, {slot}'] + pre]
        f[0].append(I(f'buffer_load_dwordx4 v{regs[0]}, {srd(sr)}, {t} offen{pol} lds', ('A', i)))
        for k in range(1, 4):
            f.append([I(f'buffer_load_dwordx4 v{regs[k]}, {srd(sr)}, {t} offen offset:{1024*k}{pol} lds', ('A', i))])
        return f

    def adv7(self, r):
        return [f's_add_u32 {r}, {r}, 1', f's_cmp_eq_u32 {r}, 7', f's_cselect_b32 {r}, 0, {r}']

    def dma_B(self, pi):
        t = sTb[pi & 1]
        if self.a.nodma and pi >= 3: return []
        if pi < 7:
            slot = BB + (pi % 3) * SA
            pre = [f's_lshl_b32 {t}, {sPB}, 7'] + self.adv7(sPB)
            regs, sr, pol = vX, SRD_X, self.pol['x']
        else:
            tt = pi - 7; pos = tt >> 2
            slot = VSLOT[tt][0]
            pre = [f's_add_u32 {t}, {sC0}, {tt & 3}', f's_and_b32 {t}, {t}, 3', f's_lshl_b32 {t}, {t}, 7', f's_add_u32 {t}, {t}, {sVb}',
                   f's_lshl_b32 s91, {sOwn[pos]}, 18', f's_add_u32 {t}, {t}, s91']
            regs, sr, pol = vKd, SRD_V, self.pol['v']
        g0 = [f's_add_u32 m0, {sM0}, {slot}'] + pre
        f = [g0 + [I(f'buffer_load_dwordx4 v{regs[0]}, {srd(sr)}, {t} offen{pol} lds', ('B', pi))]]
        for k in range(1, 4):
            pre2 = [f's_add_u32 m0, {sM0}, {slot}', 's_nop 0'] if k == 2 else []
            f.append(pre2 + [I(f'buffer_load_dwordx4 v{regs[k]}, {srd(sr)}, {t} offen offset:{1024*k}{pol} lds', ('B', pi))])
        return f

    def dma_k(self, a):
        beta, dq = 1 - (a >> 1), a & 1
        pol = self.pol['k']
        f = [[f's_add_u32 m0, {sM0}, {EXB}', f's_add_u32 s91, {sKb[beta]}, {dq*128}',
              I(f'buffer_load_dwordx4 v{vKd[0]}, {srd(SRD_K)}, s91 offen{pol} lds', ('k', a))]]
        for k in range(1, 4):
            f.append([I(f'buffer_load_dwordx4 v{vKd[k]}, {srd(SRD_K)}, s91 offen offset:{1024*k}{pol} lds', ('k', a))])
        return f

    def read_k(self, a):
        beta, dq = 1 - (a >> 1), a & 1
        return [f'ds_read_b128 {ar(KF(beta, 2*dq+tp, u), 4)}, v{vKr[tp][u]}' for tp in range(2) for u in range(2)]

    def reads_g(self, c, s, f):
        so = (c % 3) * SA
        bo = ((c >> 1) % 3) * SA
        par = c & 1
        rdA = lambda t: [f'ds_read_b64_tr_b16 {ar(FA(f,t)+2*m, 2)}, v{vAw[t]} offset:{so + s*8192 + m*2048}' for m in range(2)]
        rdB = lambda b: [f'ds_read_b128 {ar(FB(f,b), 4)}, v{vBx[b][par][s]} offset:{bo}']
        if self.a.noreads and c > 0: return []
        return rdB(1) + rdA(0) + rdA(1) + rdA(2) + rdA(3) + rdB(0)

    def mf_g(self, c, s, f):
        m = []
        for beta in (1, 0):
            for t in range(4):
                d = vr(QA(beta, t), 16)
                cin = '0' if (c == 0 and s == 0) else d
                m.append(f'v_mfma_f32_32x32x16_bf16 {d}, {ar(FA(f,t),4)}, {ar(FB(f,beta),4)}, {cin}')
        return m

    def setva(self, tt):
        base = VSLOT[tt][0]
        return [f'v_add_u32 v{vAt[par][s]}, {base}, v{vAv[par][s]}' for par in range(2) for s in range(2)]

    def reads_w(self, n, s):
        i = 14 + n
        so = (i % 3) * SA
        par = n & 1
        if self.a.noreads: return []
        r = [f'ds_read_b128 {vr(FV(s),4)}, v{vAt[par][s]}']
        if n < 8:
            for hp in range(2):
                for g in range(2):
                    r += [f'ds_read_b64_tr_b16 {ar(WF(n,s,hp,g)+2*m, 2)}, v{vBo[g]} offset:{so + hp*4096 + s*2048 + m*512}' for m in range(2)]
        return r

    def mf_w(self, n, s):
        m = []
        for hp in range(2):
            for g in range(2):
                d = vr(VW(hp, g), 16)
                cin = '0' if ((n & 7) == 0 and s == 0) else d
                m.append(f'v_mfma_f32_32x32x16_bf16 {d}, {vr(FV(s),4)}, {ar(WF(n & 7,s,hp,g),4)}, {cin}')
        return m

    def roll(self, regs, i):
        if i % 3 != 0 or i == 0: return []
        if (i % 6) == 3: return [f'v_add_u32 v{r}, {3*SA}, v{r}' for r in regs]
        return [f'v_subrev_u32 v{r}, {3*SA}, v{r}' for r in regs]

    def top(self, i, bar=True, extra_wait=None):
        p = self.p
        b2 = self.a.bar2 and i <= 21
        if b2 and i % 2 == 1 and not extra_wait and i not in (1, 15):
            bar = False; skip = True
        else:
            skip = False
        if self.a.stamps: p.e('s_memtime s[92:93]')
        if self.a.stamps and self.a.rt: p.e('s_memrealtime s[30:31]')
        if not (self.a.nodma and i >= 6) and not skip:
            if i <= 21: p.wait_vm(('A', i))
            if b2 and i % 2 == 0 and i + 1 <= 21 and i + 1 not in (1, 15): p.wait_vm(('A', i + 1))
            if i % 2 == 0: p.wait_vm(('B', i >> 1))
        if extra_wait: p.wait_vm(extra_wait)
        if bar or self.a.stamps: p.wait_lgkm0()
        if self.a.stamps:
            k = self.nstamp; self.nstamp += 1
            if k < 46: p.e(f'v_writelane_b32 v255, s92, {k}')
            if k < 50 and self.a.rt: p.e(f'v_writelane_b32 v253, s30, {k}')
        if bar and not self.a.nobar: p.e('s_barrier')
        if self.a.stamps and self.a.post:
            p.add(['s_memtime s[92:93]', 's_waitcnt lgkmcnt(0)', f'v_writelane_b32 v253, s92, {i}'])

    def pstamp(self, lane):
        if not self.a.stamps: return []
        return ['s_memtime s[92:93]', 's_waitcnt lgkmcnt(0)', f'v_writelane_b32 v255, s92, {lane}']

    def cvt_tile(self, src, dst):
        return [f'v_cvt_pk_bf16_f32 v{dst+k}, v{src+2*k}, v{src+2*k+1}' for k in range(8)]

    def barsteps(self):
        a = self.a
        if not a.bar2: return set(range(0, 23))
        return set(list(range(0, 23, 2)) + [1, 15])

    def make_schedule(self):
        a = self.a
        A = {i: self.dma_A(i) for i in range(22)}
        B = {q: self.dma_B(q) for q in range(23)}
        bars = self.barsteps()
        nb = lambda j: min(x for x in bars if x > j)
        T = {s: [] for s in range(-1, 46)}
        def add(s, *items): T[s] += list(items)
        add(-1, 'B0', 'A0', 'A1')
        vstep = {t: VSLOT[t][1] for t in VSLOT}
        if a.bar2:
            add(0, 'B1', 'A2', 'A3'); add(1, 'A4', 'A5'); add(2, 'B2', 'A6'); add(3, 'A7', 'B3a'); add(4, 'B3b', 'A8'); add(5, 'A9', 'B4a')
            add(6, 'B4b', 'A10'); add(7, 'A11', 'B5a'); add(8, 'B5b', 'A12'); add(9, 'A13', 'B6a'); add(10, 'B6b', 'A14'); add(11, 'A15', 'B7a')
            add(12, 'B7b', 'A16'); add(13, 'A17', 'B8'); add(15, 'A18', 'B9'); add(16, 'A19', 'A20'); add(17, 'A21', 'B10')
            add(18, 'B11', 'B12'); add(20, 'B13', 'B14')
            vstep.update({4: 18, 5: 18, 6: 20, 7: 20})
            rest = range(8, 16)
        else:
            if a.early == 0:
                add(0, 'B1', 'A2'); add(1, 'A3', 'A4'); add(2, 'B2', 'A5'); add(3, 'A6', 'B3a', 'A7'); add(4, 'B3b', 'A8', 'A9')
                add(5, 'B4a', 'A10'); add(6, 'B4b', 'A11'); add(7, 'B5a', 'A12'); add(8, 'B5b', 'A13', 'B6a')
                add(9, 'B6b', 'A14')
            elif a.early == 1:
                add(0, 'B1', 'A2'); add(1, 'A3', 'B2a'); add(2, 'B2b', 'A4'); add(3, 'A5', 'B3a'); add(4, 'B3b', 'A6', 'A7')
                add(5, 'A8', 'B4a'); add(6, 'B4b', 'A9', 'A10'); add(7, 'A11', 'B5a'); add(8, 'B5b', 'A12', 'A13'); add(9, 'B6', 'A14')
            else:
                add(0, 'B1', 'A2'); add(1, 'A3', 'B2a'); add(2, 'B2b', 'A4'); add(3, 'A5', 'B3a'); add(4, 'B3b', 'A6')
                add(5, 'A7', 'B4a', 'A8'); add(6, 'B4b', 'A9'); add(7, 'A10', 'B5a', 'A11'); add(8, 'B5b', 'A12', 'A13'); add(9, 'B6', 'A14')
            if a.pace == 1:
                add(10, 'B7'); add(11, 'A15'); add(12, 'A16'); add(13, 'B8'); add(14, 'A17', 'A18'); add(15, 'B9', 'A19'); add(16, 'A20', 'B10a')
                add(17, 'B10b', 'A21', 'B11a'); add(18, 'B11b', 'B12'); add(19, 'B13')
            elif a.pace == 4:
                add(10, 'A15', 'B7a'); add(11, 'B7b', 'A16'); add(12, 'A17'); add(13, 'B8', 'A18'); add(14, 'A19'); add(15, 'B9', 'A20'); add(16, 'A21'); add(17, 'B10', 'B11')
                add(18, 'B12'); add(19, 'B13')
            elif a.pace == 5:
                add(10, 'B7'); add(11, 'A15', 'A16'); add(12, 'A17'); add(13, 'B8'); add(14, 'A18'); add(15, 'B9', 'A19'); add(16, 'A20', 'A21'); add(17, 'B10', 'B11')
                add(18, 'B12'); add(19, 'B13')
            elif a.pace == 2:
                add(10, 'B7'); add(11, 'A15'); add(12, 'A16'); add(13, 'B8'); add(15, 'A17', 'B9'); add(16, 'A18', 'A19'); add(17, 'A20', 'B10')
                add(18, 'A21', 'B11'); add(19, 'B12', 'B13')
            else:
                add(10, 'B7'); add(11, 'A15'); add(12, 'A16'); add(13, 'B8', 'A17'); add(15, 'A18', 'B9'); add(16, 'A19', 'A20'); add(17, 'B10', 'A21')
                add(18, 'B11', 'B12'); add(19, 'B13')
            rest = range(7, 16)
        for t in rest: add(max(vstep[t], 21 if (a.bar2 and t == 8) else 0), f'B{7+t}')
        prevA = {4*SA: 16, 5*SA: 17, 0: 18, SA: 19, 2*SA: 20}
        sched = {}
        seen = set()
        for s_ in sorted(T):
            out = []
            for it in T[s_]:
                k = it[0]; half = it[-1] if it[-1] in 'ab' else None
                idx = int(it[1:-1] if half else it[1:])
                if k == 'A':
                    assert idx < 6 or nb(idx - 6) <= s_, it
                    need = idx - 1 if (a.bar2 and idx % 2 == 1 and idx not in (1, 15)) else idx
                    assert s_ < max(need, 0) or s_ == -1, (it, s_)
                    out += A[idx]
                else:
                    if idx < 7:
                        assert idx < 3 or nb(2*(idx - 3) + 1) <= s_, it
                    else:
                        t = idx - 7; base = VSLOT[t][0]
                        if t <= 2: assert nb(2*(idx - 3) + 1) <= s_, it
                        elif base in prevA and t < 12 and (base, 'v') not in seen:
                            assert nb(prevA[base]) <= s_, (it, s_); seen.add((base, 'v'))
                        else:
                            prev = max(tt for tt in range(t) if VSLOT[tt][0] == base)
                            assert 14 + 2*prev + 1 < s_, (it, s_)
                    assert s_ < 2*idx or s_ == -1, (it, s_)
                    g = B[idx]
                    if not g: continue
                    out += g[:2] if half == 'a' else g[2:] if half == 'b' else g
            sched[s_] = out
        return sched

    def prologue(self, sched):
        p = self.p; a = self.a
        p.e('s_cmp_ge_u32 s2, 256')
        p.e('s_cbranch_scc1 L_end')
        p.e('s_load_dwordx16 s[8:23], s[0:1], 0')
        p.e('s_load_dwordx4 s[24:27], s[0:1], 64')
        p.e('s_load_dwordx4 s[28:31], s[0:1], 80')
        p.e('s_load_dwordx2 s[32:33], s[0:1], 96')
        if a.codepf and a.earlypf:
            p.e(f'''
            s_getpc_b64 s[{SRD_CODE}:{SRD_CODE+1}]
            s_mov_b32 s{SRD_CODE+2}, {a.codepf}
            s_mov_b32 s{SRD_CODE+3}, 0x20000
            s_and_b32 s3, s2, 0xfffffff8
            v_lshrrev_b32 v20, 5, v0
            v_add_u32 v20, s3, v20
            v_lshlrev_b32 v20, 7, v20
            buffer_load_dword v{vDummy}, v20, {srd(SRD_CODE)}, 0 offen
            ''')
        if a.stamps:
            p.e('v_mov_b32 v255, 0')
            p.e('v_mov_b32 v253, 0')
            p.e('s_memtime s[94:95]')
            p.e('s_memrealtime s[14:15]') if False else None
        if a.dbgclk or a.span:
            p.e('s_memtime s[94:95]')
            p.e('s_memrealtime s[92:93]')
        p.e(f'''
        v_lshrrev_b32 v1, 6, v0
        v_and_b32 v2, 63, v0
        s_and_b32 {sX4}, s2, 3
        s_bfe_u32 {sBr}, s2, 0x10002
        s_lshr_b32 {sSlot}, s2, 3
        v_readfirstlane_b32 {sW}, v1
        s_and_b32 s3, {sSlot}, 3
        s_lshl_b32 {sH}, {sX4}, 2
        s_add_u32 {sH}, {sH}, s3
        s_lshr_b32 {sRg}, {sSlot}, 2
        ''')
        if a.rot1 == 7:
            p.e(f'''
            s_lshl_b32 s3, s3, 1
            s_add_u32 s3, s3, {sRg}
            s_cmp_ge_u32 s3, 7
            s_cselect_b32 s7, 7, 0
            s_sub_u32 s3, s3, s7
            s_cmp_ge_u32 s3, 7
            s_cselect_b32 s7, 7, 0
            s_sub_u32 {sPA}, s3, s7
            s_mov_b32 {sPB}, {sPA}
            ''')
        elif a.rot1 in (2, 4):
            mul = {2: 3, 4: 2}[a.rot1]
            p.e(f'''
            s_add_u32 s3, s3, {sRg}
            s_and_b32 s3, s3, {a.rot1-1}
            s_mul_i32 {sPA}, s3, {mul}
            s_mov_b32 {sPB}, {sPA}
            ''')
        else:
            p.e(f's_mov_b32 {sPA}, 0\ns_mov_b32 {sPB}, 0')
        p.e('''
        v_lshrrev_b32 v5, 4, v2
        v_lshrrev_b32 v9, 3, v2
        v_and_b32 v10, 7, v2
        v_lshrrev_b32 v7, 5, v2
        v_and_b32 v8, 31, v2
        ''')
        p.e(f'''
        v_xor_b32 v11, v10, v5
        v_lshlrev_b32 v11, 4, v11
        v_xor_b32 v3, 64, v11
        s_lshl_b32 s3, {sW}, 5
        v_add_u32 v12, s3, v9
        v_mul_u32_u24 v12, 896, v12
        v_add_u32 v{vX[0]}, v11, v12
        v_add_u32 v13, v3, v12
        v_add_u32 v{vX[1]}, {8*896-1024}, v13
        v_add_u32 v{vX[2]}, {16*896-2048}, v{vX[0]}
        v_add_u32 v{vX[3]}, {24*896-3072}, v13
        ''')
        p.e(f'''
        s_lshl_b32 s3, {sW}, 3
        v_lshlrev_b32 v13, 2, v7
        v_xor_b32 v13, v8, v13
        v_lshlrev_b32 v13, 4, v13
        v_add_u32 v12, s3, v7
        v_lshl_add_u32 v{vWq[0]}, v12, 13, v13
        v_xor_b32 v13, 128, v13
        v_lshl_add_u32 v14, v12, 13, v13
        v_add_u32 v{vWq[1]}, {2*8192-1024}, v14
        v_add_u32 v{vWq[2]}, {4*8192-2048}, v{vWq[0]}
        v_add_u32 v{vWq[3]}, {6*8192-3072}, v14
        s_lshl_b32 {sM0}, {sW}, 12
        ''')
        p.wait_lgkm0()
        if a.stamps:
            p.e('s_memrealtime s[92:93]'); p.e('s_waitcnt lgkmcnt(0)'); p.e('v_writelane_b32 v253, s92, 62')
        p.add(self.pstamp(50))
        p.e(f's_cmp_eq_u32 {sBr}, 0')
        for (dst, pa, pb) in ((SRD_X, 8, 18), (SRD_WQ, 14, 24)):
            p.e(f's_cselect_b32 s{dst}, s{pa}, s{pb}')
            p.e(f's_cselect_b32 s{dst+1}, s{pa+1}, s{pb+1}')
        p.e(f'''
        s_mul_i32 s3, {sRg}, 114688
        s_add_u32 s{SRD_X}, s{SRD_X}, s3
        s_addc_u32 s{SRD_X+1}, s{SRD_X+1}, 0
        s_sub_u32 s{SRD_X+2}, 917504, s3
        s_mov_b32 s{SRD_X+3}, 0x20000
        s_lshl_b32 s3, {sH}, 9
        s_add_u32 s{SRD_WQ}, s{SRD_WQ}, s3
        s_addc_u32 s{SRD_WQ+1}, s{SRD_WQ+1}, 0
        s_sub_u32 s{SRD_WQ+2}, 3670016, s3
        s_mov_b32 s{SRD_WQ+3}, 0x20000
        ''')
        groups = list(sched[-1])
        S = Prog()
        q = S
        q.e(f's_cmp_eq_u32 {sBr}, 0')
        for (dst, pa, pb) in ((SRD_K, 10, 20), (SRD_V, 12, 22), (SRD_WO, 16, 26)):
            q.e(f's_cselect_b32 s{dst}, s{pa}, s{pb}')
            q.e(f's_cselect_b32 s{dst+1}, s{pa+1}, s{pb+1}')
        q.e(f'''
        s_and_b32 {sDh}, {sW}, 1
        s_lshr_b32 {sBp}, {sW}, 1
        ''')
        q.e(f'''
        v_lshrrev_b32 v12, 1, v8
        v_and_b32 v12, 7, v12
        v_xor_b32 v12, v12, v7
        v_lshlrev_b32 v12, 4, v12
        v_lshl_add_u32 v12, v8, 7, v12
        s_lshl_b32 s3, {sBp}, 13
        s_lshl_b32 s7, {sDh}, 12
        s_add_u32 s7, s7, s3
        s_add_u32 s7, s7, {BB}
        v_add_u32 v{vBx[0][0][0]}, s7, v12
        s_xor_b32 s7, s7, 4096
        v_add_u32 v{vBx[1][0][0]}, s7, v12
        ''')
        for b in range(2):
            q.e(f'''
            v_xor_b32 v{vBx[b][0][1]}, 32, v{vBx[b][0][0]}
            v_xor_b32 v{vBx[b][1][0]}, 64, v{vBx[b][0][0]}
            v_xor_b32 v{vBx[b][1][1]}, 96, v{vBx[b][0][0]}
            ''')
        q.e('''
        v_lshrrev_b32 v13, 2, v2
        v_and_b32 v13, 3, v13
        v_and_b32 v14, 1, v5
        v_and_b32 v15, 1, v2
        v_lshl_add_u32 v15, v14, 1, v15
        v_lshrrev_b32 v16, 1, v2
        v_and_b32 v16, 1, v16
        v_lshlrev_b32 v16, 3, v16
        v_lshl_add_u32 v16, v15, 4, v16
        v_lshl_add_u32 v17, v7, 3, v13
        ''')
        q.e(f'''
        s_lshl_b32 s3, {sDh}, 8
        v_lshl_add_u32 v18, v17, 9, v16
        v_add_u32 v18, s3, v18
        ''')
        for t in range(4):
            q.e(f'''
            v_xor_b32 v19, {t}, v13
            v_lshl_add_u32 v{vAw[t]}, v19, 6, v18
            ''')
        setup1 = S.ins; S = Prog(); q = S
        q.e(f'''
        s_add_u32 s3, {sM0}, {EXB}
        v_add_u32 v{vKr[0][0]}, s3, v12
        v_xor_b32 v{vKr[0][1]}, 32, v{vKr[0][0]}
        v_xor_b32 v{vKr[1][0]}, 64, v{vKr[0][0]}
        v_xor_b32 v{vKr[1][1]}, 96, v{vKr[0][0]}
        v_add_u32 v{vAv[0][0]}, {sM0}, v12
        v_xor_b32 v{vAv[0][1]}, 32, v{vAv[0][0]}
        v_xor_b32 v{vAv[1][0]}, 64, v{vAv[0][0]}
        v_xor_b32 v{vAv[1][1]}, 96, v{vAv[0][0]}
        ''')
        q.e(f'''
        s_lshl_b32 s3, {sBp}, 13
        v_lshl_add_u32 v18, v17, 7, v16
        v_add_u32 v18, s3, v18
        v_lshrrev_b32 v19, 1, v13
        v_xor_b32 v19, {sBp}, v19
        v_lshl_add_u32 v{vBo[0]}, v19, 6, v18
        v_xor_b32 v{vBo[1]}, 64, v{vBo[0]}
        ''')
        q.e(f'''
        v_lshlrev_b32 v12, 9, v9
        v_add_u32 v{vKd[0]}, v11, v12
        v_add_u32 v13, v3, v12
        v_add_u32 v{vKd[1]}, {8*512-1024}, v13
        v_add_u32 v{vKd[2]}, {16*512-2048}, v{vKd[0]}
        v_add_u32 v{vKd[3]}, {24*512-3072}, v13
        s_lshl_b32 s3, {sRg}, 5
        s_lshr_b32 s7, {sH}, 1
        s_add_u32 s3, s3, s7
        s_lshl_b32 s3, s3, 14
        s_add_u32 s{SRD_K}, s{SRD_K}, s3
        s_addc_u32 s{SRD_K+1}, s{SRD_K+1}, 0
        s_sub_u32 s{SRD_K+2}, 4194304, s3
        s_mov_b32 s{SRD_K+3}, 0x20000
        s_lshl_b32 s3, {sBp}, 1
        s_add_u32 s7, s3, {sDh}
        s_lshl_b32 {sKb[0]}, s7, 17
        s_xor_b32 s7, s7, 1
        s_lshl_b32 {sKb[1]}, s7, 17
        s_lshl_b32 s3, {sDh}, 8
        s_add_u32 {sKb[0]}, {sKb[0]}, s3
        s_add_u32 {sKb[1]}, {sKb[1]}, s3
        ''')
        q.e(f'''
        s_mov_b32 s{SRD_P}, s32
        s_mov_b32 s{SRD_P+1}, s33
        s_mov_b32 s{SRD_P+2}, {32 << 20}
        s_mov_b32 s{SRD_P+3}, 0x20000
        v_lshlrev_b32 v{vP}, 4, v2
        v_mov_b32 v{vZero}, 0
        v_mov_b32 v{vt[0]}, 0
        v_mov_b32 v{vt[1]}, 0
        v_mov_b32 v{vt[2]}, 0
        v_mov_b32 v{vt[3]}, 0
        s_mul_i32 {sInb}, s2, 12
        s_add_u32 {sInb}, {sInb}, {sW}
        s_lshl_b32 {sInb}, {sInb}, 11
        s_add_u32 {sInb}, {sInb}, {WS_PART}
        s_lshl_b32 {sF1}, s2, 7
        s_add_u32 {sF1}, {sF1}, {WS_FLG1}
        s_lshl_b32 {sF2}, s2, 2
        s_add_u32 {sF2}, {sF2}, {sW}
        s_lshl_b32 {sF2}, {sF2}, 7
        s_add_u32 {sF2}, {sF2}, {WS_FLG2}
        s_mov_b64 exec, 1
        buffer_store_dwordx4 v[{vt[0]}:{vt[3]}], v{vZero}, {srd(SRD_P)}, {sF2} offen sc1
        buffer_store_dword v{vZero}, v{vZero}, {srd(SRD_P)}, {sF1} offen sc1
        s_mov_b64 exec, -1
        v_mov_b32 v{TMP+8}, -1
        v_mov_b32 v{TMP+9}, -1
        v_mov_b32 v{TMP+10}, -1
        v_mov_b32 v{TMP+11}, -1
        ''')
        setup2 = S.ins; S = Prog(); q = S
        q.e(f'''
        s_and_b32 {sR4}, {sSlot}, 3
        s_lshr_b32 {sCt}, {sSlot}, 2
        s_cmp_ge_u32 {sSlot}, 28
        s_cselect_b32 {sIdle}, 1, 0
        s_cselect_b32 {sCt}, 0, {sCt}
        ''')
        if a.rot2:
            q.e(f's_add_u32 {sC0}, {sR4}, {sCt}\ns_and_b32 {sC0}, {sC0}, 3')
        else:
            q.e(f's_mov_b32 {sC0}, 0')
        if a.rotp:
            q.e(f'''
            s_mul_i32 s3, {sCt}, 11
            s_lshr_b32 s3, s3, 5
            s_mul_i32 s3, s3, 3
            s_sub_u32 s3, {sCt}, s3
            ''')
            for pos in range(3):
                q.e(f's_add_u32 s7, s3, {pos}\ns_cmp_ge_u32 s7, 3\ns_cselect_b32 {sOwn[pos]}, 3, 0\ns_sub_u32 s7, s7, {sOwn[pos]}\n'
                    f's_add_u32 s7, s7, {sX4}\ns_add_u32 s7, s7, 1\ns_and_b32 {sOwn[pos]}, s7, 3')
            q.e(f's_mov_b32 {sOwn[3]}, {sX4}')
        else:
            for pos in range(4):
                q.e(f's_add_u32 {sOwn[pos]}, {sX4}, {pos + 1}\ns_and_b32 {sOwn[pos]}, {sOwn[pos]}, 3')
        q.e(f'''
        s_lshl_b32 s3, {sR4}, 20
        s_add_u32 s{SRD_V}, s{SRD_V}, s3
        s_addc_u32 s{SRD_V+1}, s{SRD_V+1}, 0
        s_sub_u32 s{SRD_V+2}, 4194304, s3
        s_mov_b32 s{SRD_V+3}, 0x20000
        s_lshl_b32 s3, {sX4}, 1
        s_add_u32 s3, s3, {sBp}
        s_lshl_b32 s3, s3, 14
        s_lshl_b32 s7, {sDh}, 17
        s_add_u32 {sVb}, s3, s7
        s_lshl_b32 s3, {sCt}, 7
        s_add_u32 s{SRD_WO}, s{SRD_WO}, s3
        s_addc_u32 s{SRD_WO+1}, s{SRD_WO+1}, 0
        s_sub_u32 s{SRD_WO+2}, 3670016, s3
        s_mov_b32 s{SRD_WO+3}, 0x20000
        s_cmp_eq_u32 {sIdle}, 1
        s_cselect_b32 s{SRD_V+2}, 0, s{SRD_V+2}
        s_cselect_b32 s{SRD_WO+2}, 0, s{SRD_WO+2}
        ''')
        q.e(f'''
        s_lshl_b32 s3, {sX4}, 2
        s_add_u32 s3, s3, {sW}
        s_lshl_b32 s3, s3, 8
        v_add_u32 v12, s3, v9
        v_mul_u32_u24 v12, 896, v12
        v_lshlrev_b32 v13, 2, v14
        v_xor_b32 v13, v10, v13
        v_lshl_add_u32 v{vO[0]}, v13, 4, v12
        v_add_u32 v{vO[1]}, {7168-1024}, v{vO[0]}
        v_add_u32 v{vO[2]}, {2*(7168-1024)}, v{vO[0]}
        v_add_u32 v{vO[3]}, {3*(7168-1024)}, v{vO[0]}
        ''')
        q.e(f'''
        s_lshl_b32 s3, {sRg}, 2
        s_add_u32 s3, s3, {sW}
        s_lshl_b32 s3, s3, 4
        s_add_u32 s3, s3, {sH}
        s_lshl_b32 {sPst}, s3, 11
        s_lshl_b32 s3, {sBr}, 20
        s_add_u32 {sPst}, {sPst}, s3
        s_lshl_b32 s7, {sR4}, 3
        s_add_u32 s7, s7, {sDh}
        s_lshl_b32 s7, s7, 3
        s_lshl_b32 {sPld}, {sX4}, 1
        s_add_u32 {sPld}, {sPld}, {sBp}
        s_add_u32 {sPld}, {sPld}, s7
        s_lshl_b32 {sPld}, {sPld}, 12
        s_add_u32 {sPld}, {sPld}, s3
        ''')
        q.e(f'''
        s_lshl_b32 s3, {sR4}, 2
        s_add_u32 s3, s3, {sX4}
        s_mul_i32 s3, s3, {64*1792}
        s_mul_i32 s7, {sBr}, 896
        s_add_u32 s3, s3, s7
        s_lshl_b32 s7, {sCt}, 7
        s_add_u32 s3, s3, s7
        s_add_u32 s{SRD_OUT}, s28, s3
        s_addc_u32 s{SRD_OUT+1}, s29, 0
        s_sub_u32 s{SRD_OUT+2}, {1024*1792}, s3
        s_mov_b32 s{SRD_OUT+3}, 0x20000
        s_lshl_b32 s3, {sDh}, 5
        v_add_u32 v12, s3, v8
        v_mul_u32_u24 v12, 1792, v12
        s_lshl_b32 s3, {sBp}, 6
        v_lshl_add_u32 v13, v7, 4, s3
        v_add_u32 v{vOut}, v12, v13
        s_add_u32 s3, {sM0}, {EXB}
        v_add_u32 v{vExW}, s3, v{vP}
        v_xor_b32 v{vExR1}, 4096, v{vExW}
        v_xor_b32 v{vExR2}, 8192, v{vExW}
        s_mov_b32 s{SRD_DBG}, s30
        s_mov_b32 s{SRD_DBG+1}, s31
        s_mov_b32 s{SRD_DBG+2}, 256
        s_mov_b32 s{SRD_DBG+3}, 0x20000
        s_lshr_b32 s3, s2, 4
        s_lshl_b32 s3, s3, 4
        v_mov_b32 v{vFlag}, s3
        v_mov_b32 v{vOne}, 1
        s_mov_b32 s12, 0
        s_mov_b32 s13, 0
        s_mov_b32 s14, 0
        ''')
        q.e(f'''
        s_lshl_b32 s3, {sR4}, 3
        v_add_u32 v12, s3, v10
        v_lshlrev_b32 v12, 3, v12
        s_and_b32 s3, s2, 7
        v_add_u32 v12, s3, v12
        v_lshlrev_b32 v12, 7, v12
        v_add_u32 v{vF1}, {WS_FLG1}, v12
        ''')
        if a.touch:
            q.e(f'''
            v_and_b32 v12, 15, v2
            v_lshlrev_b32 v12, 21, v12
            buffer_load_dword v{TMP}, v12, {srd(SRD_P)}, 0 offen
            buffer_load_dword v{TMP+1}, v12, {srd(SRD_V)}, 0 offen
            buffer_load_dword v{TMP+2}, v12, {srd(SRD_WO)}, 0 offen
            buffer_load_dword v{TMP+3}, v12, {srd(SRD_OUT)}, 0 offen
            ''')
        setup3 = S.ins
        pf = []
        if a.codepf and not a.earlypf:
            pf = [f's_getpc_b64 s[{SRD_CODE}:{SRD_CODE+1}]', f's_mov_b32 s{SRD_CODE+2}, {a.codepf}', f's_mov_b32 s{SRD_CODE+3}, 0x20000',
                  f's_lshl_b32 s3, {sSlot}, 2', f's_add_u32 s3, s3, {sW}', f's_lshl_b32 s3, s3, 1', f'v_add_u32 v20, s3, v7',
                  f'v_lshlrev_b32 v20, 7, v20', f'buffer_load_dword v{vDummy}, v20, {srd(SRD_CODE)}, 0 offen']
        p.add(self.pstamp(51))
        p.add(groups[:8])
        p.add(self.pstamp(52))
        p.add(setup1)
        p.add(self.pstamp(53))
        p.add(groups[8:])
        p.add(self.pstamp(54))
        p.add(pf)
        p.add(setup2)
        if a.kiss[0] < 0: p.add(self.dma_k(0))
        p.add(self.pstamp(55))
        p.add(setup3)

    def one_lane(self, label, instr):
        p = self.p
        p.e(f's_cmp_lg_u32 {sW}, 0')
        p.e(f's_cbranch_scc1 {label}')
        p.e('s_mov_b64 exec, 1')
        x = I(instr); x.kind = 'fake'; p.ins.append(x)
        p.e('s_mov_b64 exec, -1')
        p.e(f'{label}:')

    def place(self, gaps, items, g0, g1):
        n = g1 - g0 + 1; k = len(items)
        for jx, x in enumerate(items):
            gaps[g0 + min(n - 1, jx * n // max(k, 1))].append(x)

    def emit(self, mf, gaps):
        for m, g in zip(mf, gaps):
            self.p.add([m]); self.p.add(g)

    def sentinel_init(self):
        o = []
        for k in self.a.sent:
            pre = [f's_add_u32 s91, {sInb}, {8192*k}']
            for u in range(2):
                o.append(pre + [I(f'buffer_store_dwordx4 v[{TMP+8}:{TMP+11}], v{vP}, {srd(SRD_P)}, s91 offen offset:{1024*u} sc1', ('ini', 0))]); pre = []
        return o

    def valid_check(self, regs, tag):
        t = vt[4]
        o = [f'v_max3_u32 v{t}, v{regs[0]}, v{regs[1]}, v{regs[2]}']
        for k in range(3, len(regs) - 1, 2): o.append(f'v_max3_u32 v{t}, v{t}, v{regs[k]}, v{regs[k+1]}')
        if len(regs) % 2 == 0: o.append(f'v_max_u32 v{t}, v{t}, v{regs[-1]}')
        o += [f'v_cmp_ne_u32 vcc, -1, v{t}', 's_cmp_eq_u64 vcc, -1', f's_cbranch_scc0 L_slow{tag}', f'L_back{tag}:']
        return o

    def idfrag(self):
        a_, b_, c_, d_ = vt[0], vt[1], vt[2], vt[3]
        o = [f'v_lshrrev_b32 v{a_}, 4, v{vP}',
             f'v_bfe_u32 v{b_}, v{a_}, 2, 1',
             f'v_lshrrev_b32 v{c_}, 5, v{a_}',
             f'v_cmp_eq_u32 vcc, v{b_}, v{c_}',
             f'v_and_b32 v{b_}, 1, v{a_}',
             f'v_lshlrev_b32 v{b_}, 4, v{b_}',
             f'v_mov_b32 v{c_}, 0x3f80',
             f'v_lshlrev_b32 v{c_}, v{b_}, v{c_}',
             f'v_cndmask_b32 v{c_}, 0, v{c_}, vcc',
             f'v_bfe_u32 v{b_}, v{a_}, 1, 1',
             f'v_bfe_u32 v{d_}, v{a_}, 3, 1',
             f'v_lshl_add_u32 v{b_}, v{d_}, 1, v{b_}',
             f'v_bfe_u32 v{d_}, v{a_}, 4, 1',
             f'v_lshl_add_u32 v{b_}, v{d_}, 2, v{b_}']
        for u in range(2):
            for k in range(4):
                o += [f'v_cmp_eq_u32 vcc, {4*u + k}, v{b_}', f'v_cndmask_b32 v{IDF[u]+k}, 0, v{c_}, vcc']
        return o

    def body(self, sched):
        p = self.p; a = self.a
        KISSUE = {st: k for k, st in enumerate(a.kiss) if st >= 0}
        KREAD = {st: k for k, st in enumerate(a.kread)}
        ini = self.sentinel_init()
        for c in range(14):
            self.top(c, extra_wait=(('ini', 0) if c == a.initsig else None))
            if c == a.initsig:
                self.one_lane('L_ni', f'buffer_atomic_add v{vOne}, v{vFlag}, {srd(SRD_DBG)}, 0 offen')
            dm = sched[c]
            kiss = self.dma_k(KISSUE[c]) if c in KISSUE else []
            if kiss and a.bar2 and c % 2 == 1: kiss = [['s_waitcnt lgkmcnt(0)'] + kiss[0]] + kiss[1:]
            alld = kiss + dm
            if c in a.inist:
                k = a.inist.index(c); per = -(-len(ini) // len(a.inist))
                alld = ini[k*per:(k+1)*per] + alld
            if c == a.initld:
                alld = [[f'v_and_b32 v{vt[5]}, 240, v{vP}',
                         I(f'buffer_load_dword v{vFlag}, v{vt[5]}, {srd(SRD_DBG)}, 0 offen sc1', ('init', 0))]] + alld
            h = (len(alld) + 1) // 2 if c > 0 else 0
            segA_m = self.mf_g(c - 1, 1, 1) if c > 0 else []
            p.add(spread(segA_m, self.reads_g(c, 0, 0), alld[:h]))
            tail = []
            if c in KREAD:
                w = I('s_waitcnt vmcnt(0)'); w.note = ('vm', ('k', KREAD[c]))
                tail = [w] + self.read_k(KREAD[c])
            rl = self.roll(vAw, c + 1) if c + 1 < 14 else []
            if c == 13: rl = self.setva(0)
            p.add(spread(self.mf_g(c, 0, 0), self.reads_g(c, 1, 1), alld[h:], tail + rl))
        self.top(14)
        last = self.mf_g(13, 1, 1)
        rd0 = self.reads_w(0, 0)
        dm = sched[14]
        qk = {}
        for beta in (1, 0):
            qk[beta] = []
            for t in range(4):
                for u in range(2):
                    d = vr(SS(beta), 16)
                    cin = '0' if (t == 0 and u == 0) else d
                    qk[beta].append(f'v_mfma_f32_32x32x16_bf16 {d}, {ar(KF(beta,t,u),4)}, {vr(QA(beta,t)+4*u,4)}, {cin}')
        mf = last + qk[1] + qk[0] + self.mf_w(0, 0)
        G = [[] for _ in mf]
        self.place(G, rd0, 0, 2)
        cv1 = [self.cvt_tile(QA(1, t), QA(1, t)) for t in range(4)]
        cv0 = [self.cvt_tile(QA(0, t), QA(0, t)) for t in range(4)]
        G[3] += cv1[0][:4]; G[4] += cv1[0][4:] + cv1[1][:2]; G[5] += cv1[1][2:]; G[6] += cv1[2][:6]; G[7] += cv1[2][6:] + cv1[3][:4]
        if 14 in KREAD:
            w = I('s_waitcnt vmcnt(0)'); w.note = ('vm', ('k', KREAD[14]))
            G[9] += [w] + self.read_k(KREAD[14])
        G[8] += cv1[3][4:]
        allcv0 = [x for t in range(4) for x in cv0[t]]
        self.place(G, allcv0, 10, 15)
        self.place(G, dm, *( (0, 3) if a.w0dma == 0 else (24, 27) ))
        swr = [f'ds_write_b128 v{vExW}, {vr(SS(1)+4*k,4)} offset:{1024*k}' for k in range(4)]
        self.place(G, swr, 18, 21)
        self.place(G, self.reads_w(0, 1), 24, 26)
        G[27] += self.roll(vBo, 15)
        if a.stamps and a.w0st:
            for k, g in enumerate((7, 15, 23)): G[g] = G[g] + self.pstamp(46 + k)
        self.emit(mf, G)
        sm_all = self.softmax()
        nsm = len(a.smsteps)
        cut = [0] + [int(len(sm_all) * x) for x in a.smcut] + [len(sm_all)]
        for n in range(1, 32):
            i = 14 + n; pos, cc = n >> 3, n & 7
            isred = [r for r in range(4) if r < 3 and n == a.red[r]]
            self.top(i, bar=(n <= 8 or bool(isred)), extra_wait=(('pst', 0) if n == a.sig else None))
            if n == a.sig:
                self.one_lane('L_nosig', f'buffer_store_dword v{vOne}, v{vZero}, {srd(SRD_P)}, {sF1} offen sc1')
            if n == a.flagck:
                p.add([f'v_cmp_eq_u32 vcc, 1, v{vFlag}', 's_cmp_eq_u64 vcc, -1', 's_cbranch_scc0 L_slow1', 'L_back1:'])
            if n == a.f01ck and a.flagged:
                p.add([self.flagand(), f'v_readfirstlane_b32 s3, v{vt[4]}', 's_cmp_eq_u32 s3, 1', 's_cbranch_scc0 L_slow2', 'L_back2:'])
                if not self.a.nobar: p.e('s_barrier')
            if n == a.initck:
                p.add([f'v_cmp_le_u32 vcc, 16, v{vFlag}', 's_cmp_eq_u64 vcc, -1', 's_cbranch_scc0 L_slow0', 'L_back0:'])
            if n == a.idlex:
                p.e(f's_cmp_eq_u32 {sIdle}, 1')
                p.e('s_cbranch_scc1 L_idle')
            rd0 = self.reads_w(n, 0); rd1 = self.reads_w(n, 1)
            dm = list(sched[i])
            segA = self.mf_w(n - 1, 1); segB = self.mf_w(n, 0)
            rl = self.roll(vBo, i + 1) if n < 7 else []
            if n % 2 == 1 and n < 31: rl = rl + self.setva((n + 1) >> 1)
            pvx = self.pvw(a.pv[n], order='g1first') if n in a.pv else []
            mf = segA + segB + pvx
            G = [[] for _ in mf]
            pre = []
            self.place(G, rd0, 0, 2)
            if cc == 0:
                pj = pos - 1; k = 0
                for hp in range(2):
                    for g in range(2):
                        G[3 + k] += self.cvt_tile(VW(hp, g), VWB(pj, hp, g)); k += 1
                G[4] = rd1 + G[4]
            else:
                self.place(G, rd1, 4, 6 if n < 8 else 4)
            vm = []
            if n in a.smsteps:
                k = a.smsteps.index(n)
                part = sm_all[cut[k]:cut[k+1]]
                if k == 0:
                    self.place(G, [f'ds_read_b128 {vr(TMP+4*q,4)}, v{vExR1} offset:{1024*q}' for q in range(4)], 0, 1)
                    self.place(G, part, 3, 7)
                else:
                    self.place(G, part, 0, 7)
                if k == nsm - 1:
                    G[7] += [I(f'buffer_store_dwordx4 {vr(SS(0)+4*u,4)}, v{vP}, {srd(SRD_P)}, {sPst} offen offset:{1024*u} sc1', ('pst', 0)) for u in range(2)]
            if i == a.initld:
                vm += [[f'v_and_b32 v{vt[5]}, 240, v{vP}', I(f'buffer_load_dword v{vFlag}, v{vt[5]}, {srd(SRD_DBG)}, 0 offen sc1', ('init', 0))]]
            for (st, ps) in a.pld:
                if n == st: vm += self.pload(ps)
            if n == a.flagld:
                vm = [[I(f'buffer_load_dword v{vFlag}, v{vF1}, {srd(SRD_P)}, 0 offen sc1', ('flag', 0))]] + vm
            if n == a.f01ld and a.flagged:
                vm = [[I(f'buffer_load_dwordx4 v[{vt[0]}:{vt[3]}], v{vZero}, {srd(SRD_P)}, {sF2} offen sc1', ('f01', 0))]] + vm
            for r in a.flagged:
                if n == a.red[r] + a.stdelay[r] + a.sigdelay: vm = self.part_signal(r) + vm
            if n == a.finld: vm += self.part_loads()
            for r in range(3):
                if n == a.red[r] - 1:
                    self.place(G, self.exw_list(r), len(mf) - 3, len(mf) - 1)
                late = a.red4 and r < 2
                if n == a.red[r]:
                    self.place(G, self.exr_list(r), 0, 1)
                if n == a.red[r] + (1 if late else 0):
                    self.place(G, [f'v_add_f32 v{OT(0)+k}, v{OT(0)+k}, v{TMP+k}' for k in range(16)] + self.cvt_tile(OT(0), OT(0)), *((0, 5) if late else (3, 7)))
                if n == a.red[r] + a.stdelay[r]:
                    if a.stdelay[r] == 0 or late: G[7] += self.part_store(r)
                    else: vm = self.part_store(r) + vm
            if n == a.idstep: self.place(G, self.idfrag(), 0, 7)
            vm = dm + vm
            if vm:
                lo, hi = (3, 7) if (cc != 0) else (6, 7)
                if n in a.smsteps or n < 8: lo = 2
                self.place(G, vm, lo, hi)
            G[7] += rl
            p.add(pre)
            self.emit(mf, G)
        segA = self.mf_w(31, 1)
        order = [(0, 1), (1, 1), (0, 0), (1, 0)]
        cv = {k: self.cvt_tile(VW(*k), VWB(3, *k)) for k in order}
        pv = self.pvw(3, order='g1first')
        p.add(segA)
        p.add(cv[(0, 1)] + cv[(1, 1)])
        p.add(spread(pv[:4], [], cv[(0, 0)] + cv[(1, 0)]))
        G = [[] for _ in range(4)]
        mf = pv[4:]
        self.place(G, self.exw_list(3), 1, 3)
        self.emit(mf, G)
        p.add(self.pstamp(56))
        p.add(self.valid_check([self.PR(kk) + k for kk in a.sent for k in range(8)], 5))
        p.add(self.pstamp(57))
        p.wait_lgkm0()
        p.e('s_barrier')
        p.add(self.pstamp(58))
        self.exr(3)
        for k in range(3):
            for u in range(2):
                d = vr(OT(0), 16)
                p.e(f'v_mfma_f32_32x32x16_bf16 {d}, {vr(IDF[u],4)}, {vr(self.PR(k)+4*u,4)}, {d}')
        p.add([f'v_add_f32 v{OT(0)+k}, v{OT(0)+k}, v{TMP+k}' for k in range(16)])
        p.add(self.pstamp(59))
        p.add(self.cvt_tile(OT(0), OT(0)))
        for u in range(2):
            p.e(f'buffer_store_dwordx4 {vr(OT(0)+4*u,4)}, v{vOut}, {srd(SRD_OUT)}, 0 offen offset:{32*u} {a.outpol}'.rstrip())

    def PR(self, k): return 64 + 8*k

    def part_loads(self, ks=(0, 1, 2)):
        out = []
        for k in ks:
            g = [f's_add_u32 s91, {sInb}, {8192*k}']
            for u in range(2):
                g.append(I(f'buffer_load_dwordx4 {vr(self.PR(k)+4*u,4)}, v{vP}, {srd(SRD_P)}, s91 offen offset:{1024*u} sc1'))
                out.append(g); g = []
        return out

    def exw_list(self, r):
        if r & 1:
            return [f'v_subrev_u32 v{vt[5]}, {EXB - EX1}, v{vExW}'] + [f'ds_write_b128 v{vt[5]}, {vr(OT(1)+4*k,4)} offset:{1024*k}' for k in range(4)]
        return [f'ds_write_b128 v{vExW}, {vr(OT(1)+4*k,4)} offset:{1024*k}' for k in range(4)]

    def exr_list(self, r):
        if r & 1:
            return [f'v_subrev_u32 v{vt[5]}, {EXB - EX1}, v{vExR2}'] + [f'ds_read_b128 {vr(TMP+4*k,4)}, v{vt[5]} offset:{1024*k}' for k in range(4)]
        return [f'ds_read_b128 {vr(TMP+4*k,4)}, v{vExR2} offset:{1024*k}' for k in range(4)]

    def exw(self, r): self.p.add(self.exw_list(r))
    def exr(self, r): self.p.add(self.exr_list(r))

    def part_store(self, r):
        o = ['s_and_b32 s3, s2, 0xfffffffc', f's_or_b32 s3, s3, {sOwn[r]}', 's_mul_i32 s3, s3, 12', f's_add_u32 s3, s3, {4*r}', f's_add_u32 s3, s3, {sW}',
             's_lshl_b32 s3, s3, 11', f's_add_u32 s3, s3, {WS_PART}']
        st = [I(f'buffer_store_dwordx4 {vr(OT(0)+4*u,4)}, v{vP}, {srd(SRD_P)}, s3 offen offset:{1024*u} sc1', ('part', r)) for u in range(2)]
        return [o + [st[0]], [st[1]]]

    def flagand(self):
        f = self.a.flagged
        if len(f) == 1: return f'v_mov_b32 v{vt[4]}, v{vt[f[0]]}'
        return f'v_and_b32 v{vt[4]}, v{vt[f[0]]}, v{vt[f[1]]}'

    def part_signal(self, r):
        w = I('s_waitcnt vmcnt(0)'); w.note = ('vm', ('part', r))
        x = I(f'buffer_store_dword v{vOne}, v{vZero}, {srd(SRD_P)}, s3 offen sc1')
        return [[w, 's_and_b32 s3, s2, 0xfffffffc', f's_or_b32 s3, s3, {sOwn[r]}', 's_lshl_b32 s3, s3, 2', f's_add_u32 s3, s3, {sW}',
                 's_lshl_b32 s3, s3, 7', f's_add_u32 s3, s3, {WS_FLG2 + 4*r}', 's_mov_b64 exec, 1', x, 's_mov_b64 exec, -1']]

    def pload(self, pos):
        out = [[f's_lshl_b32 s91, {sOwn[pos]}, 16', f's_add_u32 s91, s91, {sPld}',
                I(f'buffer_load_dwordx4 {vr(PFV(pos,0,0),4)}, v{vP}, {srd(SRD_P)}, s91 offen sc1')]]
        for k in range(1, 4):
            hp, u = k >> 1, k & 1
            out.append([I(f'buffer_load_dwordx4 {vr(PFV(pos,hp,u),4)}, v{vP}, {srd(SRD_P)}, s91 offen offset:{hp*2048 + u*1024} sc1')])
        return out

    def pvw(self, pos, order=None):
        m = []
        if order == 'g1first':
            for g in (1, 0):
                first = True
                for hp in range(2):
                    for u in range(2):
                        d = vr(OT(g), 16)
                        m.append(f'v_mfma_f32_32x32x16_bf16 {d}, {vr(VWB(pos,hp,g)+4*u,4)}, {vr(PFV(pos,hp,u),4)}, {"0" if first else d}')
                        first = False
            return m
        for hp in range(2):
            for u in range(2):
                for g in range(2):
                    d = vr(OT(g), 16)
                    cin = '0' if (hp == 0 and u == 0) else d
                    m.append(f'v_mfma_f32_32x32x16_bf16 {d}, {vr(VWB(pos,hp,g)+4*u,4)}, {vr(PFV(pos,hp,u),4)}, {cin}')
        return m

    def softmax(self):
        S = SS(0); t0, t1, t2 = vt[1], vt[2], vt[3]
        o = []
        o += [f'v_add_f32 v{S+k}, v{S+k}, v{TMP+k}' for k in range(16)]
        o.append(f'v_max3_f32 v{t0}, v{S}, v{S+1}, v{S+2}')
        for k in range(3, 15, 2):
            o.append(f'v_max3_f32 v{t0}, v{t0}, v{S+k}, v{S+k+1}')
        o.append(f'v_max_f32 v{t0}, v{t0}, v{S+15}')
        o += [f'v_mov_b32 v{t1}, v{t0}', f'v_permlane32_swap_b32 v{t0}, v{t1}', f'v_max_f32 v{t0}, v{t0}, v{t1}',
              's_mov_b32 s3, 0x3db8aa3b', f'v_mul_f32 v{t0}, s3, v{t0}']
        for k in range(16): o.append(f'v_fma_f32 v{S+k}, v{S+k}, s3, -v{t0}')
        for k in range(16): o.append(f'v_exp_f32 v{S+k}, v{S+k}')
        o.append(f'v_add_f32 v{t1}, v{S}, v{S+1}')
        o.append(f'v_add_f32 v{t2}, v{S+2}, v{S+3}')
        for k in range(4, 16, 2):
            o.append(f'v_add_f32 v{t1}, v{t1}, v{S+k}')
            o.append(f'v_add_f32 v{t2}, v{t2}, v{S+k+1}')
        o += [f'v_add_f32 v{t1}, v{t1}, v{t2}', f'v_mov_b32 v{t2}, v{t1}', f'v_permlane32_swap_b32 v{t1}, v{t2}',
              f'v_add_f32 v{t1}, v{t1}, v{t2}', f'v_rcp_f32 v{t1}, v{t1}']
        for k in range(16): o.append(f'v_mul_f32 v{S+k}, v{S+k}, v{t1}')
        o += self.cvt_tile(S, S)
        return o

    def slowpath(self):
        def spin(tag, load, test, back):
            return f'''
L_slow{tag}:
    s_mov_b32 {sCnt}, 0
L_spin{tag}:
    s_add_u32 s{12 if tag == 0 else 13 if tag < 2 else 14}, s{12 if tag == 0 else 13 if tag < 2 else 14}, {1 if tag != 2 else 64}
    {load}
    s_waitcnt vmcnt(0)
{test}
    s_cbranch_scc1 {back}
    s_add_u32 {sCnt}, {sCnt}, 1
    s_cmp_lt_u32 {sCnt}, 0x8000
    s_cbranch_scc1 L_spin{tag}
    s_branch {back}
'''
        s0 = spin(0, f'buffer_load_dword v{vFlag}, v{vt[5]}, {srd(SRD_DBG)}, 0 offen sc1',
                  f'    v_cmp_le_u32 vcc, 16, v{vFlag}\n    s_nop 4\n    s_cmp_eq_u64 vcc, -1', 'L_back0')
        out = s0
        def vchk(regs):
            t = vt[4]
            o = [f'v_max3_u32 v{t}, v{regs[0]}, v{regs[1]}, v{regs[2]}']
            for k in range(3, len(regs) - 1, 2): o.append(f'v_max3_u32 v{t}, v{t}, v{regs[k]}, v{regs[k+1]}')
            if len(regs) % 2 == 0: o.append(f'v_max_u32 v{t}, v{t}, v{regs[-1]}')
            o += [f'v_cmp_ne_u32 vcc, -1, v{t}', 's_nop 4', 's_cmp_eq_u64 vcc, -1']
            return '\n'.join('    ' + x for x in o)
        def flat(groups):
            return '\n    '.join((x.t if isinstance(x, I) else x) for g in groups for x in g)
        out += spin(1, f'buffer_load_dword v{vFlag}, v{vF1}, {srd(SRD_P)}, 0 offen sc1',
                    f'    v_cmp_eq_u32 vcc, 1, v{vFlag}\n    s_nop 4\n    s_cmp_eq_u64 vcc, -1', 'L_back1')
        out += spin(2, f'buffer_load_dwordx4 v[{vt[0]}:{vt[3]}], v{vZero}, {srd(SRD_P)}, {sF2} offen sc1',
                    f'    {self.flagand() if self.a.flagged else "s_nop 0"}\n    s_nop 1\n    v_readfirstlane_b32 s3, v{vt[4]}\n    s_nop 4\n    s_cmp_eq_u32 s3, 1', 'L_back2') if self.a.flagged else ''
        out += spin(5, flat(self.part_loads(tuple(self.a.sent))), vchk([self.PR(kk) + k for kk in self.a.sent for k in range(8)]), 'L_back5')
        return out

    def stamps_out(self):
        if self.a.span:
            return f'''
    s_memtime s[8:9]
    s_memrealtime s[10:11]
    s_waitcnt lgkmcnt(0)
    s_sub_u32 s8, s8, s94
    s_lshl_b32 s3, s2, 2
    s_add_u32 s3, s3, {sW}
    s_lshl_b32 s3, s3, 4
    s_add_u32 s3, s3, 0x400000
    v_mov_b32 v0, s3
    v_mov_b32 v4, s92
    v_mov_b32 v5, s10
    v_mov_b32 v6, s8
    v_mov_b32 v7, 0
    s_mov_b64 exec, 1
    buffer_store_dwordx4 v[4:7], v0, {srd(SRD_P)}, 0 offen
'''
        if self.a.dbgclk:
            return f'''
    s_memtime s[8:9]
    s_memrealtime s[10:11]
    s_waitcnt lgkmcnt(0)
    s_sub_u32 s8, s8, s94
    s_sub_u32 s10, s10, s92
    s_and_b32 s3, s2, 63
    s_cmp_eq_u32 s3, 0
    s_cbranch_scc0 L_nodbg
    s_cmp_eq_u32 {sW}, 0
    s_cbranch_scc0 L_nodbg
    s_lshr_b32 s3, s2, 6
    s_lshl_b32 s3, s3, 4
    s_add_u32 s3, s3, 4
    v_mov_b32 v0, s3
    v_mov_b32 v2, s8
    v_mov_b32 v3, s10
    s_mov_b64 exec, 1
    buffer_store_dwordx2 v[2:3], v0, {srd(SRD_DBG)}, 0 offen
L_nodbg:
'''
        if not self.a.stamps: return ''
        return f'''
    s_memrealtime s[92:93]
    s_waitcnt lgkmcnt(0)
    v_writelane_b32 v253, s92, 63
    s_memtime s[92:93]
    s_waitcnt lgkmcnt(0)
    v_writelane_b32 v255, s92, 62
    s_lshl_b32 s13, s13, 8
    s_lshl_b32 s14, s14, 16
    s_or_b32 s12, s12, s13
    s_or_b32 s12, s12, s14
    v_writelane_b32 v255, s12, 61
    v_writelane_b32 v255, s94, 63
    s_lshl_b32 s3, s2, 2
    s_add_u32 s3, s3, {sW}
    s_lshl_b32 s3, s3, 8
    s_add_u32 s3, s3, 0x400000
    s_add_u32 s8, s32, s3
    s_addc_u32 s9, s33, 0
    s_mov_b32 s10, 256
    s_mov_b32 s11, 0x20000
    v_mbcnt_lo_u32_b32 v254, -1, 0
    v_mbcnt_hi_u32_b32 v254, -1, v254
    v_lshlrev_b32 v254, 2, v254
    buffer_store_dword v255, v254, s[8:11], 0 offen
    s_add_u32 s8, s8, 0x100000
    s_addc_u32 s9, s9, 0
    buffer_store_dword v253, v254, s[8:11], 0 offen
'''

    def build(self):
        sched = self.make_schedule()
        if self.a.verbose:
            for s in range(-1, 46):
                toks = []
                for g in sched[s]:
                    for x in g:
                        if isinstance(x, I) and x.tok: toks.append(x.tok)
                print(s, toks, file=sys.stderr)
        self.prologue(sched)
        self.body(sched)
        ins = self.p.finalize()
        owner = None; fresh = False
        for x in ins:
            if x.kind == 'salu' and ('m0', 0) in x.wr: fresh = True
            if x.kind == 'dma':
                if fresh: owner = x.tok; fresh = False
                assert owner == x.tok, (owner, x.tok, x.t)
        txt = render(ins)
        s = open(self.a.header).read()
        s += f'; @launch grid=(256,1,1) block=(256,1,1) lds={LDS_BYTES}\n'
        s += '.amdgcn_target "amdgcn-amd-amdhsa--gfx950"\n.text\n'
        s += f'.globl {NAME}\n.p2align 8\n.type {NAME},@function\n{NAME}:\n'
        s += txt
        s += 'L_fin:\n' + self.stamps_out() + '    s_endpgm\n'
        s += self.slowpath()
        s += 'L_idle:\n'
        if self.a.idlepf:
            s += f'''    s_lshl_b32 s3, {sR4}, 20
    s_sub_u32 s{SRD_V+2}, 4194304, s3
    s_lshl_b32 s3, {sX4}, 18
    s_add_u32 s3, s3, {sVb}
    v_lshlrev_b32 v0, 3, v{vP}
    buffer_load_dword v1, v0, {srd(SRD_V)}, s3 offen
    s_add_u32 s3, s3, 8192
    buffer_load_dword v2, v0, {srd(SRD_V)}, s3 offen
'''
        s += 'L_end:\n'
        if self.a.stamps or self.a.span: s += '    s_cmp_ge_u32 s2, 256\n    s_cbranch_scc0 L_fin\n'
        s += '    s_endpgm\n'
        s += f'''.section .rodata,"a"
.p2align 6
.amdhsa_kernel {NAME}
  .amdhsa_next_free_vgpr 512
  .amdhsa_next_free_sgpr 102
  .amdhsa_accum_offset 256
  .amdhsa_group_segment_fixed_size 0
  .amdhsa_kernarg_size 104
  .amdhsa_user_sgpr_count 2
  .amdhsa_user_sgpr_kernarg_segment_ptr 1
  .amdhsa_system_sgpr_workgroup_id_x 1
.end_amdhsa_kernel
'''
        return s, ins

def main():
    ap = argparse.ArgumentParser()
    ap.add_argument('-o', default='concat_heads__gqa_block_cached__gqa_block_cached__near_ridge.s')
    ap.add_argument('--header', default='header.txt')
    ap.add_argument('--stamps', action='store_true')
    ap.add_argument('--dbgclk', action='store_true')
    ap.add_argument('--span', action='store_true')
    ap.add_argument('--rt', action='store_true')
    ap.add_argument('--w0st', action='store_true')
    ap.add_argument('--post', action='store_true')
    ap.add_argument('--codepf', type=int, default=32768)
    ap.add_argument('--earlypf', type=int, default=1)
    ap.add_argument('--outpol', default='')
    ap.add_argument('--bar2', type=int, default=0)
    ap.add_argument('--early', type=int, default=0)
    ap.add_argument('--w0dma', type=int, default=0)
    ap.add_argument('--red4', type=int, default=0)
    ap.add_argument('--sig', type=int, default=6)
    ap.add_argument('--sigdelay', type=int, default=3)
    ap.add_argument('--flagld', type=int, default=10)
    ap.add_argument('--flagck', type=int, default=13)
    ap.add_argument('--initsig', type=int, default=8)
    ap.add_argument('--initld', type=int, default=16)
    ap.add_argument('--initck', type=int, default=6)
    ap.add_argument('--finld', type=int, default=31)
    ap.add_argument('--sd2', type=int, default=0)
    ap.add_argument('--pld0', type=int, default=12)
    ap.add_argument('--sm', default='1,2,3')
    ap.add_argument('--ini', default='5')
    ap.add_argument('--idlex', type=int, default=6)
    ap.add_argument('--sentk', default='2')
    ap.add_argument('--idstep', type=int, default=27)
    ap.add_argument('--pace', type=int, default=2)
    ap.add_argument('--rotp', type=int, default=1)
    ap.add_argument('--touch', type=int, default=1)
    ap.add_argument('--idlepf', type=int, default=1)
    ap.add_argument('--f01ld', type=int, default=29)
    ap.add_argument('--f01ck', type=int, default=31)
    ap.add_argument('--kiss', default='3,6,9,12')
    ap.add_argument('--kread', default='5,8,11,14')
    ap.add_argument('--pv0', type=int, default=17)
    ap.add_argument('--nt', default='')
    ap.add_argument('--rot1', type=int, default=4)
    ap.add_argument('--rot2', type=int, default=1)
    ap.add_argument('--catch', type=int, default=10)
    ap.add_argument('--catch_steps', type=int, default=4)
    ap.add_argument('--nodma', action='store_true')
    ap.add_argument('--nobar', action='store_true')
    ap.add_argument('--noreads', action='store_true')
    ap.add_argument('--verbose', action='store_true')
    a = ap.parse_args()
    a.pld = [(a.flagck, 0), (a.flagck + 1, 1), (a.pv0 + 1, 2), (a.pv0 + 4, 3)]
    a.pv = {a.pv0: 0, a.pv0 + 3: 1, 24: 2}
    a.red = [a.pv0 + 1, a.pv0 + 4, 25]
    a.stdelay = [1, 1, a.sd2]
    a.smsteps = [int(x) for x in a.sm.split(',')]
    a.smcut = {1: [], 2: [0.5], 3: [0.3, 0.62]}[len(a.smsteps)]
    a.inist = [int(x) for x in a.ini.split(',')]
    a.sent = [int(x) for x in a.sentk.split(',')]
    a.flagged = [r for r in range(3) if r not in a.sent]
    a.kiss = [int(x) for x in a.kiss.split(',')]
    a.kread = [int(x) for x in a.kread.split(',')]
    g = Gen(a)
    s, ins = g.build()
    open(a.o, 'w').write(s)
    from collections import Counter
    print(Counter(x.kind for x in ins), file=sys.stderr)

if __name__ == '__main__':
    main()
```

```python
import sys, argparse
from ir import *

NAME = 'concat_heads__gqa_block_cached__gqa_block_cached__near_ridge_kernel'
SA = 16384
BB = 98304
EXB = 147456
LDS_BYTES = 163840

sW = 's4'
SRD_X, SRD_WQ, SRD_K, SRD_V, SRD_WO, SRD_P, SRD_OUT, SRD_DBG, SRD_CODE = 36, 40, 44, 48, 52, 56, 60, 64, 68
def srd(b): return f's[{b}:{b+3}]'
sM0 = 's72'
sPA, sPB = 's73', 's74'
sTa, sTb = ['s75', 's76'], ['s77', 's78']
sKb = ['s79', 's80']
sIdle, sPst, sPld, sF1 = 's81', 's82', 's83', 's84'
sBr, sSlot, sH, sRg, sR4, sCt, sX4 = 's34', 's35', 's85', 's86', 's87', 's88', 's89'
sCnt = 's90'
sC0, sVb = 's96', 's97'
sDh, sBp = 's5', 's6'
sInb, sF2 = 's16', 's17'
sOwn = ['s98', 's99', 's100', 's101']
WS_FLG1, WS_FLG2, WS_PART = 6 << 20, (6 << 20) + (64 << 10), 8 << 20

def QA(beta, t): return 64*beta + 16*t
def SS(beta): return 128 + 16*beta
def OT(g): return 160 + 16*g
TMP = 192
vBx = [[[160, 161], [162, 163]], [[164, 165], [166, 167]]]
vAw = [168, 169, 170, 171]
vX = [172, 173, 174, 175]; vWq = [176, 177, 178, 179]
vKr = [[180, 181], [182, 183]]
def FV(s): return 208 + 4*s
vKd = [216, 217, 218, 219]
vAv = [[220, 221], [222, 223]]
vAt = [[224, 225], [226, 227]]
vBo = [228, 229]
vO = [230, 231, 232, 233]
vP, vOut, vExW, vExR1, vExR2, vDummy, vFlag, vOne, vZero, vF1 = 234, 235, 236, 237, 238, 239, 240, 241, 242, 243
vt = [244, 245, 246, 247, 248, 249]
vN = 250
IDF = [216, 228]
def VW(hp, g): return 32*hp + 16*g
def VWB(pos, hp, g): return 64 + 32*(pos & 1) + 16*hp + 8*g
def PFV(pos, hp, u): return 128 + 16*(pos & 1) + 8*hp + 4*u
def FA(f, t): return 24*f + 4*t
def FB(f, b): return 24*f + 16 + 4*b
def KF(beta, t, u): return 48 + 32*beta + 8*t + 4*u
def WF(n, s, hp, g): return (112 + 32*n + 16*s + 8*hp + 4*g) % 256
def vr(b, n=1): return f'v{b}' if n == 1 else f'v[{b}:{b+n-1}]'
def ar(b, n=1): return f'a{b}' if n == 1 else f'a[{b}:{b+n-1}]'
VSLOT = {0: (BB+SA, 10), 1: (BB+2*SA, 12), 2: (BB, 14), 3: (BB+SA, 16), 4: (4*SA, 17), 5: (5*SA, 18), 6: (0, 19), 7: (SA, 20),
         8: (BB+2*SA, 21), 9: (2*SA, 22), 10: (BB, 23), 11: (BB+SA, 24), 12: (4*SA, 25), 13: (5*SA, 26), 14: (0, 28), 15: (SA, 30)}
EX1 = 3*SA

def spread(mf, early, even, late=(), per=3):
    n = len(mf)
    if n == 0: return list(early) + list(even) + list(late)
    gaps = [[] for _ in range(n)]
    idx = 0
    g = 0
    while idx < len(early):
        for _ in range(per):
            if idx < len(early): gaps[min(g, n-1)].append(early[idx]); idx += 1
        g += 1
    first = min(g, n-1) if len(even) <= n - g or g >= n else max(0, n - len(even))
    if g >= n: first = 0
    k = len(even); m = n - first
    for j, x in enumerate(even):
        gaps[first + min(m-1, int(j * m / k))].append(x)
    out = []
    for mm, gp in zip(mf, gaps):
        out.append(mm); out += gp
    return out + list(late)

class Gen:
    def __init__(self, a):
        self.a = a
        self.p = Prog()
        self.nstamp = 0
        self.pol = {k: (' nt' if k in a.nt else '') for k in 'xqkvo'}

    def dma_A(self, i):
        slot = (i % 6) * SA
        t = sTa[i & 1]
        if self.a.nodma and i >= 6: return []
        if i < 14:
            par = i & 1
            pre = [f's_lshl_b32 {t}, {sPA}, 19']
            if par: pre += [f's_add_u32 {t}, {t}, 262144'] + self.adv7(sPA)
            regs, sr, pol = vWq, SRD_WQ, self.pol['q']
        else:
            n = i - 14; tt, par = n >> 1, n & 1
            pre = [f's_add_u32 {t}, {sC0}, {tt}', f's_and_b32 {t}, {t}, 3', f's_mul_i32 {t}, {t}, 57344']
            if par: pre += [f's_add_u32 {t}, {t}, 28672']
            regs, sr, pol = vO, SRD_WO, self.pol['o']
        f = [[f's_add_u32 m0, {sM0}, {slot}'] + pre]
        f[0].append(I(f'buffer_load_dwordx4 v{regs[0]}, {srd(sr)}, {t} offen{pol} lds', ('A', i)))
        for k in range(1, 4):
            f.append([I(f'buffer_load_dwordx4 v{regs[k]}, {srd(sr)}, {t} offen offset:{1024*k}{pol} lds', ('A', i))])
        return f

    def adv7(self, r):
        return [f's_add_u32 {r}, {r}, 1', f's_cmp_eq_u32 {r}, 7', f's_cselect_b32 {r}, 0, {r}']

    def dma_B(self, pi):
        t = sTb[pi & 1]
        if self.a.nodma and pi >= 3: return []
        if pi < 7:
            slot = BB + (pi % 3) * SA
            pre = [f's_lshl_b32 {t}, {sPB}, 7'] + self.adv7(sPB)
            regs, sr, pol = vX, SRD_X, self.pol['x']
        else:
            tt = pi - 7; pos = tt >> 2
            slot = VSLOT[tt][0]
            pre = [f's_add_u32 {t}, {sC0}, {tt & 3}', f's_and_b32 {t}, {t}, 3', f's_lshl_b32 {t}, {t}, 7', f's_add_u32 {t}, {t}, {sVb}',
                   f's_lshl_b32 s91, {sOwn[pos]}, 18', f's_add_u32 {t}, {t}, s91']
            regs, sr, pol = vKd, SRD_V, self.pol['v']
        g0 = [f's_add_u32 m0, {sM0}, {slot}'] + pre
        f = [g0 + [I(f'buffer_load_dwordx4 v{regs[0]}, {srd(sr)}, {t} offen{pol} lds', ('B', pi))]]
        for k in range(1, 4):
            pre2 = [f's_add_u32 m0, {sM0}, {slot}', 's_nop 0'] if k == 2 else []
            f.append(pre2 + [I(f'buffer_load_dwordx4 v{regs[k]}, {srd(sr)}, {t} offen offset:{1024*k}{pol} lds', ('B', pi))])
        return f

    def dma_k(self, a):
        beta, dq = 1 - (a >> 1), a & 1
        pol = self.pol['k']
        f = [[f's_add_u32 m0, {sM0}, {EXB}', f's_add_u32 s91, {sKb[beta]}, {dq*128}',
              I(f'buffer_load_dwordx4 v{vKd[0]}, {srd(SRD_K)}, s91 offen{pol} lds', ('k', a))]]
        for k in range(1, 4):
            f.append([I(f'buffer_load_dwordx4 v{vKd[k]}, {srd(SRD_K)}, s91 offen offset:{1024*k}{pol} lds', ('k', a))])
        return f

    def read_k(self, a):
        beta, dq = 1 - (a >> 1), a & 1
        return [f'ds_read_b128 {ar(KF(beta, 2*dq+tp, u), 4)}, v{vKr[tp][u]}' for tp in range(2) for u in range(2)]

    def reads_g(self, c, s, f):
        so = (c % 3) * SA
        bo = ((c >> 1) % 3) * SA
        par = c & 1
        rdA = lambda t: [f'ds_read_b64_tr_b16 {ar(FA(f,t)+2*m, 2)}, v{vAw[t]} offset:{so + s*8192 + m*2048}' for m in range(2)]
        rdB = lambda b: [f'ds_read_b128 {ar(FB(f,b), 4)}, v{vBx[b][par][s]} offset:{bo}']
        if self.a.noreads and c > 0: return []
        return rdB(1) + rdA(0) + rdA(1) + rdA(2) + rdA(3) + rdB(0)

    def mf_g(self, c, s, f):
        m = []
        for beta in (1, 0):
            for t in range(4):
                d = vr(QA(beta, t), 16)
                cin = '0' if (c == 0 and s == 0) else d
                m.append(f'v_mfma_f32_32x32x16_bf16 {d}, {ar(FA(f,t),4)}, {ar(FB(f,beta),4)}, {cin}')
        return m

    def setva(self, tt):
        base = VSLOT[tt][0]
        return [f'v_add_u32 v{vAt[par][s]}, {base}, v{vAv[par][s]}' for par in range(2) for s in range(2)]

    def reads_w(self, n, s):
        i = 14 + n
        so = (i % 3) * SA
        par = n & 1
        if self.a.noreads: return []
        r = [f'ds_read_b128 {vr(FV(s),4)}, v{vAt[par][s]}']
        if n < 8:
            for hp in range(2):
                for g in range(2):
                    r += [f'ds_read_b64_tr_b16 {ar(WF(n,s,hp,g)+2*m, 2)}, v{vBo[g]} offset:{so + hp*4096 + s*2048 + m*512}' for m in range(2)]
        return r

    def mf_w(self, n, s):
        m = []
        for hp in range(2):
            for g in range(2):
                d = vr(VW(hp, g), 16)
                cin = '0' if ((n & 7) == 0 and s == 0) else d
                m.append(f'v_mfma_f32_32x32x16_bf16 {d}, {vr(FV(s),4)}, {ar(WF(n & 7,s,hp,g),4)}, {cin}')
        return m

    def roll(self, regs, i):
        if i % 3 != 0 or i == 0: return []
        if (i % 6) == 3: return [f'v_add_u32 v{r}, {3*SA}, v{r}' for r in regs]
        return [f'v_subrev_u32 v{r}, {3*SA}, v{r}' for r in regs]

    def top(self, i, bar=True, extra_wait=None):
        p = self.p
        b2 = self.a.bar2 and i <= 21
        if b2 and i % 2 == 1 and not extra_wait and i not in (1, 15):
            bar = False; skip = True
        else:
            skip = False
        if self.a.stamps: p.e('s_memtime s[92:93]')
        if self.a.stamps and self.a.rt: p.e('s_memrealtime s[30:31]')
        if not (self.a.nodma and i >= 6) and not skip:
            if i <= 21: p.wait_vm(('A', i))
            if b2 and i % 2 == 0 and i + 1 <= 21 and i + 1 not in (1, 15): p.wait_vm(('A', i + 1))
            if i % 2 == 0: p.wait_vm(('B', i >> 1))
        if extra_wait: p.wait_vm(extra_wait)
        if bar or self.a.stamps: p.wait_lgkm0()
        if self.a.stamps:
            k = self.nstamp; self.nstamp += 1
            if k < 46: p.e(f'v_writelane_b32 v255, s92, {k}')
            if k < 50 and self.a.rt: p.e(f'v_writelane_b32 v253, s30, {k}')
        if bar and not self.a.nobar: p.e('s_barrier')
        if self.a.stamps and self.a.post:
            p.add(['s_memtime s[92:93]', 's_waitcnt lgkmcnt(0)', f'v_writelane_b32 v253, s92, {i}'])

    def pstamp(self, lane):
        if not self.a.stamps: return []
        return ['s_memtime s[92:93]', 's_waitcnt lgkmcnt(0)', f'v_writelane_b32 v255, s92, {lane}']

    def cvt_tile(self, src, dst):
        return [f'v_cvt_pk_bf16_f32 v{dst+k}, v{src+2*k}, v{src+2*k+1}' for k in range(8)]

    def barsteps(self):
        a = self.a
        if not a.bar2: return set(range(0, 23))
        return set(list(range(0, 23, 2)) + [1, 15])

    def make_schedule(self):
        a = self.a
        A = {i: self.dma_A(i) for i in range(22)}
        B = {q: self.dma_B(q) for q in range(23)}
        bars = self.barsteps()
        nb = lambda j: min(x for x in bars if x > j)
        T = {s: [] for s in range(-1, 46)}
        def add(s, *items): T[s] += list(items)
        add(-1, 'B0', 'A0', 'A1')
        vstep = {t: VSLOT[t][1] for t in VSLOT}
        if a.bar2:
            add(0, 'B1', 'A2', 'A3'); add(1, 'A4', 'A5'); add(2, 'B2', 'A6'); add(3, 'A7', 'B3a'); add(4, 'B3b', 'A8'); add(5, 'A9', 'B4a')
            add(6, 'B4b', 'A10'); add(7, 'A11', 'B5a'); add(8, 'B5b', 'A12'); add(9, 'A13', 'B6a'); add(10, 'B6b', 'A14'); add(11, 'A15', 'B7a')
            add(12, 'B7b', 'A16'); add(13, 'A17', 'B8'); add(15, 'A18', 'B9'); add(16, 'A19', 'A20'); add(17, 'A21', 'B10')
            add(18, 'B11', 'B12'); add(20, 'B13', 'B14')
            vstep.update({4: 18, 5: 18, 6: 20, 7: 20})
            rest = range(8, 16)
        else:
            if a.early == 0:
                add(0, 'B1', 'A2'); add(1, 'A3', 'A4'); add(2, 'B2', 'A5'); add(3, 'A6', 'B3a', 'A7'); add(4, 'B3b', 'A8', 'A9')
                add(5, 'B4a', 'A10'); add(6, 'B4b', 'A11'); add(7, 'B5a', 'A12'); add(8, 'B5b', 'A13', 'B6a')
                add(9, 'B6b', 'A14')
            elif a.early == 1:
                add(0, 'B1', 'A2'); add(1, 'A3', 'B2a'); add(2, 'B2b', 'A4'); add(3, 'A5', 'B3a'); add(4, 'B3b', 'A6', 'A7')
                add(5, 'A8', 'B4a'); add(6, 'B4b', 'A9', 'A10'); add(7, 'A11', 'B5a'); add(8, 'B5b', 'A12', 'A13'); add(9, 'B6', 'A14')
            else:
                add(0, 'B1', 'A2'); add(1, 'A3', 'B2a'); add(2, 'B2b', 'A4'); add(3, 'A5', 'B3a'); add(4, 'B3b', 'A6')
                add(5, 'A7', 'B4a', 'A8'); add(6, 'B4b', 'A9'); add(7, 'A10', 'B5a', 'A11'); add(8, 'B5b', 'A12', 'A13'); add(9, 'B6', 'A14')
            if a.pace == 1:
                add(10, 'B7'); add(11, 'A15'); add(12, 'A16'); add(13, 'B8'); add(14, 'A17', 'A18'); add(15, 'B9', 'A19'); add(16, 'A20', 'B10a')
                add(17, 'B10b', 'A21', 'B11a'); add(18, 'B11b', 'B12'); add(19, 'B13')
            elif a.pace == 4:
                add(10, 'A15', 'B7a'); add(11, 'B7b', 'A16'); add(12, 'A17'); add(13, 'B8', 'A18'); add(14, 'A19'); add(15, 'B9', 'A20'); add(16, 'A21'); add(17, 'B10', 'B11')
                add(18, 'B12'); add(19, 'B13')
            elif a.pace == 5:
                add(10, 'B7'); add(11, 'A15', 'A16'); add(12, 'A17'); add(13, 'B8'); add(14, 'A18'); add(15, 'B9', 'A19'); add(16, 'A20', 'A21'); add(17, 'B10', 'B11')
                add(18, 'B12'); add(19, 'B13')
            elif a.pace == 2:
                add(10, 'B7'); add(11, 'A15'); add(12, 'A16'); add(13, 'B8'); add(15, 'A17', 'B9'); add(16, 'A18', 'A19'); add(17, 'A20', 'B10')
                add(18, 'A21', 'B11'); add(19, 'B12', 'B13')
            else:
                add(10, 'B7'); add(11, 'A15'); add(12, 'A16'); add(13, 'B8', 'A17'); add(15, 'A18', 'B9'); add(16, 'A19', 'A20'); add(17, 'B10', 'A21')
                add(18, 'B11', 'B12'); add(19, 'B13')
            rest = range(7, 16)
        for t in rest: add(max(vstep[t], 21 if (a.bar2 and t == 8) else 0), f'B{7+t}')
        prevA = {4*SA: 16, 5*SA: 17, 0: 18, SA: 19, 2*SA: 20}
        sched = {}
        seen = set()
        for s_ in sorted(T):
            out = []
            for it in T[s_]:
                k = it[0]; half = it[-1] if it[-1] in 'ab' else None
                idx = int(it[1:-1] if half else it[1:])
                if k == 'A':
                    assert idx < 6 or nb(idx - 6) <= s_, it
                    need = idx - 1 if (a.bar2 and idx % 2 == 1 and idx not in (1, 15)) else idx
                    assert s_ < max(need, 0) or s_ == -1, (it, s_)
                    out += A[idx]
                else:
                    if idx < 7:
                        assert idx < 3 or nb(2*(idx - 3) + 1) <= s_, it
                    else:
                        t = idx - 7; base = VSLOT[t][0]
                        if t <= 2: assert nb(2*(idx - 3) + 1) <= s_, it
                        elif base in prevA and t < 12 and (base, 'v') not in seen:
                            assert nb(prevA[base]) <= s_, (it, s_); seen.add((base, 'v'))
                        else:
                            prev = max(tt for tt in range(t) if VSLOT[tt][0] == base)
                            assert 14 + 2*prev + 1 < s_, (it, s_)
                    assert s_ < 2*idx or s_ == -1, (it, s_)
                    g = B[idx]
                    if not g: continue
                    out += g[:2] if half == 'a' else g[2:] if half == 'b' else g
            sched[s_] = out
        return sched

    def prologue(self, sched):
        p = self.p; a = self.a
        p.e('s_cmp_ge_u32 s2, 256')
        p.e('s_cbranch_scc1 L_end')
        p.e('s_load_dwordx16 s[8:23], s[0:1], 0')
        p.e('s_load_dwordx4 s[24:27], s[0:1], 64')
        p.e('s_load_dwordx4 s[28:31], s[0:1], 80')
        p.e('s_load_dwordx2 s[32:33], s[0:1], 96')
        if a.codepf and a.earlypf:
            p.e(f'''
            s_getpc_b64 s[{SRD_CODE}:{SRD_CODE+1}]
            s_mov_b32 s{SRD_CODE+2}, {a.codepf}
            s_mov_b32 s{SRD_CODE+3}, 0x20000
            s_and_b32 s3, s2, 0xfffffff8
            v_lshrrev_b32 v20, 5, v0
            v_add_u32 v20, s3, v20
            v_lshlrev_b32 v20, 7, v20
            buffer_load_dword v{vDummy}, v20, {srd(SRD_CODE)}, 0 offen
            ''')
        if a.stamps:
            p.e('v_mov_b32 v255, 0')
            p.e('v_mov_b32 v253, 0')
            p.e('s_memtime s[94:95]')
            p.e('s_memrealtime s[14:15]') if False else None
        if a.dbgclk or a.span:
            p.e('s_memtime s[94:95]')
            p.e('s_memrealtime s[92:93]')
        p.e(f'''
        v_lshrrev_b32 v1, 6, v0
        v_and_b32 v2, 63, v0
        s_and_b32 {sX4}, s2, 3
        s_bfe_u32 {sBr}, s2, 0x10002
        s_lshr_b32 {sSlot}, s2, 3
        v_readfirstlane_b32 {sW}, v1
        s_and_b32 s3, {sSlot}, 3
        s_lshl_b32 {sH}, {sX4}, 2
        s_add_u32 {sH}, {sH}, s3
        s_lshr_b32 {sRg}, {sSlot}, 2
        ''')
        if a.rot1 == 7:
            p.e(f'''
            s_lshl_b32 s3, s3, 1
            s_add_u32 s3, s3, {sRg}
            s_cmp_ge_u32 s3, 7
            s_cselect_b32 s7, 7, 0
            s_sub_u32 s3, s3, s7
            s_cmp_ge_u32 s3, 7
            s_cselect_b32 s7, 7, 0
            s_sub_u32 {sPA}, s3, s7
            s_mov_b32 {sPB}, {sPA}
            ''')
        elif a.rot1 in (2, 4):
            mul = {2: 3, 4: 2}[a.rot1]
            p.e(f'''
            s_add_u32 s3, s3, {sRg}
            s_and_b32 s3, s3, {a.rot1-1}
            s_mul_i32 {sPA}, s3, {mul}
            s_mov_b32 {sPB}, {sPA}
            ''')
        else:
            p.e(f's_mov_b32 {sPA}, 0\ns_mov_b32 {sPB}, 0')
        p.e('''
        v_lshrrev_b32 v5, 4, v2
        v_lshrrev_b32 v9, 3, v2
        v_and_b32 v10, 7, v2
        v_lshrrev_b32 v7, 5, v2
        v_and_b32 v8, 31, v2
        ''')
        p.e(f'''
        v_xor_b32 v11, v10, v5
        v_lshlrev_b32 v11, 4, v11
        v_xor_b32 v3, 64, v11
        s_lshl_b32 s3, {sW}, 5
        v_add_u32 v12, s3, v9
        v_mul_u32_u24 v12, 896, v12
        v_add_u32 v{vX[0]}, v11, v12
        v_add_u32 v13, v3, v12
        v_add_u32 v{vX[1]}, {8*896-1024}, v13
        v_add_u32 v{vX[2]}, {16*896-2048}, v{vX[0]}
        v_add_u32 v{vX[3]}, {24*896-3072}, v13
        ''')
        p.e(f'''
        s_lshl_b32 s3, {sW}, 3
        v_lshlrev_b32 v13, 2, v7
        v_xor_b32 v13, v8, v13
        v_lshlrev_b32 v13, 4, v13
        v_add_u32 v12, s3, v7
        v_lshl_add_u32 v{vWq[0]}, v12, 13, v13
        v_xor_b32 v13, 128, v13
        v_lshl_add_u32 v14, v12, 13, v13
        v_add_u32 v{vWq[1]}, {2*8192-1024}, v14
        v_add_u32 v{vWq[2]}, {4*8192-2048}, v{vWq[0]}
        v_add_u32 v{vWq[3]}, {6*8192-3072}, v14
        s_lshl_b32 {sM0}, {sW}, 12
        ''')
        p.wait_lgkm0()
        if a.stamps:
            p.e('s_memrealtime s[92:93]'); p.e('s_waitcnt lgkmcnt(0)'); p.e('v_writelane_b32 v253, s92, 62')
        p.add(self.pstamp(50))
        p.e(f's_cmp_eq_u32 {sBr}, 0')
        for (dst, pa, pb) in ((SRD_X, 8, 18), (SRD_WQ, 14, 24)):
            p.e(f's_cselect_b32 s{dst}, s{pa}, s{pb}')
            p.e(f's_cselect_b32 s{dst+1}, s{pa+1}, s{pb+1}')
        p.e(f'''
        s_mul_i32 s3, {sRg}, 114688
        s_add_u32 s{SRD_X}, s{SRD_X}, s3
        s_addc_u32 s{SRD_X+1}, s{SRD_X+1}, 0
        s_sub_u32 s{SRD_X+2}, 917504, s3
        s_mov_b32 s{SRD_X+3}, 0x20000
        s_lshl_b32 s3, {sH}, 9
        s_add_u32 s{SRD_WQ}, s{SRD_WQ}, s3
        s_addc_u32 s{SRD_WQ+1}, s{SRD_WQ+1}, 0
        s_sub_u32 s{SRD_WQ+2}, 3670016, s3
        s_mov_b32 s{SRD_WQ+3}, 0x20000
        ''')
        groups = list(sched[-1])
        S = Prog()
        q = S
        q.e(f'''
        s_mov_b32 s{SRD_DBG}, s30
        s_mov_b32 s{SRD_DBG+1}, s31
        s_mov_b32 s{SRD_DBG+2}, 256
        s_mov_b32 s{SRD_DBG+3}, 0x20000
        v_mov_b32 v{vZero}, 0
        s_or_b32 s3, s2, {sW}
        s_cmp_lg_u32 s3, 0
        s_cbranch_scc1 L_nononce
        s_memrealtime s[18:19]
        s_waitcnt lgkmcnt(0)
        s_or_b32 s18, s18, 1
        s_or_b32 s19, s19, 0x40000000
        v_mov_b32 v{vN}, s18
        v_mov_b32 v{vN+1}, s19
        s_mov_b64 exec, 1
        ''')
        x = I(f'buffer_store_dwordx2 v[{vN}:{vN+1}], v{vZero}, {srd(SRD_DBG)}, 0 offen sc1'); x.kind = 'fake'; q.ins.append(x)
        q.e('s_mov_b64 exec, -1\nL_nononce:')
        q.e(f's_cmp_eq_u32 {sBr}, 0')
        for (dst, pa, pb) in ((SRD_K, 10, 20), (SRD_V, 12, 22), (SRD_WO, 16, 26)):
            q.e(f's_cselect_b32 s{dst}, s{pa}, s{pb}')
            q.e(f's_cselect_b32 s{dst+1}, s{pa+1}, s{pb+1}')
        q.e(f'''
        s_and_b32 {sDh}, {sW}, 1
        s_lshr_b32 {sBp}, {sW}, 1
        ''')
        q.e(f'''
        v_lshrrev_b32 v12, 1, v8
        v_and_b32 v12, 7, v12
        v_xor_b32 v12, v12, v7
        v_lshlrev_b32 v12, 4, v12
        v_lshl_add_u32 v12, v8, 7, v12
        s_lshl_b32 s3, {sBp}, 13
        s_lshl_b32 s7, {sDh}, 12
        s_add_u32 s7, s7, s3
        s_add_u32 s7, s7, {BB}
        v_add_u32 v{vBx[0][0][0]}, s7, v12
        s_xor_b32 s7, s7, 4096
        v_add_u32 v{vBx[1][0][0]}, s7, v12
        ''')
        for b in range(2):
            q.e(f'''
            v_xor_b32 v{vBx[b][0][1]}, 32, v{vBx[b][0][0]}
            v_xor_b32 v{vBx[b][1][0]}, 64, v{vBx[b][0][0]}
            v_xor_b32 v{vBx[b][1][1]}, 96, v{vBx[b][0][0]}
            ''')
        q.e('''
        v_lshrrev_b32 v13, 2, v2
        v_and_b32 v13, 3, v13
        v_and_b32 v14, 1, v5
        v_and_b32 v15, 1, v2
        v_lshl_add_u32 v15, v14, 1, v15
        v_lshrrev_b32 v16, 1, v2
        v_and_b32 v16, 1, v16
        v_lshlrev_b32 v16, 3, v16
        v_lshl_add_u32 v16, v15, 4, v16
        v_lshl_add_u32 v17, v7, 3, v13
        ''')
        q.e(f'''
        s_lshl_b32 s3, {sDh}, 8
        v_lshl_add_u32 v18, v17, 9, v16
        v_add_u32 v18, s3, v18
        ''')
        for t in range(4):
            q.e(f'''
            v_xor_b32 v19, {t}, v13
            v_lshl_add_u32 v{vAw[t]}, v19, 6, v18
            ''')
        setup1 = S.ins; S = Prog(); q = S
        q.e(f'''
        s_add_u32 s3, {sM0}, {EXB}
        v_add_u32 v{vKr[0][0]}, s3, v12
        v_xor_b32 v{vKr[0][1]}, 32, v{vKr[0][0]}
        v_xor_b32 v{vKr[1][0]}, 64, v{vKr[0][0]}
        v_xor_b32 v{vKr[1][1]}, 96, v{vKr[0][0]}
        v_add_u32 v{vAv[0][0]}, {sM0}, v12
        v_xor_b32 v{vAv[0][1]}, 32, v{vAv[0][0]}
        v_xor_b32 v{vAv[1][0]}, 64, v{vAv[0][0]}
        v_xor_b32 v{vAv[1][1]}, 96, v{vAv[0][0]}
        ''')
        q.e(f'''
        s_lshl_b32 s3, {sBp}, 13
        v_lshl_add_u32 v18, v17, 7, v16
        v_add_u32 v18, s3, v18
        v_lshrrev_b32 v19, 1, v13
        v_xor_b32 v19, {sBp}, v19
        v_lshl_add_u32 v{vBo[0]}, v19, 6, v18
        v_xor_b32 v{vBo[1]}, 64, v{vBo[0]}
        ''')
        q.e(f'''
        v_lshlrev_b32 v12, 9, v9
        v_add_u32 v{vKd[0]}, v11, v12
        v_add_u32 v13, v3, v12
        v_add_u32 v{vKd[1]}, {8*512-1024}, v13
        v_add_u32 v{vKd[2]}, {16*512-2048}, v{vKd[0]}
        v_add_u32 v{vKd[3]}, {24*512-3072}, v13
        s_lshl_b32 s3, {sRg}, 5
        s_lshr_b32 s7, {sH}, 1
        s_add_u32 s3, s3, s7
        s_lshl_b32 s3, s3, 14
        s_add_u32 s{SRD_K}, s{SRD_K}, s3
        s_addc_u32 s{SRD_K+1}, s{SRD_K+1}, 0
        s_sub_u32 s{SRD_K+2}, 4194304, s3
        s_mov_b32 s{SRD_K+3}, 0x20000
        s_lshl_b32 s3, {sBp}, 1
        s_add_u32 s7, s3, {sDh}
        s_lshl_b32 {sKb[0]}, s7, 17
        s_xor_b32 s7, s7, 1
        s_lshl_b32 {sKb[1]}, s7, 17
        s_lshl_b32 s3, {sDh}, 8
        s_add_u32 {sKb[0]}, {sKb[0]}, s3
        s_add_u32 {sKb[1]}, {sKb[1]}, s3
        ''')
        q.e(f'''
        s_mov_b32 s{SRD_P}, s32
        s_mov_b32 s{SRD_P+1}, s33
        s_mov_b32 s{SRD_P+2}, {32 << 20}
        s_mov_b32 s{SRD_P+3}, 0x20000
        v_lshlrev_b32 v{vP}, 4, v2
        s_mul_i32 {sInb}, s2, 12
        s_add_u32 {sInb}, {sInb}, {sW}
        s_lshl_b32 {sInb}, {sInb}, 11
        s_add_u32 {sInb}, {sInb}, {WS_PART}
        s_lshl_b32 {sF1}, s2, 7
        s_add_u32 {sF1}, {sF1}, {WS_FLG1}
        s_lshl_b32 {sF2}, s2, 2
        s_add_u32 {sF2}, {sF2}, {sW}
        s_lshl_b32 {sF2}, {sF2}, 7
        s_add_u32 {sF2}, {sF2}, {WS_FLG2}
        v_mov_b32 v{TMP+8}, -1
        v_mov_b32 v{TMP+9}, -1
        v_mov_b32 v{TMP+10}, -1
        v_mov_b32 v{TMP+11}, -1
        ''')
        setup2 = S.ins; S = Prog(); q = S
        q.e(f'''
        s_and_b32 {sR4}, {sSlot}, 3
        s_lshr_b32 {sCt}, {sSlot}, 2
        s_cmp_ge_u32 {sSlot}, 28
        s_cselect_b32 {sIdle}, 1, 0
        s_cselect_b32 {sCt}, 0, {sCt}
        ''')
        if a.rot2:
            q.e(f's_add_u32 {sC0}, {sR4}, {sCt}\ns_and_b32 {sC0}, {sC0}, 3')
        else:
            q.e(f's_mov_b32 {sC0}, 0')
        if a.rotp:
            q.e(f'''
            s_mul_i32 s3, {sCt}, 11
            s_lshr_b32 s3, s3, 5
            s_mul_i32 s3, s3, 3
            s_sub_u32 s3, {sCt}, s3
            ''')
            for pos in range(3):
                q.e(f's_add_u32 s7, s3, {pos}\ns_cmp_ge_u32 s7, 3\ns_cselect_b32 {sOwn[pos]}, 3, 0\ns_sub_u32 s7, s7, {sOwn[pos]}\n'
                    f's_add_u32 s7, s7, {sX4}\ns_add_u32 s7, s7, 1\ns_and_b32 {sOwn[pos]}, s7, 3')
            q.e(f's_mov_b32 {sOwn[3]}, {sX4}')
        else:
            for pos in range(4):
                q.e(f's_add_u32 {sOwn[pos]}, {sX4}, {pos + 1}\ns_and_b32 {sOwn[pos]}, {sOwn[pos]}, 3')
        q.e(f'''
        s_lshl_b32 s3, {sR4}, 20
        s_add_u32 s{SRD_V}, s{SRD_V}, s3
        s_addc_u32 s{SRD_V+1}, s{SRD_V+1}, 0
        s_sub_u32 s{SRD_V+2}, 4194304, s3
        s_mov_b32 s{SRD_V+3}, 0x20000
        s_lshl_b32 s3, {sX4}, 1
        s_add_u32 s3, s3, {sBp}
        s_lshl_b32 s3, s3, 14
        s_lshl_b32 s7, {sDh}, 17
        s_add_u32 {sVb}, s3, s7
        s_lshl_b32 s3, {sCt}, 7
        s_add_u32 s{SRD_WO}, s{SRD_WO}, s3
        s_addc_u32 s{SRD_WO+1}, s{SRD_WO+1}, 0
        s_sub_u32 s{SRD_WO+2}, 3670016, s3
        s_mov_b32 s{SRD_WO+3}, 0x20000
        s_cmp_eq_u32 {sIdle}, 1
        s_cselect_b32 s{SRD_V+2}, 0, s{SRD_V+2}
        s_cselect_b32 s{SRD_WO+2}, 0, s{SRD_WO+2}
        ''')
        q.e(f'''
        s_lshl_b32 s3, {sX4}, 2
        s_add_u32 s3, s3, {sW}
        s_lshl_b32 s3, s3, 8
        v_add_u32 v12, s3, v9
        v_mul_u32_u24 v12, 896, v12
        v_lshlrev_b32 v13, 2, v14
        v_xor_b32 v13, v10, v13
        v_lshl_add_u32 v{vO[0]}, v13, 4, v12
        v_add_u32 v{vO[1]}, {7168-1024}, v{vO[0]}
        v_add_u32 v{vO[2]}, {2*(7168-1024)}, v{vO[0]}
        v_add_u32 v{vO[3]}, {3*(7168-1024)}, v{vO[0]}
        ''')
        q.e(f'''
        s_lshl_b32 s3, {sRg}, 2
        s_add_u32 s3, s3, {sW}
        s_lshl_b32 s3, s3, 4
        s_add_u32 s3, s3, {sH}
        s_lshl_b32 {sPst}, s3, 11
        s_lshl_b32 s3, {sBr}, 20
        s_add_u32 {sPst}, {sPst}, s3
        s_lshl_b32 s7, {sR4}, 3
        s_add_u32 s7, s7, {sDh}
        s_lshl_b32 s7, s7, 3
        s_lshl_b32 {sPld}, {sX4}, 1
        s_add_u32 {sPld}, {sPld}, {sBp}
        s_add_u32 {sPld}, {sPld}, s7
        s_lshl_b32 {sPld}, {sPld}, 12
        s_add_u32 {sPld}, {sPld}, s3
        ''')
        q.e(f'''
        s_lshl_b32 s3, {sR4}, 2
        s_add_u32 s3, s3, {sX4}
        s_mul_i32 s3, s3, {64*1792}
        s_mul_i32 s7, {sBr}, 896
        s_add_u32 s3, s3, s7
        s_lshl_b32 s7, {sCt}, 7
        s_add_u32 s3, s3, s7
        s_add_u32 s{SRD_OUT}, s28, s3
        s_addc_u32 s{SRD_OUT+1}, s29, 0
        s_sub_u32 s{SRD_OUT+2}, {1024*1792}, s3
        s_mov_b32 s{SRD_OUT+3}, 0x20000
        s_lshl_b32 s3, {sDh}, 5
        v_add_u32 v12, s3, v8
        v_mul_u32_u24 v12, 1792, v12
        s_lshl_b32 s3, {sBp}, 6
        v_lshl_add_u32 v13, v7, 4, s3
        v_add_u32 v{vOut}, v12, v13
        s_add_u32 s3, {sM0}, {EXB}
        v_add_u32 v{vExW}, s3, v{vP}
        v_xor_b32 v{vExR1}, 4096, v{vExW}
        v_xor_b32 v{vExR2}, 8192, v{vExW}
        s_mov_b32 s12, 0
        s_mov_b32 s13, 0
        s_mov_b32 s14, 0
        ''')
        q.e(f'''
        s_lshl_b32 s3, {sR4}, 3
        v_add_u32 v12, s3, v10
        v_lshlrev_b32 v12, 3, v12
        s_and_b32 s3, s2, 7
        v_add_u32 v12, s3, v12
        v_lshlrev_b32 v12, 7, v12
        v_add_u32 v{vF1}, {WS_FLG1}, v12
        ''')
        if a.touch:
            q.e(f'''
            v_and_b32 v12, 15, v2
            v_lshlrev_b32 v12, 21, v12
            buffer_load_dword v{TMP}, v12, {srd(SRD_P)}, 0 offen
            buffer_load_dword v{TMP+1}, v12, {srd(SRD_V)}, 0 offen
            buffer_load_dword v{TMP+2}, v12, {srd(SRD_WO)}, 0 offen
            buffer_load_dword v{TMP+3}, v12, {srd(SRD_OUT)}, 0 offen
            ''')
        setup3 = S.ins
        pf = []
        if a.codepf and not a.earlypf:
            pf = [f's_getpc_b64 s[{SRD_CODE}:{SRD_CODE+1}]', f's_mov_b32 s{SRD_CODE+2}, {a.codepf}', f's_mov_b32 s{SRD_CODE+3}, 0x20000',
                  f's_lshl_b32 s3, {sSlot}, 2', f's_add_u32 s3, s3, {sW}', f's_lshl_b32 s3, s3, 1', f'v_add_u32 v20, s3, v7',
                  f'v_lshlrev_b32 v20, 7, v20', f'buffer_load_dword v{vDummy}, v20, {srd(SRD_CODE)}, 0 offen']
        p.add(self.pstamp(51))
        p.add(groups[:8])
        p.add(self.pstamp(52))
        p.add(setup1)
        p.add(self.pstamp(53))
        p.add(groups[8:])
        p.add(self.pstamp(54))
        p.add(pf)
        p.add(setup2)
        if a.kiss[0] < 0: p.add(self.dma_k(0))
        p.add(self.pstamp(55))
        p.add(setup3)

    def one_lane(self, label, instr):
        p = self.p
        p.e(f's_cmp_lg_u32 {sW}, 0')
        p.e(f's_cbranch_scc1 {label}')
        p.e('s_mov_b64 exec, 1')
        x = I(instr); x.kind = 'fake'; p.ins.append(x)
        p.e('s_mov_b64 exec, -1')
        p.e(f'{label}:')

    def place(self, gaps, items, g0, g1):
        n = g1 - g0 + 1; k = len(items)
        for jx, x in enumerate(items):
            gaps[g0 + min(n - 1, jx * n // max(k, 1))].append(x)

    def emit(self, mf, gaps):
        for m, g in zip(mf, gaps):
            self.p.add([m]); self.p.add(g)

    def sentinel_init(self):
        o = []
        for k in self.a.sent:
            pre = [f's_add_u32 s91, {sInb}, {8192*k}']
            for u in range(2):
                o.append(pre + [I(f'buffer_store_dwordx4 v[{TMP+8}:{TMP+11}], v{vP}, {srd(SRD_P)}, s91 offen offset:{1024*u} sc1', ('ini', 0))]); pre = []
        return o

    def valid_check(self, regs, tag):
        t = vt[4]
        o = [f'v_max3_u32 v{t}, v{regs[0]}, v{regs[1]}, v{regs[2]}']
        for k in range(3, len(regs) - 1, 2): o.append(f'v_max3_u32 v{t}, v{t}, v{regs[k]}, v{regs[k+1]}')
        if len(regs) % 2 == 0: o.append(f'v_max_u32 v{t}, v{t}, v{regs[-1]}')
        o += [f'v_cmp_ne_u32 vcc, -1, v{t}', 's_cmp_eq_u64 vcc, -1', f's_cbranch_scc0 L_slow{tag}', f'L_back{tag}:']
        return o

    def idfrag(self):
        a_, b_, c_, d_ = vt[0], vt[1], vt[2], vt[3]
        o = [f'v_lshrrev_b32 v{a_}, 4, v{vP}',
             f'v_bfe_u32 v{b_}, v{a_}, 2, 1',
             f'v_lshrrev_b32 v{c_}, 5, v{a_}',
             f'v_cmp_eq_u32 vcc, v{b_}, v{c_}',
             f'v_and_b32 v{b_}, 1, v{a_}',
             f'v_lshlrev_b32 v{b_}, 4, v{b_}',
             f'v_mov_b32 v{c_}, 0x3f80',
             f'v_lshlrev_b32 v{c_}, v{b_}, v{c_}',
             f'v_cndmask_b32 v{c_}, 0, v{c_}, vcc',
             f'v_bfe_u32 v{b_}, v{a_}, 1, 1',
             f'v_bfe_u32 v{d_}, v{a_}, 3, 1',
             f'v_lshl_add_u32 v{b_}, v{d_}, 1, v{b_}',
             f'v_bfe_u32 v{d_}, v{a_}, 4, 1',
             f'v_lshl_add_u32 v{b_}, v{d_}, 2, v{b_}']
        for u in range(2):
            for k in range(4):
                o += [f'v_cmp_eq_u32 vcc, {4*u + k}, v{b_}', f'v_cndmask_b32 v{IDF[u]+k}, 0, v{c_}, vcc']
        return o

    def body(self, sched):
        p = self.p; a = self.a
        KISSUE = {st: k for k, st in enumerate(a.kiss) if st >= 0}
        KREAD = {st: k for k, st in enumerate(a.kread)}
        ini = self.sentinel_init()
        for c in range(14):
            self.top(c, extra_wait=(('ini', 0) if c == a.initsig else None))
            if c == a.nck:
                p.add([f'v_and_b32 v{vt[4]}, v{vN}, v{vN}', f'v_min_u32 v{vt[4]}, v{vN}, v{vN+1}', f'v_cmp_ne_u32 vcc, 0, v{vt[4]}',
                       's_cmp_eq_u64 vcc, -1', 's_cbranch_scc0 L_slow0', 'L_back0:'][1:])
            if c == a.initsig:
                x = I(f'buffer_store_dwordx2 v[{vN}:{vN+1}], v{vZero}, {srd(SRD_P)}, {sF2} offen offset:64 sc1', ('rdy', 0))
                p.add(['s_mov_b64 exec, 1', x, 's_mov_b64 exec, -1'])
            dm = sched[c]
            kiss = self.dma_k(KISSUE[c]) if c in KISSUE else []
            if kiss and a.bar2 and c % 2 == 1: kiss = [['s_waitcnt lgkmcnt(0)'] + kiss[0]] + kiss[1:]
            alld = kiss + dm
            if c in a.inist:
                k = a.inist.index(c); per = -(-len(ini) // len(a.inist))
                alld = ini[k*per:(k+1)*per] + alld
            if c == a.nld:
                alld = [[I(f'buffer_load_dwordx2 v[{vN}:{vN+1}], v{vZero}, {srd(SRD_DBG)}, 0 offen sc1', ('nonce', 0))]] + alld
            h = (len(alld) + 1) // 2 if c > 0 else 0
            segA_m = self.mf_g(c - 1, 1, 1) if c > 0 else []
            tail = []
            if c in KREAD:
                w = I('s_waitcnt vmcnt(0)'); w.note = ('vm', ('k', KREAD[c]))
                tail = [w] + self.read_k(KREAD[c])
            rl = self.roll(vAw, c + 1) if c + 1 < 14 else []
            if c == 13: rl = self.setva(0)
            if a.dmaeven and c > 0:
                mf = segA_m + self.mf_g(c, 0, 0)
                G = [[] for _ in mf]
                self.place(G, self.reads_g(c, 0, 0), 0, 3)
                self.place(G, self.reads_g(c, 1, 1), 8, 11)
                n_ = len(alld)
                order = [1, 4, 7, 10, 13, 15, 6, 12, 3, 9, 14, 5, 2, 11] if a.dmaeven == 2 else None
                if order:
                    slots = sorted(order[:n_]) if n_ <= len(order) else [int(k*16/n_) for k in range(n_)]
                else:
                    slots = [min(15, int((k + 0.5)*16/n_)) for k in range(n_)]
                for x, g_ in zip(alld, slots): G[g_].append(x)
                G[15] += tail + rl
                self.emit(mf, G)
            else:
                p.add(spread(segA_m, self.reads_g(c, 0, 0), alld[:h]))
                p.add(spread(self.mf_g(c, 0, 0), self.reads_g(c, 1, 1), alld[h:], tail + rl))
        self.top(14)
        last = self.mf_g(13, 1, 1)
        rd0 = self.reads_w(0, 0)
        dm = sched[14]
        qk = {}
        for beta in (1, 0):
            qk[beta] = []
            for t in range(4):
                for u in range(2):
                    d = vr(SS(beta), 16)
                    cin = '0' if (t == 0 and u == 0) else d
                    qk[beta].append(f'v_mfma_f32_32x32x16_bf16 {d}, {ar(KF(beta,t,u),4)}, {vr(QA(beta,t)+4*u,4)}, {cin}')
        mf = last + qk[1] + qk[0] + self.mf_w(0, 0)
        G = [[] for _ in mf]
        self.place(G, rd0, 0, 2)
        cv1 = [self.cvt_tile(QA(1, t), QA(1, t)) for t in range(4)]
        cv0 = [self.cvt_tile(QA(0, t), QA(0, t)) for t in range(4)]
        G[3] += cv1[0][:4]; G[4] += cv1[0][4:] + cv1[1][:2]; G[5] += cv1[1][2:]; G[6] += cv1[2][:6]; G[7] += cv1[2][6:] + cv1[3][:4]
        if 14 in KREAD:
            w = I('s_waitcnt vmcnt(0)'); w.note = ('vm', ('k', KREAD[14]))
            G[9] += [w] + self.read_k(KREAD[14])
        G[8] += cv1[3][4:]
        allcv0 = [x for t in range(4) for x in cv0[t]]
        self.place(G, allcv0, 10, 15)
        self.place(G, dm, *( (0, 3) if a.w0dma == 0 else (24, 27) ))
        swr = [f'ds_write_b128 v{vExW}, {vr(SS(1)+4*k,4)} offset:{1024*k}' for k in range(4)]
        self.place(G, swr, 18, 21)
        self.place(G, self.reads_w(0, 1), 24, 26)
        G[27] += self.roll(vBo, 15)
        if a.stamps and a.w0st:
            for k, g in enumerate((7, 15, 23)): G[g] = G[g] + self.pstamp(46 + k)
        self.emit(mf, G)
        sm_all = self.softmax()
        nsm = len(a.smsteps)
        cut = [0] + [int(len(sm_all) * x) for x in a.smcut] + [len(sm_all)]
        for n in range(1, 32):
            i = 14 + n; pos, cc = n >> 3, n & 7
            isred = [r for r in range(4) if r < 3 and n == a.red[r]]
            self.top(i, bar=(n <= 8 or bool(isred)), extra_wait=(('pst', 0) if n == a.sig else None))
            if n == a.sig:
                self.one_lane('L_nosig', f'buffer_store_dwordx2 v[{vN}:{vN+1}], v{vZero}, {srd(SRD_P)}, {sF1} offen sc1')
            if n == a.flagck:
                p.add(self.noncecmp([vt[0], vt[1]]) + ['s_cmp_eq_u64 vcc, -1', 's_cbranch_scc0 L_slow1', 'L_back1:'])
            if n == a.f01ck and a.flagged:
                p.add(self.noncecmp([vt[2*r + k] for r in a.flagged for k in range(2)]) + ['s_cmp_eq_u64 vcc, -1', 's_cbranch_scc0 L_slow2', 'L_back2:'])
                if not self.a.nobar: p.e('s_barrier')
            if n == a.rdyck:
                p.add(self.noncecmp([vt[0], vt[1]]) + ['s_cmp_eq_u64 vcc, -1', 's_cbranch_scc0 L_slow3', 'L_back3:'])
            if n == a.idlex:
                p.e(f's_cmp_eq_u32 {sIdle}, 1')
                p.e('s_cbranch_scc1 L_idle')
            rd0 = self.reads_w(n, 0); rd1 = self.reads_w(n, 1)
            dm = list(sched[i])
            segA = self.mf_w(n - 1, 1); segB = self.mf_w(n, 0)
            rl = self.roll(vBo, i + 1) if n < 7 else []
            if n % 2 == 1 and n < 31: rl = rl + self.setva((n + 1) >> 1)
            pvx = self.pvw(a.pv[n], order='g1first') if n in a.pv else []
            mf = segA + segB + pvx
            G = [[] for _ in mf]
            pre = []
            self.place(G, rd0, 0, 2)
            if cc == 0:
                pj = pos - 1; k = 0
                for hp in range(2):
                    for g in range(2):
                        G[3 + k] += self.cvt_tile(VW(hp, g), VWB(pj, hp, g)); k += 1
                G[4] = rd1 + G[4]
            else:
                self.place(G, rd1, 4, 6 if n < 8 else 4)
            vm = []
            if n in a.smsteps:
                k = a.smsteps.index(n)
                part = sm_all[cut[k]:cut[k+1]]
                if k == 0:
                    self.place(G, [f'ds_read_b128 {vr(TMP+4*q,4)}, v{vExR1} offset:{1024*q}' for q in range(4)], 0, 1)
                    self.place(G, part, 3, 7)
                else:
                    self.place(G, part, 0, 7)
                if k == nsm - 1:
                    G[7] += [I(f'buffer_store_dwordx4 {vr(SS(0)+4*u,4)}, v{vP}, {srd(SRD_P)}, {sPst} offen offset:{1024*u} sc1', ('pst', 0)) for u in range(2)]
            if n == a.rdyld: vm += [self.rdy_load()]
            for (st, ps) in a.pld:
                if n == st: vm += self.pload(ps)
            if n == a.flagld:
                vm = [[I(f'buffer_load_dwordx2 v[{vt[0]}:{vt[1]}], v{vF1}, {srd(SRD_P)}, 0 offen sc1', ('flag', 0))]] + vm
            if n == a.f01ld and a.flagged:
                vm = [[I(f'buffer_load_dwordx4 v[{vt[0]}:{vt[3]}], v{vZero}, {srd(SRD_P)}, {sF2} offen sc1', ('f01', 0))]] + vm
            for r in a.flagged:
                if n == a.red[r] + a.stdelay[r] + a.sigdelay: vm = self.part_signal(r) + vm
            if n == a.finld: vm += self.part_loads()
            for r in range(3):
                if n == a.red[r] - 1:
                    self.place(G, self.exw_list(r), len(mf) - 3, len(mf) - 1)
                late = a.red4 and r < 2
                if n == a.red[r]:
                    self.place(G, self.exr_list(r), 0, 1)
                if n == a.red[r] + (1 if late else 0):
                    self.place(G, [f'v_add_f32 v{OT(0)+k}, v{OT(0)+k}, v{TMP+k}' for k in range(16)] + self.cvt_tile(OT(0), OT(0)), *((0, 5) if late else (3, 7)))
                if n == a.red[r] + a.stdelay[r]:
                    if a.stdelay[r] == 0 or late: G[7] += self.part_store(r)
                    else: vm = self.part_store(r) + vm
            if n == a.idstep: self.place(G, self.idfrag(), 0, 7)
            vm = dm + vm
            if vm:
                lo, hi = (3, 7) if (cc != 0) else (6, 7)
                if n in a.smsteps or n < 8: lo = 2
                self.place(G, vm, lo, hi)
            G[7] += rl
            p.add(pre)
            self.emit(mf, G)
        segA = self.mf_w(31, 1)
        order = [(0, 1), (1, 1), (0, 0), (1, 0)]
        cv = {k: self.cvt_tile(VW(*k), VWB(3, *k)) for k in order}
        pv = self.pvw(3, order='g1first')
        p.add(segA)
        p.add(cv[(0, 1)] + cv[(1, 1)])
        p.add(spread(pv[:4], [], cv[(0, 0)] + cv[(1, 0)]))
        G = [[] for _ in range(4)]
        mf = pv[4:]
        self.place(G, self.exw_list(3), 1, 3)
        self.emit(mf, G)
        p.add(self.pstamp(56))
        p.add(self.valid_check([self.PR(kk) + k for kk in a.sent for k in range(8)], 5))
        p.add(self.pstamp(57))
        p.wait_lgkm0()
        p.e('s_barrier')
        p.add(self.pstamp(58))
        self.exr(3)
        for k in range(3):
            for u in range(2):
                d = vr(OT(0), 16)
                p.e(f'v_mfma_f32_32x32x16_bf16 {d}, {vr(IDF[u],4)}, {vr(self.PR(k)+4*u,4)}, {d}')
        p.add([f'v_add_f32 v{OT(0)+k}, v{OT(0)+k}, v{TMP+k}' for k in range(16)])
        p.add(self.pstamp(59))
        p.add(self.cvt_tile(OT(0), OT(0)))
        for u in range(2):
            p.e(f'buffer_store_dwordx4 {vr(OT(0)+4*u,4)}, v{vOut}, {srd(SRD_OUT)}, 0 offen offset:{32*u} {a.outpol}'.rstrip())

    def PR(self, k): return 64 + 8*k

    def part_loads(self, ks=(0, 1, 2)):
        out = []
        for k in ks:
            g = [f's_add_u32 s91, {sInb}, {8192*k}']
            for u in range(2):
                g.append(I(f'buffer_load_dwordx4 {vr(self.PR(k)+4*u,4)}, v{vP}, {srd(SRD_P)}, s91 offen offset:{1024*u} sc1'))
                out.append(g); g = []
        return out

    def exw_list(self, r):
        if r & 1:
            return [f'v_subrev_u32 v{vt[5]}, {EXB - EX1}, v{vExW}'] + [f'ds_write_b128 v{vt[5]}, {vr(OT(1)+4*k,4)} offset:{1024*k}' for k in range(4)]
        return [f'ds_write_b128 v{vExW}, {vr(OT(1)+4*k,4)} offset:{1024*k}' for k in range(4)]

    def exr_list(self, r):
        if r & 1:
            return [f'v_subrev_u32 v{vt[5]}, {EXB - EX1}, v{vExR2}'] + [f'ds_read_b128 {vr(TMP+4*k,4)}, v{vt[5]} offset:{1024*k}' for k in range(4)]
        return [f'ds_read_b128 {vr(TMP+4*k,4)}, v{vExR2} offset:{1024*k}' for k in range(4)]

    def exw(self, r): self.p.add(self.exw_list(r))
    def exr(self, r): self.p.add(self.exr_list(r))

    def part_store(self, r):
        o = ['s_and_b32 s3, s2, 0xfffffffc', f's_or_b32 s3, s3, {sOwn[r]}', 's_mul_i32 s3, s3, 12', f's_add_u32 s3, s3, {4*r}', f's_add_u32 s3, s3, {sW}',
             's_lshl_b32 s3, s3, 11', f's_add_u32 s3, s3, {WS_PART}']
        st = [I(f'buffer_store_dwordx4 {vr(OT(0)+4*u,4)}, v{vP}, {srd(SRD_P)}, s3 offen offset:{1024*u} sc1', ('part', r)) for u in range(2)]
        return [o + [st[0]], [st[1]]]

    def noncecmp(self, regs):
        t, u = vt[4], vt[5]
        o = [f'v_xor_b32 v{t}, v{regs[0]}, v{vN}']
        for k in range(1, len(regs)):
            o += [f'v_xor_b32 v{u}, v{regs[k]}, v{vN + (k & 1)}', f'v_or_b32 v{t}, v{t}, v{u}']
        o.append(f'v_cmp_eq_u32 vcc, 0, v{t}')
        return o

    def rdy_addr(self):
        return ['s_and_b32 s3, s2, 0xfffffffc', f's_or_b32 s3, s3, {sOwn[2]}', 's_lshl_b32 s3, s3, 2', f's_add_u32 s3, s3, {sW}',
                's_lshl_b32 s3, s3, 7', f's_add_u32 s3, s3, {WS_FLG2}']

    def rdy_load(self):
        return self.rdy_addr() + [I(f'buffer_load_dwordx2 v[{vt[0]}:{vt[1]}], v{vZero}, {srd(SRD_P)}, s3 offen offset:64 sc1', ('rdyl', 0))]

    def part_signal(self, r):
        w = I('s_waitcnt vmcnt(0)'); w.note = ('vm', ('part', r))
        x = I(f'buffer_store_dwordx2 v[{vN}:{vN+1}], v{vZero}, {srd(SRD_P)}, s3 offen sc1')
        return [[w, 's_and_b32 s3, s2, 0xfffffffc', f's_or_b32 s3, s3, {sOwn[r]}', 's_lshl_b32 s3, s3, 2', f's_add_u32 s3, s3, {sW}',
                 's_lshl_b32 s3, s3, 7', f's_add_u32 s3, s3, {WS_FLG2 + 8*r}', 's_mov_b64 exec, 1', x, 's_mov_b64 exec, -1']]

    def pload(self, pos):
        out = [[f's_lshl_b32 s91, {sOwn[pos]}, 16', f's_add_u32 s91, s91, {sPld}',
                I(f'buffer_load_dwordx4 {vr(PFV(pos,0,0),4)}, v{vP}, {srd(SRD_P)}, s91 offen sc1')]]
        for k in range(1, 4):
            hp, u = k >> 1, k & 1
            out.append([I(f'buffer_load_dwordx4 {vr(PFV(pos,hp,u),4)}, v{vP}, {srd(SRD_P)}, s91 offen offset:{hp*2048 + u*1024} sc1')])
        return out

    def pvw(self, pos, order=None):
        m = []
        if order == 'g1first':
            for g in (1, 0):
                first = True
                for hp in range(2):
                    for u in range(2):
                        d = vr(OT(g), 16)
                        m.append(f'v_mfma_f32_32x32x16_bf16 {d}, {vr(VWB(pos,hp,g)+4*u,4)}, {vr(PFV(pos,hp,u),4)}, {"0" if first else d}')
                        first = False
            return m
        for hp in range(2):
            for u in range(2):
                for g in range(2):
                    d = vr(OT(g), 16)
                    cin = '0' if (hp == 0 and u == 0) else d
                    m.append(f'v_mfma_f32_32x32x16_bf16 {d}, {vr(VWB(pos,hp,g)+4*u,4)}, {vr(PFV(pos,hp,u),4)}, {cin}')
        return m

    def softmax(self):
        S = SS(0); t0, t1, t2 = vt[1], vt[2], vt[3]
        o = []
        o += [f'v_add_f32 v{S+k}, v{S+k}, v{TMP+k}' for k in range(16)]
        o.append(f'v_max3_f32 v{t0}, v{S}, v{S+1}, v{S+2}')
        for k in range(3, 15, 2):
            o.append(f'v_max3_f32 v{t0}, v{t0}, v{S+k}, v{S+k+1}')
        o.append(f'v_max_f32 v{t0}, v{t0}, v{S+15}')
        o += [f'v_mov_b32 v{t1}, v{t0}', f'v_permlane32_swap_b32 v{t0}, v{t1}', f'v_max_f32 v{t0}, v{t0}, v{t1}',
              's_mov_b32 s3, 0x3db8aa3b', f'v_mul_f32 v{t0}, s3, v{t0}']
        for k in range(16): o.append(f'v_fma_f32 v{S+k}, v{S+k}, s3, -v{t0}')
        for k in range(16): o.append(f'v_exp_f32 v{S+k}, v{S+k}')
        o.append(f'v_add_f32 v{t1}, v{S}, v{S+1}')
        o.append(f'v_add_f32 v{t2}, v{S+2}, v{S+3}')
        for k in range(4, 16, 2):
            o.append(f'v_add_f32 v{t1}, v{t1}, v{S+k}')
            o.append(f'v_add_f32 v{t2}, v{t2}, v{S+k+1}')
        o += [f'v_add_f32 v{t1}, v{t1}, v{t2}', f'v_mov_b32 v{t2}, v{t1}', f'v_permlane32_swap_b32 v{t1}, v{t2}',
              f'v_add_f32 v{t1}, v{t1}, v{t2}', f'v_rcp_f32 v{t1}, v{t1}']
        for k in range(16): o.append(f'v_mul_f32 v{S+k}, v{S+k}, v{t1}')
        o += self.cvt_tile(S, S)
        return o

    def slowpath(self):
        def spin(tag, load, test, back):
            return f'''
L_slow{tag}:
    s_mov_b32 {sCnt}, 0
L_spin{tag}:
    s_add_u32 s{12 if tag == 0 else 13 if tag < 2 else 14}, s{12 if tag == 0 else 13 if tag < 2 else 14}, {64 if tag in (2, 3) else 1}
    {load}
    s_waitcnt vmcnt(0)
{test}
    s_cbranch_scc1 {back}
    s_sleep 2
    s_add_u32 {sCnt}, {sCnt}, 1
    s_cmp_lt_u32 {sCnt}, 0x8000
    s_cbranch_scc1 L_spin{tag}
    s_branch {back}
'''
        def ind(lst): return '\n'.join('    ' + x for x in lst)
        s0 = spin(0, f'buffer_load_dwordx2 v[{vN}:{vN+1}], v{vZero}, {srd(SRD_DBG)}, 0 offen sc1',
                  ind([f'v_min_u32 v{vt[4]}, v{vN}, v{vN+1}', f'v_cmp_ne_u32 vcc, 0, v{vt[4]}', 's_nop 4', 's_cmp_eq_u64 vcc, -1']), 'L_back0')
        out = s0
        def vchk(regs):
            t = vt[4]
            o = [f'v_max3_u32 v{t}, v{regs[0]}, v{regs[1]}, v{regs[2]}']
            for k in range(3, len(regs) - 1, 2): o.append(f'v_max3_u32 v{t}, v{t}, v{regs[k]}, v{regs[k+1]}')
            if len(regs) % 2 == 0: o.append(f'v_max_u32 v{t}, v{t}, v{regs[-1]}')
            o += [f'v_cmp_ne_u32 vcc, -1, v{t}', 's_nop 4', 's_cmp_eq_u64 vcc, -1']
            return '\n'.join('    ' + x for x in o)
        def flat(groups):
            return '\n    '.join((x.t if isinstance(x, I) else x) for g in groups for x in g)
        out += spin(1, f'buffer_load_dwordx2 v[{vt[0]}:{vt[1]}], v{vF1}, {srd(SRD_P)}, 0 offen sc1',
                    ind(self.noncecmp([vt[0], vt[1]]) + ['s_nop 4', 's_cmp_eq_u64 vcc, -1']), 'L_back1')
        if self.a.flagged:
            out += spin(2, f'buffer_load_dwordx4 v[{vt[0]}:{vt[3]}], v{vZero}, {srd(SRD_P)}, {sF2} offen sc1',
                        ind(self.noncecmp([vt[2*r + k] for r in self.a.flagged for k in range(2)]) + ['s_nop 4', 's_cmp_eq_u64 vcc, -1']), 'L_back2')
        out += spin(3, '\n    '.join((x.t if isinstance(x, I) else x) for x in self.rdy_load()),
                    ind(self.noncecmp([vt[0], vt[1]]) + ['s_nop 4', 's_cmp_eq_u64 vcc, -1']), 'L_back3')
        out += spin(5, flat(self.part_loads(tuple(self.a.sent))), vchk([self.PR(kk) + k for kk in self.a.sent for k in range(8)]), 'L_back5')
        return out

    def stamps_out(self):
        if self.a.span:
            return f'''
    s_memtime s[8:9]
    s_memrealtime s[10:11]
    s_waitcnt lgkmcnt(0)
    s_sub_u32 s8, s8, s94
    s_lshl_b32 s3, s2, 2
    s_add_u32 s3, s3, {sW}
    s_lshl_b32 s3, s3, 4
    s_add_u32 s3, s3, 0x400000
    v_mov_b32 v0, s3
    v_mov_b32 v4, s92
    v_mov_b32 v5, s10
    v_mov_b32 v6, s8
    v_mov_b32 v7, 0
    s_mov_b64 exec, 1
    buffer_store_dwordx4 v[4:7], v0, {srd(SRD_P)}, 0 offen
'''
        if self.a.dbgclk:
            return f'''
    s_memtime s[8:9]
    s_memrealtime s[10:11]
    s_waitcnt lgkmcnt(0)
    s_sub_u32 s8, s8, s94
    s_sub_u32 s10, s10, s92
    s_and_b32 s3, s2, 63
    s_cmp_eq_u32 s3, 0
    s_cbranch_scc0 L_nodbg
    s_cmp_eq_u32 {sW}, 0
    s_cbranch_scc0 L_nodbg
    s_lshr_b32 s3, s2, 6
    s_lshl_b32 s3, s3, 4
    s_add_u32 s3, s3, 4
    v_mov_b32 v0, s3
    v_mov_b32 v2, s8
    v_mov_b32 v3, s10
    s_mov_b64 exec, 1
    buffer_store_dwordx2 v[2:3], v0, {srd(SRD_DBG)}, 0 offen
L_nodbg:
'''
        if not self.a.stamps: return ''
        return f'''
    s_memrealtime s[92:93]
    s_waitcnt lgkmcnt(0)
    v_writelane_b32 v253, s92, 63
    s_memtime s[92:93]
    s_waitcnt lgkmcnt(0)
    v_writelane_b32 v255, s92, 62
    s_lshl_b32 s13, s13, 8
    s_lshl_b32 s14, s14, 16
    s_or_b32 s12, s12, s13
    s_or_b32 s12, s12, s14
    v_writelane_b32 v255, s12, 61
    v_writelane_b32 v255, s94, 63
    s_lshl_b32 s3, s2, 2
    s_add_u32 s3, s3, {sW}
    s_lshl_b32 s3, s3, 8
    s_add_u32 s3, s3, 0x400000
    s_add_u32 s8, s32, s3
    s_addc_u32 s9, s33, 0
    s_mov_b32 s10, 256
    s_mov_b32 s11, 0x20000
    v_mbcnt_lo_u32_b32 v254, -1, 0
    v_mbcnt_hi_u32_b32 v254, -1, v254
    v_lshlrev_b32 v254, 2, v254
    buffer_store_dword v255, v254, s[8:11], 0 offen
    s_add_u32 s8, s8, 0x100000
    s_addc_u32 s9, s9, 0
    buffer_store_dword v253, v254, s[8:11], 0 offen
'''

    def build(self):
        sched = self.make_schedule()
        if self.a.verbose:
            for s in range(-1, 46):
                toks = []
                for g in sched[s]:
                    for x in g:
                        if isinstance(x, I) and x.tok: toks.append(x.tok)
                print(s, toks, file=sys.stderr)
        self.prologue(sched)
        self.body(sched)
        ins = self.p.finalize()
        owner = None; fresh = False
        for x in ins:
            if x.kind == 'salu' and ('m0', 0) in x.wr: fresh = True
            if x.kind == 'dma':
                if fresh: owner = x.tok; fresh = False
                assert owner == x.tok, (owner, x.tok, x.t)
        txt = render(ins)
        s = open(self.a.header).read()
        s += f'; @launch grid=(256,1,1) block=(256,1,1) lds={LDS_BYTES}\n'
        s += '.amdgcn_target "amdgcn-amd-amdhsa--gfx950"\n.text\n'
        s += f'.globl {NAME}\n.p2align 8\n.type {NAME},@function\n{NAME}:\n'
        s += txt
        s += 'L_fin:\n' + self.stamps_out() + '    s_endpgm\n'
        s += self.slowpath()
        s += 'L_idle:\n'
        if self.a.idlepf:
            s += f'''    s_lshl_b32 s3, {sR4}, 20
    s_sub_u32 s{SRD_V+2}, 4194304, s3
    s_lshl_b32 s3, {sX4}, 18
    s_add_u32 s3, s3, {sVb}
    v_lshlrev_b32 v0, 3, v{vP}
    buffer_load_dword v1, v0, {srd(SRD_V)}, s3 offen
    s_add_u32 s3, s3, 8192
    buffer_load_dword v2, v0, {srd(SRD_V)}, s3 offen
'''
        s += 'L_end:\n'
        if self.a.stamps or self.a.span: s += '    s_cmp_ge_u32 s2, 256\n    s_cbranch_scc0 L_fin\n'
        s += '    s_endpgm\n'
        s += f'''.section .rodata,"a"
.p2align 6
.amdhsa_kernel {NAME}
  .amdhsa_next_free_vgpr 512
  .amdhsa_next_free_sgpr 102
  .amdhsa_accum_offset 256
  .amdhsa_group_segment_fixed_size 0
  .amdhsa_kernarg_size 104
  .amdhsa_user_sgpr_count 2
  .amdhsa_user_sgpr_kernarg_segment_ptr 1
  .amdhsa_system_sgpr_workgroup_id_x 1
.end_amdhsa_kernel
'''
        return s, ins

def main():
    ap = argparse.ArgumentParser()
    ap.add_argument('-o', default='concat_heads__gqa_block_cached__gqa_block_cached__near_ridge.s')
    ap.add_argument('--header', default='header.txt')
    ap.add_argument('--stamps', action='store_true')
    ap.add_argument('--dbgclk', action='store_true')
    ap.add_argument('--span', action='store_true')
    ap.add_argument('--rt', action='store_true')
    ap.add_argument('--w0st', action='store_true')
    ap.add_argument('--post', action='store_true')
    ap.add_argument('--codepf', type=int, default=32768)
    ap.add_argument('--earlypf', type=int, default=1)
    ap.add_argument('--outpol', default='')
    ap.add_argument('--dmaeven', type=int, default=0)
    ap.add_argument('--bar2', type=int, default=0)
    ap.add_argument('--early', type=int, default=0)
    ap.add_argument('--w0dma', type=int, default=0)
    ap.add_argument('--red4', type=int, default=0)
    ap.add_argument('--sig', type=int, default=6)
    ap.add_argument('--sigdelay', type=int, default=3)
    ap.add_argument('--flagld', type=int, default=10)
    ap.add_argument('--flagck', type=int, default=13)
    ap.add_argument('--initsig', type=int, default=8)
    ap.add_argument('--nld', type=int, default=2)
    ap.add_argument('--nck', type=int, default=6)
    ap.add_argument('--rdyld', type=int, default=18)
    ap.add_argument('--rdyck', type=int, default=22)
    ap.add_argument('--finld', type=int, default=31)
    ap.add_argument('--sd2', type=int, default=0)
    ap.add_argument('--pld0', type=int, default=12)
    ap.add_argument('--sm', default='1,2,3')
    ap.add_argument('--ini', default='5')
    ap.add_argument('--idlex', type=int, default=6)
    ap.add_argument('--sentk', default='2')
    ap.add_argument('--idstep', type=int, default=23)
    ap.add_argument('--pace', type=int, default=2)
    ap.add_argument('--rotp', type=int, default=1)
    ap.add_argument('--touch', type=int, default=1)
    ap.add_argument('--idlepf', type=int, default=1)
    ap.add_argument('--f01ld', type=int, default=29)
    ap.add_argument('--f01ck', type=int, default=31)
    ap.add_argument('--kiss', default='3,6,9,12')
    ap.add_argument('--kread', default='5,8,11,14')
    ap.add_argument('--pv0', type=int, default=17)
    ap.add_argument('--nt', default='')
    ap.add_argument('--rot1', type=int, default=4)
    ap.add_argument('--rot2', type=int, default=1)
    ap.add_argument('--catch', type=int, default=10)
    ap.add_argument('--catch_steps', type=int, default=4)
    ap.add_argument('--nodma', action='store_true')
    ap.add_argument('--nobar', action='store_true')
    ap.add_argument('--noreads', action='store_true')
    ap.add_argument('--verbose', action='store_true')
    a = ap.parse_args()
    a.pld = [(a.flagck, 0), (a.flagck + 1, 1), (a.pv0 + 1, 2), (a.pv0 + 4, 3)]
    a.pv = {a.pv0: 0, a.pv0 + 3: 1, 24: 2}
    a.red = [a.pv0 + 1, a.pv0 + 4, 25]
    a.stdelay = [1, 1, a.sd2]
    a.smsteps = [int(x) for x in a.sm.split(',')]
    a.smcut = {1: [], 2: [0.5], 3: [0.3, 0.62]}[len(a.smsteps)]
    assert a.f01ld > a.idstep and a.rdyck < a.idstep and a.rdyld > a.flagck and a.nck <= a.initsig and a.sentk == '2'
    a.inist = [int(x) for x in a.ini.split(',')]
    a.sent = [int(x) for x in a.sentk.split(',')]
    a.flagged = [r for r in range(3) if r not in a.sent]
    a.kiss = [int(x) for x in a.kiss.split(',')]
    a.kread = [int(x) for x in a.kread.split(',')]
    g = Gen(a)
    s, ins = g.build()
    open(a.o, 'w').write(s)
    from collections import Counter
    print(Counter(x.kind for x in ins), file=sys.stderr)

if __name__ == '__main__':
    main()
```
